```python
import torch

def _softmax(x, axis=-1):
    return torch.softmax(x, dim=axis)
def _gelu(x):
    return torch.nn.functional.gelu(x, approximate="tanh")
def _silu(x):
    return torch.nn.functional.silu(x)
def _sigmoid(x):
    return torch.sigmoid(x)
def _layernorm(x, axis=-1, eps=1e-5):
    m = x.mean(dim=axis, keepdim=True)
    v = x.var(dim=axis, keepdim=True, unbiased=False)
    return (x - m) / torch.sqrt(v + eps)
def _scatter_add(tgt, idx, src, axis=0):
    return tgt.clone().index_add_(axis, idx, src)
def _segment_sum(src, seg, n):
    out = torch.zeros((n,) + src.shape[1:], dtype=src.dtype)
    return out.index_add_(0, seg, src)
def _pad(x, pw):
    flat = tuple(v for pair in reversed(pw) for v in pair)
    return torch.nn.functional.pad(x, flat)

kernel_name = 'concat_heads__ssm_conv_h3__sliding_local_dilated__prompt'

def setup_inputs():

    _w = (lambda a: (lambda t: t.to(torch.bfloat16) if t.is_floating_point() else t)(torch.as_tensor(a)))
    def _A_setup():
        B, S, D = 1, 2048, 1024
        ks = 4
        return {
            "q": _w((lambda *s: torch.randn(*s, dtype=torch.bfloat16) * 0.05)(B, S, D)),
            "k": _w((lambda *s: torch.randn(*s, dtype=torch.bfloat16) * 1.6)(B, S, D)),
            "v": _w((lambda *s: torch.randn(*s, dtype=torch.bfloat16) * 0.8)(B, S, D)),
            "shift_k": _w((lambda *s: torch.randn(*s, dtype=torch.bfloat16) * 1.6)(D, ks) * 0.5),
            "ssm_k": _w((lambda *s: torch.randn(*s, dtype=torch.bfloat16) * 1.6)(D, S) * (1.0 / S ** 0.5)),
            "ssm_D": _w((lambda *s: torch.randn(*s, dtype=torch.bfloat16) * 0.8)(D)),
        }
    _A_in = _A_setup()

    def _B_setup():
        B, S, D = 1, 2048, 1024
        return {
            "x": _w((lambda *s: torch.randn(*s, dtype=torch.bfloat16) * 0.2)(B, S, D)),
            "wqkv": _w((lambda *s: torch.randn(*s, dtype=torch.bfloat16) * 0.2)(D, 3 * D)),
            "wo": _w((lambda *s: torch.randn(*s, dtype=torch.bfloat16) * 0.05)(D, D)),
        }
    _B_in = _B_setup()

    return {
        "A_q": _A_in["q"],
        "A_k": _A_in["k"],
        "A_v": _A_in["v"],
        "A_shift_k": _A_in["shift_k"],
        "A_ssm_k": _A_in["ssm_k"],
        "A_ssm_D": _A_in["ssm_D"],
        "B_x": _B_in["x"],
        "B_wqkv": _B_in["wqkv"],
        "B_wo": _B_in["wo"],
    }

def reference(A_q, A_k, A_v, A_shift_k, A_ssm_k, A_ssm_D, B_x, B_wqkv, B_wo):
    def _A_ref(q, k, v, shift_k, ssm_k, ssm_D):
        B, S, D = q.shape
        ks = shift_k.shape[-1]
        k_pad = _pad(k, ((0, 0), (ks - 1, 0), (0, 0)))
        k_shift = torch.zeros_like(k)
        for t in range(ks):
            k_shift = k_shift + k_pad[:, t:t + S, :] * shift_k[:, ks - 1 - t][None, None, :]
        kv = k_shift * v
        L = 2 * S
        kv_pad = _pad(kv, ((0, 0), (0, S), (0, 0)))
        kf_pad = _pad(ssm_k, ((0, 0), (0, S)))
        kv_f = (lambda x, axes=(-2,-1): torch.fft.rfft2(x.float(), dim=axes))(kv_pad[:, None, :, :], axes=(1, 2))
        kf_f = (lambda x, axes=(-2,-1): torch.fft.rfft2(x.float(), dim=axes))(kf_pad[:, None, :], axes=(1, 2))
        kf_f = (lambda x, *d: x.permute(*d))(kf_f, 1, 2, 0)
        y_f = kv_f * kf_f[None, :, :, :]
        y = (lambda x, s, axes=(-2,-1): torch.fft.irfft2(x, s=s, dim=axes).to(torch.bfloat16))(y_f, (1, L), axes=(1, 2))[:, 0, :S, :]
        y = y + kv * ssm_D[None, None, :]
        return q * y

    def _B_ref(x, wqkv, wo):
        B, S, D = x.shape
        H = 32; Dh = D // H
        W, dil = 8, 2
        qkv = (lambda x, *d: x.permute(*d))((x @ wqkv).reshape(B, S, 3, H, Dh), 2, 0, 3, 1, 4)
        q, k, v = qkv[0], qkv[1], qkv[2]
        scale = Dh ** -0.5
        pos = torch.arange(S)
        off = torch.arange(W) * dil
        idx = pos[:, None] - off[None, :]
        mask = idx >= 0
        idx_c = torch.where(mask, idx, 0).reshape(-1)
        kg = k[:, :, idx_c, :].reshape(B, H, S, W, Dh)
        vg = v[:, :, idx_c, :].reshape(B, H, S, W, Dh)
        logits = torch.einsum("bhsd,bhswd->bhsw", q, kg) * scale
        logits = torch.where(mask[None, None, :, :], logits, -1e9)
        attn = _softmax(logits, axis=-1)
        o = torch.einsum("bhsw,bhswd->bhsd", attn, vg)
        return (lambda x, *d: x.permute(*d))(o, 0, 2, 1, 3).reshape(B, S, D) @ wo

    a = _A_ref(A_q, A_k, A_v, A_shift_k, A_ssm_k, A_ssm_D)
    b = _B_ref(B_x, B_wqkv, B_wo)
    return torch.concatenate([a, b], axis=-1)
```

```python
import re

TRANS = ("v_exp_", "v_log_", "v_rcp_", "v_rsq_", "v_sqrt_", "v_sin_", "v_cos_")


def vr(base, n=1):
    return f"v{base}" if n == 1 else f"v[{base}:{base + n - 1}]"


def sr(base, n=1):
    return f"s{base}" if n == 1 else f"s[{base}:{base + n - 1}]"


def _regs(tok):
    tok = tok.strip()
    tok = tok.replace("abs(", "").replace(")", "").replace("|", "")
    if tok.startswith("-") and len(tok) > 1 and tok[1] in "vsa":
        tok = tok[1:]
    m = re.fullmatch(r"([vsa])(\d+)", tok)
    if m:
        return [(m.group(1), int(m.group(2)))]
    m = re.fullmatch(r"([vsa])\[(\d+):(\d+)\]", tok)
    if m:
        return [(m.group(1), i) for i in range(int(m.group(2)), int(m.group(3)) + 1)]
    if tok in ("vcc", "vcc_lo", "vcc_hi"):
        return [("s", "vcc")]
    if tok in ("exec", "exec_lo", "exec_hi"):
        return [("s", "exec")]
    if tok == "m0":
        return [("s", "m0")]
    return []


class Ins:
    __slots__ = ("text", "op", "ops", "mods", "kind", "w", "r", "srcc", "srcab", "passes", "wide_store", "data",
                 "label", "target", "states", "dpp")

    def __init__(self, text):
        self.text = text
        self.label = None
        self.target = None
        self.w, self.r = set(), set()
        self.srcc, self.srcab, self.data = set(), set(), set()
        self.passes = 0
        self.wide_store = False
        self.states = 1
        self.dpp = False
        code = text.split(";")[0].strip()
        if code.endswith(":"):
            self.kind = "label"
            self.label = code[:-1]
            self.op = ""
            self.states = 0
            return
        if not code or code.startswith("."):
            self.kind = "dir"
            self.op = ""
            self.states = 0
            return
        parts = code.split(None, 1)
        self.op = op = parts[0]
        rest = parts[1] if len(parts) > 1 else ""
        toks = [t.strip() for t in rest.split(",")] if rest else []
        mods = ""
        if toks:
            last = toks[-1].split(None, 1)
            toks[-1] = last[0]
            mods = last[1] if len(last) > 1 else ""
        clean = []
        for i, t in enumerate(toks):
            sp = t.split(None, 1)
            clean.append(sp[0])
            if len(sp) > 1:
                mods = " ".join([sp[1]] + toks[i + 1:]) + " " + mods
                break
        toks = clean
        self.ops, self.mods = toks, mods
        R = [_regs(t) for t in toks]
        flat = lambda L: set(x for l in L for x in l)
        if op.startswith("v_mfma"):
            self.kind = "mfma"
            self.w = set(R[0])
            self.srcab = set(R[1]) | set(R[2])
            self.srcc = set(R[3])
            self.r = self.srcab | self.srcc
            self.passes = 8 if "32x32" in op else 4
        elif op.startswith("v_"):
            self.kind = "valu"
            self.dpp = "dpp" in op or any(k in mods for k in ("quad_perm", "row_", "wave_"))
            if op.startswith("v_permlane") and "swap" in op or op.startswith("v_swap"):
                self.w = flat(R[:2])
                self.r = flat(R[:2])
            elif op.startswith("v_cmpx"):
                self.w = set(R[0]) | {("s", "exec")}
                self.r = flat(R[1:])
            elif "_co_" in op or op.startswith("v_div_scale") or op.startswith("v_mad_u64"):
                self.w = flat(R[:2])
                self.r = flat(R[2:])
            elif op == "v_nop":
                pass
            else:
                self.w = set(R[0])
                self.r = flat(R[1:])
                if op.startswith(("v_fmac", "v_pk_fmac", "v_dot2c", "v_writelane")) or self.dpp or "sdwa" in op:
                    self.r |= set(R[0])
        elif op.startswith("ds_"):
            self.kind = "ds"
            if op.startswith(("ds_read", "ds_bpermute", "ds_permute", "ds_swizzle")) or "_rtn" in op:
                self.w = set(R[0])
                self.r = flat(R[1:])
            else:
                self.r = flat(R)
        elif op.startswith("buffer_") and op not in ("buffer_inv", "buffer_wbl2"):
            self.kind = "vmem"
            if op.startswith("buffer_load"):
                if re.search(r"\blds\b", mods):
                    self.r = flat(R) | {("s", "m0")}
                else:
                    self.w = set(R[0])
                    self.r = flat(R[1:])
            else:
                self.r = flat(R)
                self.data = set(R[0])
                self.wide_store = "x3" in op or "x4" in op
                if "atomic" in op and "sc0" in mods:
                    self.w = set(R[0])
        elif op.startswith(("global_", "flat_")):
            self.kind = "vmem"
            if "load_lds" in op:
                self.r = flat(R) | {("s", "m0")}
            elif "_load" in op:
                self.w = set(R[0])
                self.r = flat(R[1:])
            elif "atomic" in op and "sc0" in mods:
                self.w = set(R[0])
                self.r = flat(R[1:])
            else:
                self.r = flat(R)
                self.data = set(R[1])
                self.wide_store = "x3" in op or "x4" in op
        elif op.startswith("s_") or op.startswith("buffer_"):
            self.kind = "salu"
            if op == "s_nop":
                self.states = int(toks[0], 0) + 1
            elif op.startswith(("s_cbranch", "s_branch")):
                self.target = toks[0]
            elif op.startswith(("s_cmp", "s_waitcnt", "s_barrier", "s_endpgm", "s_setprio", "s_sleep", "buffer_",
                                "s_bitcmp", "s_setreg")):
                self.r = flat(R)
            else:
                self.w = set(R[0]) if R else set()
                self.r = flat(R[1:])
                if "saveexec" in op:
                    self.w.add(("s", "exec"))
        else:
            raise ValueError("unknown instruction: " + text)


def _vg(S):
    return {x for x in S if x[0] in "va"}


def _sg(S):
    return {x for x in S if x[0] == "s"}


def required(p, c):
    n = 0
    if p.kind == "valu":
        pv, ps = _vg(p.w), _sg(p.w)
        if c.kind == "mfma":
            if pv & c.r:
                n = max(n, 2)
            if ("s", "exec") in ps:
                n = max(n, 4)
        if c.kind == "valu":
            if c.op.startswith("v_permlane") and pv & c.r:
                n = max(n, 2)
            if c.dpp and pv & c.r:
                n = max(n, 2)
            if c.dpp and ("s", "exec") in ps:
                n = max(n, 5)
            if c.op.startswith(("v_readlane", "v_readfirstlane")) and pv & c.r:
                n = max(n, 1)
            if p.op.startswith(TRANS) and pv & c.r:
                n = max(n, 1)
            if ("sdwa" in p.op or "op_sel" in p.mods) and pv & (c.r | c.w):
                n = max(n, 1)
            if ps & c.r:
                n = max(n, 4 if c.op.startswith(("v_readlane", "v_writelane")) else 2)
            if ("s", "exec") in ps and c.op.startswith(("v_readlane", "v_readfirstlane", "v_writelane", "v_permlane")):
                n = max(n, 4)
            if p.op.startswith("v_dot") and pv & (c.r | c.w):
                n = max(n, 3)
        if c.kind == "vmem" and ps & c.r:
            n = max(n, 5)
        if c.kind == "salu" and ps & c.r:
            n = max(n, 1)
    elif p.kind == "mfma":
        big = p.passes == 8
        if c.kind == "mfma":
            if p.w & c.srcab:
                n = max(n, 12 if big else 8)
            if p.w & c.srcc and not (p.w == c.srcc and p.passes == c.passes):
                n = max(n, 10 if big else 6)
            if p.w & c.w and not (p.w == c.srcc):
                n = max(n, 12 if big else 8)
        elif c.kind in ("valu", "ds", "vmem"):
            if p.w & (c.r | c.w):
                n = max(n, 12 if big else 8)
            if c.kind == "valu" and p.srcc & c.w:
                n = max(n, 7 if big else 3)
    elif p.kind == "vmem":
        if p.wide_store and p.data & c.w:
            n = max(n, 2)
    elif p.kind == "salu":
        if ("s", "m0") in p.w and c.kind in ("vmem", "ds") and ("s", "m0") in c.r:
            n = max(n, 1)
    return n


class Asm:
    def __init__(self):
        self.ins = []

    def __call__(self, text):
        for line in text.split("\n"):
            if line.strip():
                self.ins.append(Ins(line.strip()))
        return self

    def label(self, name):
        self(name + ":")

    def extend(self, lines):
        for l in lines:
            self(l)

    def finish(self, verbose=False):
        ins = self.ins
        labels = {x.label: i for i, x in enumerate(ins) if x.kind == "label"}
        preds = [[] for _ in ins]
        for i, x in enumerate(ins):
            if x.target is not None and x.target in labels:
                preds[labels[x.target]].append(i)
            if i + 1 < len(ins) and x.op not in ("s_branch", "s_endpgm"):
                preds[i + 1].append(i)
        pad = [0] * len(ins)
        for i, c in enumerate(ins):
            if c.kind in ("label", "dir"):
                continue
            need, why = 0, None
            stack = [(j, 0) for j in preds[i]]
            seen = {}
            while stack:
                j, d = stack.pop()
                if d >= 12 or seen.get(j, 99) <= d:
                    continue
                seen[j] = d
                p = ins[j]
                if p.kind not in ("label", "dir"):
                    r = required(p, c)
                    if r - d > need:
                        need, why = r - d, p
                for k in preds[j]:
                    stack.append((k, d + p.states + pad[j]))
            if need > 0:
                pad[i] = need
                if verbose:
                    print(f"pad {need}: [{why.text}] -> [{c.text}]")
        self.padded = sum(pad)
        lines = []
        for i, x in enumerate(ins):
            if pad[i]:
                lines.append(f"    s_nop {pad[i] - 1}")
            lines.append(x.text if x.kind in ("label", "dir") else "    " + x.text)
        return "\n".join(lines) + "\n"


def weave(main, fill, start=0, per=1, step=1):
    out = []
    fi = 0
    for i, m in enumerate(main):
        out.append(m)
        if i >= start and (i - start) % step == 0:
            for _ in range(per):
                if fi < len(fill):
                    out.append(fill[fi])
                    fi += 1
    out.extend(fill[fi:])
    return out
```

```python
from asmlib import *

NAME = "concat_heads__ssm_conv_h3__sliding_local_dilated__prompt"

HEADER = """; Kernarg layout for this problem (96 bytes, ptrs only, base s[0:1]):
"""

P_Q, P_K, P_V, P_SH, P_H, P_D, P_X, P_W, P_WO, P_OUT, P_DBG, P_WS = [8 + 2 * i for i in range(12)]

WS_O = 0
WS_KV = 4 << 20
WS_Z = 8 << 20
WS_CNT = 12 << 20
WS_STAMP = 128 << 20

MFMA = "v_mfma_f32_16x16x32_bf16"


def mfma(d, a, b, c=None):
    cs = vr(d, 4) if c is None else (c if isinstance(c, str) else vr(c, 4))
    return f"{MFMA} {vr(d, 4)}, {vr(a, 4)}, {vr(b, 4)}, {cs}"


def load_ptrs(a):
    a("s_load_dwordx16 s[8:23], s[0:1], 0")
    a("s_load_dwordx8 s[24:31], s[0:1], 64")


def srd(a, d, ptr, nbytes, off=0):
    if off:
        a(f"s_add_u32 s{d}, s{ptr}, {off:#x}")
        a(f"s_addc_u32 s{d + 1}, s{ptr + 1}, 0")
    else:
        a(f"s_mov_b32 s{d}, s{ptr}")
        a(f"s_mov_b32 s{d + 1}, s{ptr + 1}")
    a(f"s_mov_b32 s{d + 2}, {nbytes:#x}")
    a(f"s_mov_b32 s{d + 3}, 0x20000")


class Stamps:
    def __init__(self, on):
        self.on = on

    def start(self, a):
        if self.on:
            a("s_mov_b32 s100, 0")
            a("v_mov_b32 v254, 0")
            a("v_mov_b32 v255, 0")
            self.stamp(a)

    def stamp(self, a, i=None):
        if self.on:
            a("s_memtime s[96:97]")
            a("s_memrealtime s[98:99]")
            a("s_waitcnt lgkmcnt(0)")
            a("s_mov_b32 s101, m0")
            a("s_mov_b32 m0, s100")
            a("v_writelane_b32 v254, s96, m0")
            a("v_writelane_b32 v255, s98, m0")
            a("s_mov_b32 m0, s101")
            a("s_cselect_b32 s101, 1, 0")
            a("s_add_u32 s100, s100, 1")
            a("s_cmp_lg_u32 s101, 0")

    def flush(self, a, s_wg, s_wave, vt=253):
        if not self.on:
            return
        self.stamp(a)
        a("s_mov_b64 exec, -1")
        srd(a, 92, P_WS, 256 * 8 * 512, WS_STAMP)
        a(f"s_lshl_b32 s100, s{s_wg}, 3")
        a(f"s_add_u32 s100, s100, s{s_wave}")
        a("s_lshl_b32 s100, s100, 9")
        a(f"v_mbcnt_lo_u32_b32 v253, -1, 0")
        a(f"v_mbcnt_hi_u32_b32 v253, -1, v253")
        a(f"v_lshlrev_b32 v253, 2, v253")
        a(f"buffer_store_dword v254, v253, s[92:95], s100 offen")
        a(f"buffer_store_dword v255, v253, s[92:95], s100 offen offset:256")


def kernel_begin(name):
    return f""".text
.globl {name}
.p2align 8
.type {name},@function
{name}:
"""


def kernel_desc(name, vgpr=256, sgpr=102):
    return f""".section .rodata,"a"
.p2align 6
.amdhsa_kernel {name}
  .amdhsa_next_free_vgpr {vgpr}
  .amdhsa_next_free_sgpr {sgpr}
  .amdhsa_accum_offset {min(256, (vgpr + 3) // 4 * 4)}
  .amdhsa_group_segment_fixed_size 0
  .amdhsa_kernarg_size 96
  .amdhsa_user_sgpr_count 2
  .amdhsa_user_sgpr_kernarg_segment_ptr 1
  .amdhsa_system_sgpr_workgroup_id_x 1
  .amdhsa_float_denorm_mode_32 3
.end_amdhsa_kernel
"""


def build_file(kernels):
    s = HEADER
    if len(kernels) == 1 and kernels[0][0] == NAME + "_kernel":
        n, _, g, b, l, _ = kernels[0]
        s += f"; @launch grid=({g},1,1) block=({b},1,1) lds={l}\n"
    else:
        for n, _, g, b, l, _ in kernels:
            s += f"; @launch kernel={n} grid=({g},1,1) block=({b},1,1) lds={l}\n"
    s += '.amdgcn_target "amdgcn-amd-amdhsa--gfx950"\n'
    for n, body, *_ in kernels:
        s += kernel_begin(n) + body
    for n, _, g, b, l, v in kernels:
        s += kernel_desc(n, v)
    return s
```

```python
from common import *

STAGE = 41984
X_HALO = 16384
W_OFF = 17408
NSTAGE = 16
EX = (STAGE + 36864, 3 * STAGE + 33792)

S_WG, S_WAVE = 2, 3
S_PAR, S_RB, S_HP = 4, 5, 6
S_T0 = 7


def decode_ids(a):
    a("v_lshrrev_b32 v1, 6, v0")
    a(f"v_readfirstlane_b32 s{S_WAVE}, v1")
    a("v_and_b32 v0, 63, v0")
    a(f"s_and_b32 s{S_PAR}, s2, 1")
    a(f"s_bfe_u32 s{S_RB}, s2, 0x30003")
    a(f"s_bfe_u32 s{S_HP}, s2, 0x20001")
    a(f"s_lshl_b32 s{S_HP}, s{S_HP}, 2")
    a(f"s_lshr_b32 s{S_T0}, s2, 6")
    a(f"s_add_u32 s{S_HP}, s{S_HP}, s{S_T0}")


L_SRDX, L_SRDW = 32, 36
L_SOX, L_SOW = 40, 41
L_BUF = 42
L_BX, L_BW = 43, 44
L_EX = 46
L_T = 48
LV_X, LV_H, LV_W = 2, 6, 7
NPER = 11


def loader_setup(a):
    a(f"s_sub_u32 s{L_T}, s{S_WAVE}, 4")
    srd(a, L_SRDX, P_X, 4 << 20)
    srd(a, L_SRDW, P_W, 6 << 20)
    a(f"s_lshl_b32 s{L_BX}, s{L_T}, 12")
    a(f"s_lshl_b32 s{L_BW}, s{L_T}, 11")
    a(f"s_add_u32 s{L_BW}, s{L_BW}, {W_OFF}")
    a(f"s_lshl_b32 s{L_T + 1}, s{L_T}, 4")
    a(f"s_lshl_b64 s[{L_EX}:{L_EX + 1}], 0xffff, s{L_T + 1}")
    a("v_lshrrev_b32 v13, 3, v0")
    a("v_and_b32 v14, 7, v0")
    a("v_lshrrev_b32 v15, 4, v0")
    a(f"s_lshl_b32 s{L_T + 1}, s{S_RB}, 7")
    a(f"s_lshl_b32 s{L_T + 2}, s{L_T}, 5")
    a(f"s_add_u32 s{L_T + 2}, s{L_T + 2}, s{L_T + 1}")
    a(f"s_lshl_b32 s{L_T + 2}, s{L_T + 2}, 12")
    a(f"s_lshl_b32 s{L_T + 3}, s{S_PAR}, 11")
    a(f"s_add_u32 s{L_T + 2}, s{L_T + 2}, s{L_T + 3}")
    a(f"v_lshl_add_u32 v16, v13, 12, s{L_T + 2}")
    a("v_xor_b32 v17, v14, v15")
    a(f"v_lshl_add_u32 v{LV_X}, v17, 4, v16")
    a(f"v_xor_b32 v{LV_X + 1}, 64, v{LV_X}")
    a(f"v_add_u32 v{LV_X + 1}, {8 * 4096}, v{LV_X + 1}")
    a(f"v_add_u32 v{LV_X + 2}, {16 * 4096}, v{LV_X}")
    a(f"v_add_u32 v{LV_X + 3}, {16 * 4096}, v{LV_X + 1}")
    a(f"s_sub_u32 s{L_T + 1}, s{L_T + 1}, 8")
    a(f"s_max_i32 s{L_T + 1}, s{L_T + 1}, 0")
    a(f"s_lshl_b32 s{L_T + 1}, s{L_T + 1}, 12")
    a(f"s_add_u32 s{L_T + 1}, s{L_T + 1}, s{L_T + 3}")
    a(f"v_lshl_add_u32 v16, v13, 12, s{L_T + 1}")
    a("v_lshlrev_b32 v17, 1, v15")
    a("v_xor_b32 v17, v14, v17")
    a(f"v_lshl_add_u32 v{LV_H}, v17, 4, v16")
    a(f"s_mul_i32 s{L_T + 1}, s{L_T}, {16 * 6144}")
    a(f"s_lshl_b32 s{L_T + 2}, s{S_HP}, 7")
    a(f"s_add_u32 s{L_T + 1}, s{L_T + 1}, s{L_T + 2}")
    a(f"s_movk_i32 s{L_T + 2}, 6144")
    a(f"v_mul_lo_u32 v16, v13, s{L_T + 2}")
    a(f"v_add_u32 v16, s{L_T + 1}, v16")
    a("v_and_b32 v17, 1, v15")
    a("v_lshlrev_b32 v17, 1, v17")
    a("v_xor_b32 v17, v14, v17")
    a(f"v_lshl_add_u32 v{LV_W}, v17, 4, v16")
    a(f"v_xor_b32 v{LV_W + 1}, 64, v{LV_W}")
    a(f"v_add_u32 v{LV_W + 1}, {8 * 6144}, v{LV_W + 1}")
    for part in (1, 2):
        for kgi in (0, 1):
            a(f"v_add_u32 v{LV_W + 2 * part + kgi}, {2048 * part}, v{LV_W + kgi}")
    a(f"s_mov_b32 s{L_SOX}, 0")
    a(f"s_mov_b32 s{L_SOW}, 0")
    a(f"s_mov_b32 s{L_BUF}, 0")


def loader_issue(a):
    a(f"s_add_u32 s{L_T}, s{L_BUF}, s{L_BX}")
    a(f"s_add_u32 s{L_T + 1}, s{L_BUF}, s{L_BW}")
    order = [("x", 0), ("w", 0), ("w", 1), ("x", 1), ("w", 2), ("w", 3), ("x", 2), ("w", 4), ("w", 5), ("x", 3)]
    for kind, i in order:
        if kind == "x":
            a(f"s_add_u32 m0, s{L_T}, {1024 * i}")
            a(f"buffer_load_dwordx4 v{LV_X + i}, s[{L_SRDX}:{L_SRDX + 3}], s{L_SOX} offen lds")
        else:
            a(f"s_add_u32 m0, s{L_T + 1}, {8192 * (i >> 1) + 1024 * (i & 1)}")
            a(f"buffer_load_dwordx4 v{LV_W + i}, s[{L_SRDW}:{L_SRDW + 3}], s{L_SOW} offen lds")
    a(f"s_add_u32 m0, s{L_BUF}, {X_HALO}")
    a(f"s_mov_b64 exec, s[{L_EX}:{L_EX + 1}]")
    a(f"buffer_load_dwordx4 v{LV_H}, s[{L_SRDX}:{L_SRDX + 3}], s{L_SOX} offen lds")
    a("s_mov_b64 exec, -1")
    a(f"s_add_u32 s{L_SOX}, s{L_SOX}, 128")
    a(f"s_add_u32 s{L_SOW}, s{L_SOW}, {64 * 6144}")
    a(f"s_add_u32 s{L_BUF}, s{L_BUF}, {STAGE}")
    a(f"s_cmp_eq_u32 s{L_BUF}, {3 * STAGE}")
    a(f"s_cselect_b32 s{L_BUF}, 0, s{L_BUF}")


ACC = 4
def accQ(b, d): return ACC + 4 * (2 * b + d)
def accK(b, d): return ACC + 32 + 4 * (2 * b + d)
def accV(b, d): return ACC + 64 + 4 * (2 * b + d)
ACC_KH, ACC_VH = ACC + 96, ACC + 100
FR = 108
def frX(s, b): return FR + 44 * s + 4 * b
def frW(s, part, d): return FR + 44 * s + 20 + 4 * (2 * part + d)
AD = 196
G_HH, G_HALF = 32, 33
G_BUF, G_DELTA, G_CNT, G_T = 34, 35, 36, 37


def compute_setup(a):
    a(f"s_lshr_b32 s{G_HH}, s{S_WAVE}, 1")
    a(f"s_and_b32 s{G_HALF}, s{S_WAVE}, 1")
    a("v_and_b32 v1, 15, v0")
    a("v_lshrrev_b32 v2, 4, v0")
    a("v_lshrrev_b32 v3, 1, v1")
    a("v_xor_b32 v3, v2, v3")
    a("v_lshlrev_b32 v3, 4, v3")
    a(f"v_lshl_add_u32 v3, v1, 7, v3")
    a(f"s_lshl_b32 s{G_T}, s{G_HALF}, 13")
    a(f"v_add_u32 v{AD}, s{G_T}, v3")
    a(f"v_xor_b32 v{AD + 1}, 64, v{AD}")
    a("v_and_b32 v3, 6, v1")
    a("v_xor_b32 v3, v2, v3")
    a("v_lshlrev_b32 v3, 4, v3")
    a(f"v_and_b32 v{AD + 2}, 7, v1")
    a(f"v_lshl_add_u32 v3, v{AD + 2}, 7, v3")
    a(f"v_add_u32 v{AD + 2}, {X_HALO}, v3")
    a(f"v_xor_b32 v{AD + 3}, 64, v{AD + 2}")
    a("v_bfe_u32 v3, v0, 2, 2")
    a(f"v_lshl_add_u32 v{AD + 4}, v2, 3, v3")
    a(f"v_lshlrev_b32 v{AD + 4}, 7, v{AD + 4}")
    a("v_bfe_u32 v3, v0, 3, 2")
    a(f"v_xor_b32 v3, s{S_WAVE}, v3")
    a(f"v_lshl_add_u32 v{AD + 4}, v3, 5, v{AD + 4}")
    a("v_and_b32 v3, 3, v0")
    a(f"v_lshl_add_u32 v{AD + 4}, v3, 3, v{AD + 4}")
    a(f"v_add_u32 v{AD + 4}, {W_OFF}, v{AD + 4}")
    a(f"v_xor_b32 v{AD + 5}, 32, v{AD + 4}")
    for i in range(104):
        a(f"v_mov_b32 v{ACC + i}, 0")
    a(f"s_mov_b32 s{G_BUF}, 0")


def reads(s, ks):
    def rx(b):
        if b == 4:
            return f"ds_read_b128 {vr(frX(s, 4), 4)}, v{AD + 2 + ks}"
        return f"ds_read_b128 {vr(frX(s, b), 4)}, v{AD + ks} offset:{2048 * b}"
    def rw(part, d):
        return [f"ds_read_b64_tr_b16 {vr(frW(s, part, d) + 2 * j, 2)}, v{AD + 4 + d} offset:{8192 * part + 4096 * ks + 512 * j}"
                for j in (0, 1)]
    L = [rx(0)] + rw(0, 0) + [rx(1)] + rw(0, 1) + [rx(2)] + rw(1, 0) + [rx(3)] + rw(1, 1) + [rx(4)] + rw(2, 0) + rw(2, 1)
    return L


def mfmas(s):
    L = mfmas0(s)
    o = OPT.get("order")
    if o == "xmajor":
        L = []
        for b in range(4):
            for part, acc in ((0, accQ), (1, accK)):
                for d in (0, 1):
                    L.append(mfma(acc(b, d), frW(s, part, d), frX(s, b)))
            for d in (0, 1):
                L.append(mfma(accV(b, d), frX(s, b), frW(s, 2, d)))
        L.append(mfma(ACC_KH, frW(s, 1, 0), frX(s, 4)))
        L.append(mfma(ACC_VH, frX(s, 4), frW(s, 2, 0)))
    if o == "scatter":
        L = [L[(7 * i) % 26] for i in range(26)]
    if o == "same":
        L = [mfma(ACC + 4 * i, frW(s, 0, 0), frX(s, 0)) for i in range(26)]
    if o == "big":
        L = []
        for i in range(13):
            c = ACC + 16 * (i % 6)
            L.append(f"v_mfma_f32_32x32x16_bf16 {vr(c, 16)}, {vr(frW(s, (i % 6) // 2, i // 6 % 2), 4)}, {vr(frX(s, (i % 2) + 2 * (i // 6 % 2)), 4)}, {vr(c, 16)}")
            L.append("s_nop 0")
    return L


def mfmas0(s):
    L = []
    for part, acc in ((0, accQ), (1, accK)):
        for d in (0, 1):
            for b in range(4):
                L.append(mfma(acc(b, d), frW(s, part, d), frX(s, b)))
            if part == 1 and d == 0:
                L.append(mfma(ACC_KH, frW(s, 1, 0), frX(s, 4)))
    for d in (0, 1):
        for b in range(4):
            L.append(mfma(accV(b, d), frX(s, b), frW(s, 2, d)))
        if d == 0:
            L.append(mfma(ACC_VH, frX(s, 4), frW(s, 2, 0)))
    return L


def next_buf():
    return [f"s_add_u32 s{G_BUF}, s{G_BUF}, {STAGE}",
            f"s_cmp_eq_u32 s{G_BUF}, {3 * STAGE}",
            f"s_cselect_b32 s{G_DELTA}, {-2 * STAGE}, s{G_T}",
            f"s_cselect_b32 s{G_BUF}, 0, s{G_BUF}"]


OPT = {}


def compute_loop(a, tag="g1"):
    a(f"s_mov_b32 s{G_T}, {STAGE}")
    a(f"s_mov_b32 s{G_CNT}, {NSTAGE - 1}")
    a("s_barrier")
    a.extend(reads(0, 0))
    a("s_waitcnt lgkmcnt(0)")
    a.label(f"L_{tag}_loop")
    m0 = mfmas(0)
    rd = (lambda s, ks: []) if OPT.get("noread") else reads
    if OPT.get("noread"):
        a.ins[-1:-1] = [Ins(x) for x in reads(1, 1) + ["s_waitcnt lgkmcnt(0)"]]
    fill = rd(1, 1) + next_buf()
    a.extend(weave(m0[:23], fill))
    a("s_waitcnt lgkmcnt(0)")
    adds = [f"v_add_u32 v{AD + i}, s{G_DELTA}, v{AD + i}" for i in range(6)]
    a.extend(weave(m0[23:], adds, per=2))
    a("s_barrier")
    m1 = mfmas(1)
    a.extend(weave(m1, rd(0, 0) + [f"s_sub_u32 s{G_CNT}, s{G_CNT}, 1", f"s_cmp_lg_u32 s{G_CNT}, 0"]))
    a("s_waitcnt lgkmcnt(0)")
    a(f"s_cbranch_scc1 L_{tag}_loop")
    a.extend(weave(mfmas(0), reads(1, 1)))
    a("s_waitcnt lgkmcnt(0)")
    a.extend(mfmas(1))


QF = FR
KF = FR + 16
VF = FR + 36
HX = FR + 56
MC, MP, MP0 = 204, 208, 212
BC = 216
OA = 218
EXW, EXW3, EXR = 219, 220, 221
G_SRDO = 40


def attn_setup(a):
    a("v_and_b32 v1, 15, v0")
    a("v_lshrrev_b32 v2, 4, v0")
    a("v_lshlrev_b32 v2, 2, v2")
    a("v_sub_u32 v1, v1, v2")
    a(f"s_mov_b32 s{G_T}, 0xf149f2ca")
    a(f"v_mov_b32 v3, s{G_T}")
    a(f"s_or_b32 s{G_T + 1}, s{S_RB}, s{G_HALF}")
    a(f"s_cmp_eq_u32 s{G_T + 1}, 0")
    a(f"s_cselect_b32 s{G_T + 1}, s{G_T}, 0")
    a(f"v_mov_b32 v{BC}, 0")
    a(f"v_mov_b32 v{BC + 1}, 0")
    for i in range(4):
        a(f"v_subrev_u32 v2, {i}, v1")
        a("v_cmp_gt_u32 vcc, 8, v2")
        a(f"v_cndmask_b32 v{MC + i}, v3, 0, vcc")
        a("v_cmp_gt_i32 vcc, -8, v2")
        a(f"v_cndmask_b32 v{MP + i}, v3, 0, vcc")
        a(f"v_min_f32 v{MP0 + i}, s{G_T + 1}, v{MP + i}")
        a("v_cmp_le_i32 vcc, 0, v2")
        a(f"v_cndmask_b32 v2, 0, -1, vcc")
        a(f"v_and_b32 v2, {'0xffff0000' if i & 1 else '0xffff'}, v2")
        a(f"v_or_b32 v{BC + (i >> 1)}, v{BC + (i >> 1)}, v2")
    a(f"s_mul_i32 s{G_T}, s{G_HH}, {EX[1] - EX[0]}")
    a(f"s_add_u32 s{G_T}, s{G_T}, {EX[0]}")
    a(f"v_lshl_add_u32 v{EXW3}, v0, 3, s{G_T}")
    a(f"s_lshl_b32 s{G_T + 1}, s{G_HALF}, 9")
    a(f"v_add_u32 v{EXW}, s{G_T + 1}, v{EXW3}")
    a(f"s_mul_i32 s{G_T + 1}, s{G_HALF}, {2048 + 512}")
    a(f"v_add_u32 v{EXR}, s{G_T + 1}, v{EXW3}")
    a(f"v_xor_b32 v{EXR + 1}, 512, v{EXR}")
    a(f"s_lshl_b32 s{G_T}, s{S_PAR}, 6")
    a(f"s_lshl_b32 s{G_T + 1}, s{S_RB}, 3")
    a(f"s_add_u32 s{G_T}, s{G_T}, s{G_T + 1}")
    a(f"s_lshl_b32 s{G_T + 1}, s{G_HALF}, 2")
    a(f"s_add_u32 s{G_T}, s{G_T}, s{G_T + 1}")
    a(f"s_lshl_b32 s{G_T}, s{G_T}, 5")
    a(f"s_lshl_b32 s{G_T + 1}, s{S_HP}, 1")
    a(f"s_add_u32 s{G_T}, s{G_T}, s{G_T + 1}")
    a(f"s_add_u32 s{G_T}, s{G_T}, s{G_HH}")
    a(f"s_lshl_b32 s{G_T}, s{G_T}, 10")
    a(f"v_lshl_add_u32 v{OA}, v0, 4, s{G_T}")
    srd(a, G_SRDO, P_WS, 4 << 20, WS_O)


def cvt2(dst, src):
    return [f"v_cvt_pk_bf16_f32 v{dst}, v{src}, v{src + 1}", f"v_cvt_pk_bf16_f32 v{dst + 1}, v{src + 2}, v{src + 3}"]


def xreduce(a, op, r, t):
    a(f"v_permlane32_swap_b32 v{r[0]}, v{r[1]}")
    a(f"v_permlane32_swap_b32 v{r[2]}, v{r[3]}")
    a(f"{op} v{r[0]}, v{r[0]}, v{r[1]}")
    a(f"{op} v{r[2]}, v{r[2]}, v{r[3]}")
    a(f"v_permlane16_swap_b32 v{r[0]}, v{r[2]}")
    a(f"{op} v{r[0]}, v{r[0]}, v{r[2]}")


def xbroadcast(a, r):
    a(f"v_mov_b32 v{r[2]}, v{r[0]}")
    a(f"v_permlane16_swap_b32 v{r[0]}, v{r[2]}")
    a(f"v_mov_b32 v{r[1]}, v{r[0]}")
    a(f"v_mov_b32 v{r[3]}, v{r[2]}")
    a(f"v_permlane32_swap_b32 v{r[0]}, v{r[1]}")
    a(f"v_permlane32_swap_b32 v{r[2]}, v{r[3]}")


def attention(a, sync, store_mods="", tag="at"):
    kf = lambda b: KF + 4 * (b + 1)
    vf = lambda d, b: VF + 10 * d + 2 * (b + 1)
    a.extend(cvt2(HX, ACC_KH))
    for d in (0, 1):
        a.extend(cvt2(kf(3) + 2 * d, accK(3, d)))
    a.extend(cvt2(HX + 2, ACC_VH))
    for d in (0, 1):
        a.extend(cvt2(vf(d, 3), accV(3, d)))
    a(f"ds_write_b64 v{EXW}, {vr(HX, 2)}")
    a(f"ds_write_b64 v{EXW}, {vr(HX + 2, 2)} offset:1024")
    a(f"s_cmp_eq_u32 s{G_HALF}, 0")
    a(f"s_cbranch_scc0 L_{tag}_nopub")
    for d in (0, 1):
        a(f"ds_write_b64 v{EXW3}, {vr(kf(3) + 2 * d, 2)} offset:{2048 + 512 * d}")
        a(f"ds_write_b64 v{EXW3}, {vr(vf(d, 3), 2)} offset:{2048 + 1024 + 512 * d}")
    a.label(f"L_{tag}_nopub")
    for b in range(4):
        for d in (0, 1):
            a.extend(cvt2(QF + 4 * b + 2 * d, accQ(b, d)))
    a("s_waitcnt lgkmcnt(0)")
    sync(a)
    for d in (0, 1):
        a(f"ds_read_b64 {vr(kf(-1) + 2 * d, 2)}, v{EXR + d}")
    for d in (0, 1):
        a(f"ds_read_b64 {vr(vf(d, -1), 2)}, v{EXR + d} offset:1024")
    for b in range(3):
        for d in (0, 1):
            a.extend(cvt2(kf(b) + 2 * d, accK(b, d)))
    Sc = lambda b: accQ(b, 0)
    Sp = lambda b: accQ(b, 1)
    vcv = []
    for b in range(3):
        for d in (0, 1):
            vcv += cvt2(vf(d, b), accV(b, d))
    ms = []
    for b in (3, 2, 1):
        ms.append(mfma(Sc(b), kf(b), QF + 4 * b, MC))
        ms.append(mfma(Sp(b), kf(b - 1), QF + 4 * b, MP))
    ms.append(mfma(Sc(0), kf(0), QF, MC))
    a.extend(weave(ms, vcv, per=2))
    a("s_waitcnt lgkmcnt(0)")
    a(mfma(Sp(0), kf(-1), QF, MP0))
    R = [accK(0, 0) + i for i in range(4)]
    for b in (3, 2, 1, 0):
        for i in range(4):
            a(f"v_max_f32 v{Sc(b) + i}, v{Sc(b) + i}, v{Sp(b) + i}")
        a(f"v_max3_f32 v{R[b]}, v{Sc(b)}, v{Sc(b) + 1}, v{Sc(b) + 2}")
        a(f"v_max_f32 v{R[b]}, v{R[b]}, v{Sc(b) + 3}")
    xreduce(a, "v_max_f32", R, None)
    a(f"s_mov_b32 s{G_T}, 0x3e8293ee")
    a(f"v_mul_f32 v{R[0]}, s{G_T}, v{R[0]}")
    xbroadcast(a, R)
    for b in range(4):
        for i in range(4):
            a(f"v_fma_f32 v{Sc(b) + i}, v{Sc(b) + i}, s{G_T}, -v{R[b]}")
    for b in range(4):
        for i in range(4):
            a(f"v_exp_f32 v{Sc(b) + i}, v{Sc(b) + i}")
    for b in range(4):
        a(f"v_add_f32 v{R[b]}, v{Sc(b)}, v{Sc(b) + 1}")
        a(f"v_add_f32 v{Sp(b)}, v{Sc(b) + 2}, v{Sc(b) + 3}")
        a(f"v_add_f32 v{R[b]}, v{R[b]}, v{Sp(b)}")
    xreduce(a, "v_add_f32", R, None)
    a(f"v_rcp_f32 v{R[0]}, v{R[0]}")
    xbroadcast(a, R)
    O = lambda b, d: accK(b, d) if b else accV(0, d)
    for b in range(4):
        for i in range(4):
            a(f"v_mul_f32 v{Sc(b) + i}, v{Sc(b) + i}, v{R[b]}")
        a.extend(cvt2(Sp(b), Sc(b)))
        for j in (0, 1):
            a(f"v_and_b32 v{Sp(b) + 2 + j}, v{BC + j}, v{Sp(b) + j}")
        for j in (0, 1):
            a(f"v_xor_b32 v{Sp(b) + j}, v{Sp(b) + j}, v{Sp(b) + 2 + j}")
        if b:
            for d in (0, 1):
                a(mfma(O(b - 1, d), vf(d, b - 2), Sp(b - 1), "0"))
    for d in (0, 1):
        a(mfma(O(3, d), vf(d, 2), Sp(3), "0"))
    for b in range(4):
        for d in (0, 1):
            a.extend(cvt2(QF + 4 * b + 2 * d, O(b, d)))
    a(f"s_cmp_eq_u32 s{G_HALF}, 0")
    a(f"s_cbranch_scc1 L_{tag}_noswap")
    for b in range(4):
        for j in (0, 1):
            a(f"v_swap_b32 v{QF + 4 * b + j}, v{QF + 4 * b + 2 + j}")
    a.label(f"L_{tag}_noswap")
    for b in range(4):
        a(f"s_mov_b32 s{G_T}, {32768 * b}")
        a(f"buffer_store_dwordx4 {vr(QF + 4 * b, 4)}, v{OA}, s[{G_SRDO}:{G_SRDO + 3}], s{G_T} offen{store_mods}")


def standalone(stamps=False):
    a = Asm()
    st = Stamps(stamps)
    a("s_cmp_ge_u32 s2, 256")
    a("s_cbranch_scc1 L_g1_end")
    st.start(a)
    load_ptrs(a)
    decode_ids(a)
    a("s_waitcnt lgkmcnt(0)")
    a(f"s_cmp_ge_u32 s{S_WAVE}, 4")
    a("s_cbranch_scc1 L_g1_loader")
    compute_setup(a)
    attn_setup(a)
    st.stamp(a, 1)
    compute_loop(a)
    st.stamp(a, 2)
    attention(a, lambda a: a("s_barrier"))
    st.stamp(a, 3)
    a("s_waitcnt vmcnt(0)")
    st.stamp(a, 4)
    st.flush(a, S_WG, S_WAVE, 2)
    a("s_endpgm")
    a.label("L_g1_loader")
    loader_setup(a)
    a(f"s_mov_b32 s52, 3")
    a.label("L_g1_ld0")
    loader_issue(a)
    a("s_sub_u32 s52, s52, 1")
    a("s_cmp_lg_u32 s52, 0")
    a("s_cbranch_scc1 L_g1_ld0")
    st.stamp(a, 1)
    a(f"s_waitcnt vmcnt({2 * NPER})")
    st.stamp(a, 2)
    a("s_barrier")
    a(f"s_mov_b32 s52, {NSTAGE - 3}")
    a.label("L_g1_ld")
    a(f"s_waitcnt vmcnt({NPER})")
    a("s_barrier")
    if not OPT.get("nodma"):
        loader_issue(a)
    st.stamp(a)
    a("s_sub_u32 s52, s52, 1")
    a("s_cmp_lg_u32 s52, 0")
    a("s_cbranch_scc1 L_g1_ld")
    st.stamp(a, 3)
    a(f"s_waitcnt vmcnt({NPER})")
    a("s_barrier")
    a("s_waitcnt vmcnt(0)")
    a("s_barrier")
    st.stamp(a, 4)
    st.flush(a, S_WG, S_WAVE, 20)
    a.label("L_g1_end")
    a("s_endpgm")
    return a


if __name__ == "__main__":
    import sys
    variants = {"g1": {}, "g1_nodma": {"nodma": 1}, "g1_mfma": {"nodma": 1, "noread": 1},
                "g1_mfma_x": {"nodma": 1, "noread": 1, "order": "xmajor"},
                "g1_mfma_sc": {"nodma": 1, "noread": 1, "order": "scatter"},
                "g1_mfma_same": {"nodma": 1, "noread": 1, "order": "same"},
                "g1_mfma_big": {"nodma": 1, "noread": 1, "order": "big"},
                "g1_big": {"order": "big"},
                "g1_noread": {"noread": 1},
                "g1_x": {"order": "xmajor"}}
    for n, o in variants.items():
        OPT.clear(); OPT.update(o)
        a = standalone(stamps=True)
        body = a.finish(verbose="-v" in sys.argv)
        open(f"dev/{n}.s", "w").write(build_file([("g1_kernel", body, 256, 512, 163840, 256)]))
        print(n, "padded", a.padded)
```

```python
import sys
from common import *
import g1
from g1 import *

LDS_BYTES = 163840
H_REG, H_PITCH, H_COPY = 3 * STAGE, 8448, 4224
U_REG, U_PITCH, U_COPY = STAGE, 9216, 4576
FLAGS = STAGE + 36864 + 4096
POST_ST, POST_PITCH = 2 * STAGE, 4352
CNT_KV, CNT_O, CNT_Z = 0, 16, 32
SPIN_MAX = 1 << 17


def wo_base(c):
    if c < 5:
        return 8192 * c
    if c < 8:
        return 2 * STAGE + 17408 + 8192 * (c - 5)
    i = (c - 8) >> 1
    return H_REG + H_PITCH * i if c % 2 == 0 else U_REG + U_PITCH * i


class Q:
    def __init__(self, name, cap):
        self.name, self.cap, self.ops = name, cap, []

    def issue(self, tag, n=1):
        self.ops += [tag] * n

    def need(self, *tags):
        last = max((i for i, t in enumerate(self.ops) if t in tags), default=-1)
        if last < 0:
            return None
        n = len(self.ops) - 1 - last
        self.ops = self.ops[last + 1:]
        assert n <= self.cap, (self.name, n)
        return n

    def wait(self, a, *tags):
        n = self.need(*tags)
        if n is not None:
            a(f"s_waitcnt {self.name}({n})")

    def drained(self):
        self.ops = []


S_CNT = 52
_uid = [0]


def uid(p):
    _uid[0] += 1
    return f"L_{p}_{_uid[0]}"


def spin_global(a, srd_, soff, want, vt, st):
    done, loop = uid("sg_done"), uid("sg_loop")
    a(f"s_mov_b32 s{st + 1}, {SPIN_MAX}")
    a.label(loop)
    a(f"v_readfirstlane_b32 s{st}, v{vt}")
    a(f"s_cmp_ge_u32 s{st}, {want}")
    a(f"s_cbranch_scc1 {done}")
    a(f"s_sub_u32 s{st + 1}, s{st + 1}, 1")
    a(f"s_cbranch_scc1 {done}")
    a(f"buffer_load_dword v{vt}, off, s[{srd_}:{srd_ + 3}], {soff} sc1")
    a("s_waitcnt vmcnt(0)")
    a(f"s_branch {loop}")
    a.label(done)


def spin_lds(a, va, off, want, vt, st, first=True):
    done, loop = uid("sl_done"), uid("sl_loop")
    if not first:
        a(f"v_readfirstlane_b32 s{st}, v{vt}")
        a(f"s_cmp_ge_u32 s{st}, {want}")
        a(f"s_cbranch_scc1 {done}")
    a(f"s_mov_b32 s{st + 1}, {SPIN_MAX * 8}")
    a.label(loop)
    a(f"ds_read_b32 v{vt}, v{va} offset:{off}")
    a("s_waitcnt lgkmcnt(0)")
    a(f"v_readfirstlane_b32 s{st}, v{vt}")
    a(f"s_cmp_ge_u32 s{st}, {want}")
    a(f"s_cbranch_scc1 {done}")
    a("s_sleep 1")
    a(f"s_sub_u32 s{st + 1}, s{st + 1}, 1")
    a(f"s_cbranch_scc0 {loop}")
    a.label(done)


def join_signal_wait(a, va, f_join, f_go, s_sig, s_wait, vt, st, between=None):
    other, done = uid("jo"), uid("jd")
    a(f"v_mov_b32 v{vt + 1}, 1")
    a("s_mov_b64 exec, 1")
    a(f"ds_add_rtn_u32 v{vt}, v{va}, v{vt + 1} offset:{f_join}")
    a("s_waitcnt lgkmcnt(0)")
    a(f"v_readfirstlane_b32 s{st + 2}, v{vt}")
    a(f"s_cmp_eq_u32 s{st + 2}, 3")
    a(f"s_cbranch_scc0 {other}a")
    a(f"buffer_atomic_add v{vt + 1}, off, s[{S_CNT}:{S_CNT + 3}], s{s_sig} sc1")
    a.label(other + "a")
    if between:
        a("s_mov_b64 exec, -1")
        between(a)
        a("s_mov_b64 exec, 1")
    a(f"s_cmp_eq_u32 s{st + 2}, 3")
    a(f"s_cbranch_scc0 {other}")
    a(f"v_mov_b32 v{vt}, 0")
    spin_global(a, S_CNT, f"s{s_wait}", 16, vt, st)
    a(f"ds_write_b32 v{va}, v{vt + 1} offset:{f_go}")
    a(f"s_branch {done}")
    a.label(other)
    spin_lds(a, va, f_go, 1, vt, st)
    a.label(done)
    a("s_mov_b64 exec, -1")


G_SRDWO, G_SRDOUT = 44, 48
G_SIG, G_WAIT, G_GC, G_CB = 56, 57, 58, 59
G_WOM, G_WOS = 60, 62
GV_O, GV_OUT, GV_WO = 224, 226, 227
GV_FL = 228
GV_RD = 229
G2_ACC, G2_WF, G2_AD, G2_OR = 4, 36, 68, 80
G2_DEPTH = 12


def g2_tile(a, s_gc, s_cb, t):
    a(f"s_and_b32 s{s_gc}, s2, 3")
    a(f"s_lshl_b32 s{s_gc}, s{s_gc}, 2")
    a(f"s_bfe_u32 s{t}, s2, 0x20003")
    a(f"s_add_u32 s{s_gc}, s{s_gc}, s{t}")
    a(f"s_bfe_u32 s{s_cb}, s2, 0x10002")
    a(f"s_lshl_b32 s{s_cb}, s{s_cb}, 3")
    a(f"s_lshr_b32 s{t}, s2, 5")
    a(f"s_add_u32 s{s_cb}, s{s_cb}, s{t}")


def wo_voffset(a, vd, s_cb, st, vt):
    a(f"v_lshrrev_b32 v{vt}, 4, v0")
    a(f"v_lshlrev_b32 v{vt}, 1, v{vt}")
    a(f"v_xor_b32 v{vt}, v0, v{vt}")
    a(f"v_and_b32 v{vt}, 7, v{vt}")
    a(f"s_lshl_b32 s{st}, s{s_cb}, 7")
    a(f"v_lshl_add_u32 v{vt}, v{vt}, 4, s{st}")
    a(f"v_lshrrev_b32 v{vd}, 3, v0")
    a(f"v_lshl_add_u32 v{vd}, v{vd}, 11, v{vt}")


def wo_dma(vo, srd_, s_m, s_so):
    L = []
    for c in (0, 1):
        for g in range(8):
            L.append([f"s_add_u32 m0, s{s_m + c}, {1024 * g}",
                      f"s_add_u32 s{s_so + 1}, s{s_so}, {(64 * c + 8 * g) * 2048}",
                      f"buffer_load_dwordx4 v{vo}, s[{srd_}:{srd_ + 3}], s{s_so + 1} offen lds"])
    return L


def g2_setup(a):
    T = G_T
    g2_tile(a, G_GC, G_CB, T)
    srd(a, G_SRDWO, P_WO, 2 << 20)
    srd(a, G_SRDOUT, P_OUT, 8 << 20)
    a(f"s_lshl_b32 s{G_SIG}, s{S_PAR}, 3")
    a(f"s_add_u32 s{G_SIG}, s{G_SIG}, s{S_RB}")
    a(f"s_add_u32 s{G_SIG}, s{G_SIG}, {CNT_O}")
    a(f"s_lshl_b32 s{G_SIG}, s{G_SIG}, 8")
    a(f"s_add_u32 s{G_WAIT}, s{G_GC}, {CNT_O}")
    a(f"s_lshl_b32 s{G_WAIT}, s{G_WAIT}, 8")
    a(f"s_lshl_b32 s{T}, s{G_GC}, 2")
    a(f"s_add_u32 s{T}, s{T}, s{S_WAVE}")
    a(f"s_lshl_b32 s{T}, s{T}, 16")
    a(f"v_lshl_add_u32 v{GV_O}, v0, 4, s{T}")
    a(f"v_add_u32 v{GV_O + 1}, 0x8000, v{GV_O}")
    a(f"s_and_b32 s{T}, s{G_GC}, 7")
    a(f"s_lshl_b32 s{T}, s{T}, 2")
    a(f"s_add_u32 s{T}, s{T}, s{S_WAVE}")
    a(f"s_lshl_b32 s{T}, s{T}, 18")
    a(f"s_lshr_b32 s{T + 1}, s{G_GC}, 3")
    a(f"s_lshl_b32 s{T + 1}, s{T + 1}, 12")
    a(f"s_add_u32 s{T}, s{T}, s{T + 1}")
    a(f"s_lshl_b32 s{T + 1}, s{G_CB}, 7")
    a(f"s_add_u32 s{T}, s{T}, s{T + 1}")
    a(f"s_add_u32 s{T}, s{T}, 2048")
    a("v_and_b32 v1, 15, v0")
    a(f"v_lshl_add_u32 v1, v1, 13, s{T}")
    a("v_bfe_u32 v2, v0, 4, 1")
    a("v_lshl_add_u32 v1, v2, 5, v1")
    a("v_lshrrev_b32 v2, 5, v0")
    a(f"v_lshl_add_u32 v{GV_OUT}, v2, 4, v1")
    wo_voffset(a, GV_WO, G_CB, T, 1)
    for c in (0, 1):
        a(f"s_lshl_b32 s{T}, s{S_WAVE}, 1")
        a(f"s_add_u32 s{T}, s{T}, {c}")
        a(f"s_cmp_ge_u32 s{T}, 5")
        a(f"s_cselect_b32 s{T + 1}, {wo_base(5) - 5 * 8192}, 0")
        a(f"s_lshl_b32 s{T}, s{T}, 13")
        a(f"s_add_u32 s{G_WOM + c}, s{T}, s{T + 1}")
    a(f"s_lshl_b32 s{G_WOS}, s{S_WAVE}, 18")
    a(f"v_mov_b32 v{GV_FL}, {FLAGS}")
    a("v_lshrrev_b32 v1, 2, v0")
    a("v_lshlrev_b32 v1, 7, v1")
    a("v_bfe_u32 v2, v0, 3, 2")
    a("v_lshl_add_u32 v1, v2, 5, v1")
    a("v_and_b32 v2, 3, v0")
    a(f"v_lshl_add_u32 v{GV_RD}, v2, 3, v1")


G2_SETS = (0, 60416, 125952)


def g2_pre(a):
    for s_, base in enumerate(G2_SETS):
        for cb in range(4):
            a(f"v_xor_b32 v{G2_AD + 4 * s_ + cb}, {32 * cb}, v{GV_RD}")
            if base:
                a(f"v_add_u32 v{G2_AD + 4 * s_ + cb}, {base}, v{G2_AD + 4 * s_ + cb}")
    for i in range(8):
        a(f"s_mov_b32 s{64 + i}, {4096 * i}")


def g2_main(a, st):
    vm, lg = Q("vmcnt", 63), Q("lgkmcnt", 15)
    PD, NF, D = 7, 8, G2_DEPTH
    NR = D + 1
    assert G2_OR + 8 * NR <= GV_O
    oreg = lambda h, i: G2_OR + 8 * (h % NR) + 4 * i

    def oload(h, i):
        vm.issue(("o", h))
        return f"buffer_load_dwordx4 {vr(oreg(h, i), 4)}, v{GV_O + i}, s[{G_SRDO}:{G_SRDO + 3}], s{64 + (h >> 2)} offen offset:{1024 * (h & 3)} sc1"

    def wread(f, j):
        h, cb = f >> 2, f & 3
        addr = wo_base(h >> 1) + 4096 * (h & 1) + 2048 * j
        s_ = max(i for i, b in enumerate(G2_SETS) if b <= wo_base(h >> 1))
        off = addr - G2_SETS[s_]
        assert 0 <= off and off + 2048 <= 65536
        lg.issue(("w", f))
        return f"ds_read_b64_tr_b16 {vr(G2_WF + 4 * (f % NF) + 2 * j, 2)}, v{G2_AD + 4 * s_ + cb} offset:{off}"

    for h in range(D):
        a(oload(h, 0))
        a(oload(h, 1))
    for f in range(PD):
        a(wread(f, 0))
        a(wread(f, 1))
    st.stamp(a)
    for f in range(128):
        h, cb = f >> 2, f & 3
        if f + PD == 64 - 6:
            a(f"ds_read_b32 v1, v{GV_FL} offset:12")
            lg.issue("flag")
        if f + PD == 64:
            lg.wait(a, "flag")
            spin_lds(a, GV_FL, 12, 4, 1, G_T, first=False)
        w = []
        n = vm.need(("o", h)) if cb == 0 else None
        if n is not None:
            w.append(f"vmcnt({n})")
        n = lg.need(("w", f))
        if n is not None:
            w.append(f"lgkmcnt({n})")
        if w:
            a("s_waitcnt " + " ".join(w))
        for i in (0, 1):
            a(mfma(G2_ACC + 16 * i + 4 * cb, G2_WF + 4 * (f % NF), oreg(h, i), "0" if h == 0 else None))
            if f + PD < 128:
                a(wread(f + PD, i))
        if cb in (1, 3) and h + D < 32:
            a(oload(h + D, cb >> 1))
    st.stamp(a)
    P = G2_WF
    for i in (0, 1):
        for cb in range(4):
            a.extend(cvt2(P + 8 * i + 2 * cb, G2_ACC + 16 * i + 4 * cb))
    for i in (0, 1):
        for p in (0, 1):
            for j in (0, 1):
                a(f"v_permlane16_swap_b32 v{P + 8 * i + 4 * p + j}, v{P + 8 * i + 4 * p + 2 + j}")
    a(f"s_mov_b32 s{G_T}, {16 * 8192}")
    for i in (0, 1):
        for p in (0, 1):
            a(f"buffer_store_dwordx4 {vr(P + 8 * i + 4 * p, 4)}, v{GV_OUT}, s[{G_SRDOUT}:{G_SRDOUT + 3}], {f's{G_T}' if i else 0} offen offset:{64 * p}")


def g_role(a, st):
    a("s_setprio 2")
    srd(a, S_CNT, P_WS, 64 * 256, WS_CNT)
    a(f"s_or_b32 s{S_T0}, s2, s{S_WAVE}")
    a(f"s_cmp_lg_u32 s{S_T0}, 0")
    a("s_cbranch_scc1 L_noinit")
    a("v_lshlrev_b32 v1, 8, v0")
    a("v_mov_b32 v2, 0")
    a(f"buffer_store_dword v2, v1, s[{S_CNT}:{S_CNT + 3}], 0 offen sc1")
    a.label("L_noinit")
    compute_setup(a)
    attn_setup(a)
    g2_setup(a)
    a(f"s_cmp_lg_u32 s{S_T0}, 0")
    a("s_cbranch_scc1 L_noinit2")
    srd(a, 64, P_DBG, 256)
    a("v_mov_b32 v2, 1")
    a("s_waitcnt vmcnt(0)")
    a("s_mov_b64 exec, 1")
    a("buffer_store_dword v2, off, s[64:67], 0 sc1")
    a("s_mov_b64 exec, -1")
    a.label("L_noinit2")
    st.stamp(a)
    compute_loop(a)
    st.stamp(a)
    b = Asm()
    mark = []
    attention(b, lambda x: (x("s_barrier"), mark.append(len(x.ins))), store_mods=" sc1")
    head, tail = b.ins[:mark[0]], b.ins[mark[0]:]
    dma = wo_dma(GV_WO, G_SRDWO, G_WOM, G_WOS)
    a.ins += head
    step = 11
    for i, x in enumerate(tail):
        a.ins.append(x)
        if i % step == step - 1 and dma:
            assert not any(y.op.startswith("s_cmp") for y in tail[:i + 1])
            a.extend(dma.pop(0))
    assert not dma
    st.stamp(a)
    g2_pre(a)
    a("s_waitcnt vmcnt(0)")
    st.stamp(a)
    join_signal_wait(a, GV_FL, 0, 4, G_SIG, G_WAIT, 1, G_T)
    st.stamp(a)
    g2_main(a, st)
    st.stamp(a)
    if st.on:
        a("s_waitcnt vmcnt(0)")
    st.flush(a, S_WG, S_WAVE)
    a("s_endpgm")


C_A, C_B, C_WS = 56, 60, 64
C_CG, C_M, C_W, C_CH = 68, 69, 70, 71
C_D, C_SIG, C_T = 72, 73, 74
C_HB, C_UB = 80, 81
C_WOS = 82
C_K4, C_K6 = 84, 85
C_CB = 86
KR, VR, TR, TMP, RES = 16, 44, 60, 76, 108
PA = 124
HR, HS = 132, 152
CACC, CA, CBF, UR, QR = 16, 48, 112, 176, 208
CV = 224


def c_setup(a):
    T = C_T
    a(f"s_sub_u32 s{C_W}, s{S_WAVE}, 4")
    a(f"s_and_b32 s{C_CG}, s2, 7")
    a(f"s_lshl_b32 s{C_CG}, s{C_CG}, 1")
    a(f"s_lshr_b32 s{T}, s2, 7")
    a(f"s_add_u32 s{C_CG}, s{C_CG}, s{T}")
    a(f"s_bfe_u32 s{C_M}, s2, 0x40003")
    a(f"s_lshl_b32 s{C_CH}, s{C_CG}, 6")
    a(f"s_lshl_b32 s{T}, s{C_M}, 2")
    a(f"s_add_u32 s{C_CH}, s{C_CH}, s{T}")
    a(f"s_add_u32 s{C_CH}, s{C_CH}, s{C_W}")
    a(f"s_mul_i32 s{C_HB}, s{C_W}, {H_PITCH}")
    a(f"s_add_u32 s{C_HB}, s{C_HB}, {H_REG}")
    a(f"s_mul_i32 s{C_UB}, s{C_W}, {U_PITCH}")
    a(f"s_add_u32 s{C_UB}, s{C_UB}, {U_REG}")
    srd(a, S_CNT, P_WS, 64 * 256, WS_CNT)
    srd(a, C_WS, P_WS, 12 << 20)
    a(f"s_movk_i32 s{C_K4}, 4096")
    a(f"s_movk_i32 s{C_K6}, 6144")
    a(f"s_lshr_b32 s{T}, s{C_CH}, 1")
    a(f"s_lshl_b32 s{T}, s{T}, 2")
    a(f"s_load_dword s{C_D}, s[{P_D}:{P_D + 1}], s{T}")


def pre_loads(a, vm):
    T = C_T
    srd(a, C_A, P_SH, 8192)
    a(f"s_lshl_b32 s{T}, s{C_CG}, 9")
    a(f"v_lshlrev_b32 v{PA}, 4, v0")
    a(f"s_add_u32 m0, s{C_HB}, 4224")
    a("s_mov_b64 exec, 0xffffffff")
    a(f"buffer_load_dwordx4 v{PA}, s[{C_A}:{C_A + 3}], s{T} offen lds")
    a("s_mov_b64 exec, -1")
    vm.issue("kv")
    a(f"s_lshl_b32 s{T}, s{C_M}, 2")
    a(f"s_add_u32 s{T}, s{T}, s{C_W}")
    a(f"s_lshl_b32 s{T}, s{T}, 16")
    a(f"s_lshl_b32 s{T + 1}, s{C_CG}, 7")
    a(f"s_add_u32 s{T}, s{T}, s{T + 1}")
    a(f"v_and_b32 v{PA + 1}, 7, v0")
    a(f"v_lshl_add_u32 v{PA + 1}, v{PA + 1}, 4, s{T}")
    a(f"v_lshrrev_b32 v{PA}, 3, v0")
    a(f"v_lshl_add_u32 v{PA}, v{PA}, 13, v{PA + 1}")
    for i in range(3):
        a(f"v_subrev_u32 v{PA + 1 + i}, {2048 * (3 - i)}, v{PA}")
    srd(a, C_A, P_K, 4 << 20)
    srd(a, C_B, P_V, 4 << 20)
    rows = [("0", 0), ("0", 2048), (f"s{C_K4}", 0), (f"s{C_K6}", 0)]
    for i in range(3):
        a(f"buffer_load_dwordx4 {vr(KR + 4 * i, 4)}, v{PA + 1 + i}, s[{C_A}:{C_A + 3}], 0 offen")
    for i, (so, off) in enumerate(rows):
        a(f"buffer_load_dwordx4 {vr(KR + 12 + 4 * i, 4)}, v{PA}, s[{C_A}:{C_A + 3}], {so} offen offset:{off}")
    for i, (so, off) in enumerate(rows):
        a(f"buffer_load_dwordx4 {vr(VR + 4 * i, 4)}, v{PA}, s[{C_B}:{C_B + 3}], {so} offen offset:{off}")
    vm.issue("kv", 11)


def unpack(a, dlo, dhi, src):
    a(f"v_lshlrev_b32 v{dlo}, 16, v{src}")
    a(f"v_and_b32 v{dhi}, 0xffff0000, v{src}")


def pre_taps(a):
    a(f"v_and_b32 v{PA}, 7, v0")
    a(f"v_lshlrev_b32 v{PA}, 6, v{PA}")
    a(f"v_add_u32 v{PA}, s{C_HB}, v{PA}")
    for d in range(4):
        a(f"ds_read_b128 {vr(TR + 4 * d, 4)}, v{PA} offset:{4224 + 16 * d}")
    a(f"v_and_b32 v{PA + 1}, 7, v0")
    a(f"v_mul_u32_u24 v{PA + 1}, 528, v{PA + 1}")
    a(f"v_lshrrev_b32 v{PA + 2}, 3, v0")
    a(f"v_xor_b32 v{PA + 2}, 7, v{PA + 2}")
    a(f"v_lshl_add_u32 v{PA + 1}, v{PA + 2}, 3, v{PA + 1}")
    a(f"v_add_u32 v{PA + 1}, s{C_HB}, v{PA + 1}")
    a(f"v_lshrrev_b32 v{PA + 2}, 5, v0")
    a(f"v_add_u32 v{PA + 2}, v0, v{PA + 2}")
    a(f"v_lshl_add_u32 v{PA + 2}, v{PA + 2}, 4, s{C_HB}")
    a("s_waitcnt lgkmcnt(0)")


def pre_compute(a, d):
    K = lambda e, i: TMP + 7 * e + i
    V = lambda e, r: TMP + 14 + 4 * e + r
    S = lambda e, t: TMP + 22 + 4 * e + t
    for i in range(7):
        unpack(a, K(0, i), K(1, i), KR + 4 * i + d)
    for e in (0, 1):
        unpack(a, S(e, 0), S(e, 1), TR + 4 * d + 2 * e)
        unpack(a, S(e, 2), S(e, 3), TR + 4 * d + 2 * e + 1)
    for r in range(4):
        unpack(a, V(0, r), V(1, r), VR + 4 * r + d)
    for e in (0, 1):
        for r in range(4):
            a(f"v_mul_f32 v{K(e, r)}, v{K(e, r)}, v{S(e, 3)}")
            for t in (2, 1, 0):
                a(f"v_fmac_f32 v{K(e, r)}, v{K(e, r + 3 - t)}, v{S(e, t)}")
            a(f"v_mul_f32 v{K(e, r)}, v{K(e, r)}, v{V(e, r)}")
        j = 2 * d + e
        a(f"v_cvt_pk_bf16_f32 v{RES + 2 * j}, v{K(e, 3)}, v{K(e, 2)}")
        a(f"v_cvt_pk_bf16_f32 v{RES + 2 * j + 1}, v{K(e, 1)}, v{K(e, 0)}")
        a(f"ds_write_b64 v{PA + 1}, {vr(RES + 2 * j, 2)} offset:{64 * j}")


def pre_store(a, vm):
    T = C_T
    a("s_waitcnt lgkmcnt(0)")
    for i in range(4):
        a(f"ds_read_b128 {vr(RES + 4 * i, 4)}, v{PA + 2} offset:{1056 * i}")
    a(f"s_lshl_b32 s{T}, s{C_M}, 2")
    a(f"s_add_u32 s{T}, s{T}, s{C_W}")
    a(f"s_lshl_b32 s{T}, s{T}, 6")
    a(f"s_sub_u32 s{T}, {WS_KV + 4032}, s{T}")
    a(f"s_lshl_b32 s{T + 1}, s{C_CG}, 18")
    a(f"s_add_u32 s{T}, s{T}, s{T + 1}")
    a(f"v_and_b32 v{PA + 3}, 3, v0")
    a(f"v_lshl_add_u32 v{PA + 3}, v{PA + 3}, 4, s{T}")
    a(f"v_lshrrev_b32 v{PA + 4}, 2, v0")
    a(f"v_lshl_add_u32 v{PA + 3}, v{PA + 4}, 12, v{PA + 3}")
    for i in range(4):
        a(f"s_mov_b32 s{T}, {65536 * i}")
        a(f"s_waitcnt lgkmcnt({3 - i})")
        a(f"buffer_store_dwordx4 {vr(RES + 4 * i, 4)}, v{PA + 3}, s[{C_WS}:{C_WS + 3}], s{T} offen sc1")
    vm.issue("kvst", 4)


def chan_srd(a, d, ptr, off):
    T = C_T
    a(f"s_lshl_b32 s{T}, s{C_CH}, 12")
    if off:
        a(f"s_add_u32 s{T}, s{T}, {off}")
    a(f"s_add_u32 s{d}, s{ptr}, s{T}")
    a(f"s_addc_u32 s{d + 1}, s{ptr + 1}, 0")
    a(f"s_movk_i32 s{d + 2}, 4096")
    a(f"s_mov_b32 s{d + 3}, 0x20000")


def h_loads(a, vm):
    chan_srd(a, C_A, P_H, 0)
    a(f"v_lshlrev_b32 v{CV}, 4, v0")
    a(f"v_subrev_u32 v{PA + 5}, 4, v{CV}")
    for i in range(4):
        a(f"buffer_load_dwordx4 {vr(HR + 4 * i, 4)}, v{CV}, s[{C_A}:{C_A + 3}], 0 offen offset:{1024 * i}")
    a(f"buffer_load_dword v{HR + 16}, v{PA + 5}, s[{C_A}:{C_A + 3}], 0 offen")
    for i in range(1, 4):
        a(f"buffer_load_dword v{HR + 16 + i}, v{CV}, s[{C_A}:{C_A + 3}], 0 offen offset:{1024 * i - 4}")
    vm.issue("h", 8)


def h_fill(a):
    a(f"v_add_u32 v{PA + 5}, s{C_HB}, v{CV}")
    for i in range(4):
        for e in range(4):
            prev = HR + 16 + i if e == 0 else HR + 4 * i + e - 1
            a(f"v_alignbit_b32 v{HS + 4 * i + e}, v{HR + 4 * i + e}, v{prev}, 16")
        a(f"ds_write_b128 v{PA + 5}, {vr(HR + 4 * i, 4)} offset:{64 + 1024 * i}")
        a(f"ds_write_b128 v{PA + 5}, {vr(HS + 4 * i, 4)} offset:{H_COPY + 64 + 1024 * i}")
    for e in range(4):
        a(f"v_mov_b32 v{CV + 4 + e}, 0")
    a("s_mov_b64 exec, 0xf")
    a(f"ds_write_b128 v{PA + 5}, {vr(CV + 4, 4)}")
    a(f"ds_write_b128 v{PA + 5}, {vr(CV + 4, 4)} offset:{H_COPY}")
    a("s_mov_b64 exec, -1")


def u_loads(a, vm):
    chan_srd(a, C_A, P_WS, WS_KV)
    for c in (0, 1):
        for i in range(4):
            a(f"buffer_load_dwordx4 {vr(UR + 16 * c + 4 * i, 4)}, v{CV}, s[{C_A}:{C_A + 3}], 0 offen offset:{1024 * i + 4 * c} sc1")
    vm.issue("u", 8)


def post_rows(a, vd, shift, vt):
    T = C_T
    a(f"s_lshr_b32 s{T}, s{C_M}, 2")
    a(f"s_lshl_b32 s{T}, s{T}, 9")
    a(f"s_and_b32 s{T + 1}, s{C_M}, 3")
    a(f"s_lshl_b32 s{T + 1}, s{T + 1}, 6")
    a(f"s_add_u32 s{T}, s{T}, s{T + 1}")
    a(f"s_lshl_b32 s{T + 1}, s{C_W}, 3")
    a(f"s_add_u32 s{T}, s{T}, s{T + 1}")
    a(f"v_bfe_u32 v{vt}, v0, 3, 1")
    a(f"v_lshl_add_u32 v{vd}, v{vt}, 8, s{T}")
    a(f"v_bfe_u32 v{vt}, v0, 4, 1")
    a(f"v_lshl_add_u32 v{vd}, v{vt}, 1, v{vd}")
    a(f"v_lshrrev_b32 v{vt}, 5, v0")
    a(f"v_lshl_add_u32 v{vd}, v{vt}, 5, v{vd}")
    a(f"s_lshl_b32 s{T}, s{C_CG}, 7")
    a(f"v_and_b32 v{vt}, 7, v0")
    a(f"v_lshl_add_u32 v{vt}, v{vt}, 4, s{T}")
    a(f"v_lshl_add_u32 v{vd + 1}, v{vd}, 12, v{vt}")
    a(f"v_lshl_add_u32 v{vd}, v{vd}, 11, v{vt}")


def q_loads(a, vm):
    T = C_T
    post_rows(a, CV + 1, 11, CV + 3)
    srd(a, C_B, P_Q, 4 << 20)
    a(f"s_movk_i32 s{T}, 8192")
    for i, (so, off) in enumerate((("0", 0), ("0", 2048), (f"s{T}", 0), (f"s{T}", 2048))):
        a(f"buffer_load_dwordx4 {vr(QR + 4 * i, 4)}, v{CV + 1}, s[{C_B}:{C_B + 3}], {so} offen offset:{off}")
    vm.issue("q", 4)


def u_fill(a):
    a(f"v_add_u32 v{PA + 5}, s{C_UB}, v{CV}")
    for c in (0, 1):
        for i in range(4):
            a(f"ds_write_b128 v{PA + 5}, {vr(UR + 16 * c + 4 * i, 4)} offset:{U_COPY * c + 1024 * i}")
    a("s_mov_b64 exec, 0xfffffff")
    a(f"ds_write_b128 v{PA + 5}, {vr(CV + 4, 4)} offset:4096")
    a(f"ds_write_b128 v{PA + 5}, {vr(CV + 4, 4)} offset:{U_COPY + 4096}")
    a(f"v_mov_b32 v{CV + 3}, {FLAGS}")
    a("s_mov_b64 exec, 1")
    a(f"ds_write_b128 v{CV + 3}, {vr(CV + 4, 4)}")
    a(f"ds_write_b128 v{CV + 3}, {vr(CV + 4, 4)} offset:16")
    a("s_mov_b64 exec, -1")


AA, AB = CV + 8, CV + 9


def conv_reads(s, step):
    L = []
    for j in range(8):
        i = j
        L.append(f"ds_read_b128 {vr(CBF + 32 * s + 4 * i, 4)}, v{AB} offset:{512 * (7 - i) + 64 * step}")
        for e in (0, 1):
            L.append(f"ds_read_b64 {vr(CA + 32 * s + 4 * j + 2 * e, 2)}, v{AA} offset:{512 * j + 64 * step + 8 * e}")
    return L


def conv_mfmas(s):
    return [mfma(CACC + 4 * cb, CA + 32 * s + 4 * j, CBF + 32 * s + 4 * (cb - j)) for cb in range(8) for j in range(cb + 1)]


def conv_init(a):
    T = C_T
    t = CV + 10
    a(f"v_and_b32 v{t}, 1, v0")
    a(f"v_xor_b32 v{t}, 1, v{t}")
    a(f"v_mul_u32_u24 v{AA}, {H_COPY}, v{t}")
    a(f"v_mul_u32_u24 v{AB}, {U_COPY}, v{t}")
    a(f"v_bfe_u32 v{t}, v0, 1, 3")
    a(f"v_lshl_add_u32 v{AA}, v{t}, 3, v{AA}")
    a(f"v_xor_b32 v{t}, 7, v{t}")
    a(f"v_lshl_add_u32 v{AB}, v{t}, 6, v{AB}")
    a(f"v_lshlrev_b32 v{t + 1}, 6, v{t}")
    a(f"v_lshrrev_b32 v{t}, 4, v0")
    a(f"v_lshl_add_u32 v{AA}, v{t}, 4, v{AA}")
    a(f"v_lshl_add_u32 v{AB}, v{t}, 4, v{AB}")
    a(f"s_add_u32 s{T}, s{C_HB}, 8")
    a(f"v_add_u32 v{AA}, s{T}, v{AA}")
    a(f"v_add_u32 v{AB}, s{C_UB}, v{AB}")
    a(f"v_xor_b32 v{t}, 3, v{t}")
    a(f"v_lshl_add_u32 v{t + 1}, v{t}, 4, v{t + 1}")
    a(f"v_and_b32 v{t}, 1, v0")
    a(f"v_xor_b32 v{t}, 1, v{t}")
    a(f"v_lshl_add_u32 v{t + 1}, v{t}, 2, v{t + 1}")
    a(f"v_add_u32 v{t + 1}, s{C_UB}, v{t + 1}")
    a("s_waitcnt lgkmcnt(0)")
    for cb in range(8):
        a(f"ds_read_b32 v{UR + 2 * cb}, v{t + 1} offset:{512 * (7 - cb) + 8}")
        a(f"ds_read_b32 v{UR + 2 * cb + 1}, v{t + 1} offset:{512 * (7 - cb)}")
    a(f"s_bitcmp1_b32 s{C_CH}, 0")
    a(f"s_cselect_b32 s{T}, 0, 16")
    a(f"s_lshl_b32 s{C_D}, s{C_D}, s{T}")
    a(f"s_and_b32 s{C_D}, s{C_D}, 0xffff0000")
    a("s_waitcnt lgkmcnt(0)")
    a.extend(conv_reads(0, 0))
    for cb in range(8):
        for e in (0, 1):
            unpack(a, CACC + 4 * cb + 2 * e + 1, CACC + 4 * cb + 2 * e, UR + 2 * cb + e)
        for e in range(4):
            a(f"v_mul_f32 v{CACC + 4 * cb + e}, s{C_D}, v{CACC + 4 * cb + e}")
    a("s_waitcnt lgkmcnt(0)")


def conv_loop(a):
    T = C_T
    a(f"s_mov_b32 s{T}, 3")
    a.label("L_conv")
    a.extend(weave(conv_mfmas(0), conv_reads(1, 1)))
    a("s_waitcnt lgkmcnt(0)")
    a.extend(weave(conv_mfmas(1), conv_reads(0, 2) + [f"v_add_u32 v{AA}, 128, v{AA}", f"v_add_u32 v{AB}, 128, v{AB}",
                                                      f"s_sub_u32 s{T}, s{T}, 1", f"s_cmp_lg_u32 s{T}, 0"]))
    a("s_waitcnt lgkmcnt(0)")
    a("s_cbranch_scc1 L_conv")
    a.extend(weave(conv_mfmas(0), conv_reads(1, 1)))
    a("s_waitcnt lgkmcnt(0)")


def conv_tail_setup():
    b = Asm()
    T = C_T
    t = CV + 10
    b(f"s_lshl_b32 s{T}, s{C_CG}, 18")
    b(f"s_and_b32 s{T + 1}, s{C_CH}, 63")
    b(f"s_lshl_b32 s{T + 1}, s{T + 1}, 6")
    b(f"s_add_u32 s{T}, s{T}, s{T + 1}")
    b(f"s_add_u32 s{T}, s{T}, {WS_Z}")
    b(f"v_and_b32 v{t}, 3, v0")
    b(f"v_lshl_add_u32 v{t}, v{t}, 4, s{T}")
    b(f"v_bfe_u32 v{t + 1}, v0, 2, 2")
    b(f"v_lshl_add_u32 v{t}, v{t + 1}, 14, v{t}")
    b(f"v_lshrrev_b32 v{t + 1}, 4, v0")
    b(f"v_lshl_add_u32 v{t}, v{t + 1}, 12, v{t}")
    g2_tile(b, T + 1, C_CB, T)
    wo_voffset(b, t + 1, C_CB, T, t + 2)
    srd(b, C_A, P_WO, 2 << 20)
    b(f"s_lshl_b32 s{C_WOS}, s{S_WAVE}, 18")
    b(f"s_add_u32 s{C_SIG}, s{C_CG}, {CNT_Z}")
    b(f"s_lshl_b32 s{C_SIG}, s{C_SIG}, 8")
    return [x.text for x in b.ins]


def conv_tail(a, st):
    T = C_T
    t = CV + 10
    a.extend(weave(conv_mfmas(1), conv_tail_setup()))
    P = CA
    for cb in range(8):
        a.extend(cvt2(P + 2 * cb, CACC + 4 * cb))
    for p in range(4):
        a(f"s_mov_b32 s{T}, {65536 * p}")
        a(f"buffer_store_dwordx4 {vr(P + 4 * p, 4)}, v{t}, s[{C_WS}:{C_WS + 3}], s{T} offen sc1")
    st.stamp(a)
    for grp in wo_dma(t + 1, C_A, C_HB, C_WOS):
        a.extend(grp)
    a("s_waitcnt vmcnt(16)")
    st.stamp(a)
    QU = CBF

    def between(a):
        for r in range(4):
            for d in range(4):
                unpack(a, QU + 8 * r + 2 * d, QU + 8 * r + 2 * d + 1, QR + 4 * r + d)
        a(f"s_mul_i32 s{T + 3}, s{C_W}, {POST_PITCH}")
        a(f"s_add_u32 s{T + 3}, s{T + 3}, {POST_ST}")
        a(f"v_lshrrev_b32 v{t}, 5, v0")
        a(f"v_lshl_add_u32 v{t}, v{t}, 1, v0")
        a(f"v_lshl_add_u32 v{t}, v{t}, 4, s{T + 3}")
        a(f"v_and_b32 v{t + 1}, 7, v0")
        a(f"v_mul_u32_u24 v{t + 1}, 544, v{t + 1}")
        a(f"v_lshrrev_b32 v{t + 2}, 3, v0")
        a(f"v_lshl_add_u32 v{t + 1}, v{t + 2}, 3, v{t + 1}")
        a(f"v_add_u32 v{t + 1}, s{T + 3}, v{t + 1}")
        a(f"s_lshl_b32 s{T + 3}, s{C_CG}, 4")
        a(f"s_add_u32 s{T + 3}, s{T + 3}, s{C_M}")
        a(f"s_lshl_b32 s{T + 3}, s{T + 3}, 2")
        a(f"s_add_u32 s{T + 3}, s{T + 3}, s{C_W}")
        a(f"s_lshl_b32 s{T + 3}, s{T + 3}, 12")
        a(f"s_add_u32 s{T + 3}, s{T + 3}, {WS_Z}")
        srd(a, C_B, P_OUT, 8 << 20)
        a("s_waitcnt vmcnt(0)")
        a("s_mov_b64 exec, 1")
        a(f"ds_add_u32 v{CV + 3}, v{t + 4} offset:12")

    join_signal_wait(a, CV + 3, 8, 16, C_SIG, C_SIG, t + 3, T, between)
    st.stamp(a)
    Z = CA
    for i in range(4):
        a(f"buffer_load_dwordx4 {vr(Z + 4 * i, 4)}, v{CV}, s[{C_WS}:{C_WS + 3}], s{T + 3} offen offset:{1024 * i} sc1")
    for i in range(4):
        a(f"s_waitcnt vmcnt({3 - i})")
        a(f"ds_write_b128 v{t}, {vr(Z + 4 * i, 4)} offset:{1088 * i}")
    st.stamp(a)
    a("s_waitcnt lgkmcnt(0)")
    for j in range(8):
        a(f"ds_read_b64 {vr(Z + 16 + 2 * j, 2)}, v{t + 1} offset:{64 * j}")
    ZU = CACC
    for j in range(8):
        a(f"s_waitcnt lgkmcnt({7 - j})")
        for e in (0, 1):
            unpack(a, ZU + 8 * (2 * e) + j, ZU + 8 * (2 * e + 1) + j, Z + 16 + 2 * j + e)
    for r, ro in enumerate((0, 1, 4, 5)):
        for j in range(8):
            a(f"v_mul_f32 v{ZU + 8 * r + j}, v{ZU + 8 * r + j}, v{QU + 8 * r + j}")
        for d in range(4):
            a(f"v_cvt_pk_bf16_f32 v{Z + 4 * r + d}, v{ZU + 8 * r + 2 * d}, v{ZU + 8 * r + 2 * d + 1}")
        a(f"s_mov_b32 s{T}, {4096 * ro}")
        a(f"buffer_store_dwordx4 {vr(Z + 4 * r, 4)}, v{CV + 2}, s[{C_B}:{C_B + 3}], s{T} offen")


def c_role(a, st):
    vm = Q("vmcnt", 63)
    T = C_T
    loader_setup(a)

    def issue(t):
        loader_issue(a)
        vm.issue(("S", t), NPER)

    issue(0)
    issue(1)
    c_setup(a)
    FV = PA + 6

    def sig_kv():
        skip = uid("sig")
        vm.wait(a, "init")
        a(f"s_cmp_lg_u32 s{C_W}, 0")
        a(f"s_cbranch_scc1 {skip}")
        a("s_mov_b64 exec, 1")
        spin_global(a, C_B, "0", 1, FV, T)
        a(f"v_mov_b32 v{FV}, 1")
        a(f"buffer_atomic_add v{FV}, off, s[{S_CNT}:{S_CNT + 3}], s{C_SIG} sc1")
        a("s_mov_b64 exec, -1")
        a.label(skip)

    def init_load():
        srd(a, C_B, P_DBG, 256)
        a(f"s_lshl_b32 s{C_SIG}, s{C_CG}, 8")
        a("s_mov_b64 exec, 1")
        a(f"buffer_load_dword v{FV}, off, s[{C_B}:{C_B + 3}], 0 sc1")
        a("s_mov_b64 exec, -1")
        vm.issue("init")

    def poll_load():
        a("s_mov_b64 exec, 1")
        a(f"buffer_load_dword v{FV}, off, s[{S_CNT}:{S_CNT + 3}], s{C_SIG} sc1")
        a("s_mov_b64 exec, -1")
        vm.issue("poll")

    def poll_check():
        vm.wait(a, "poll")
        a("s_mov_b64 exec, 1")
        spin_global(a, S_CNT, f"s{C_SIG}", 16, FV, T)
        a("s_mov_b64 exec, -1")

    work = {
        0: [lambda: pre_loads(a, vm)],
        2: [lambda: vm.wait(a, "kv"), lambda: pre_taps(a), lambda: pre_compute(a, 0), lambda: pre_compute(a, 1)],
        3: [lambda: pre_compute(a, 2), lambda: pre_compute(a, 3)],
        4: [lambda: h_loads(a, vm), lambda: pre_store(a, vm)],
        5: [init_load],
        6: [lambda: vm.wait(a, "h"), lambda: h_fill(a), lambda: vm.wait(a, "kvst")],
        7: [sig_kv],
        10: [poll_load],
        12: [poll_check, lambda: u_loads(a, vm)],
        13: [lambda: q_loads(a, vm)],
        14: [lambda: vm.wait(a, "u"), lambda: u_fill(a), lambda: a("s_waitcnt lgkmcnt(0)")],
        15: [lambda: conv_init(a)],
    }
    for t in range(16):
        vm.wait(a, ("S", t))
        a("s_barrier")
        st.stamp(a)
        if t + 2 < NSTAGE:
            issue(t + 2)
        for f in work.get(t, []):
            f()
    st.stamp(a)
    a("s_barrier")
    st.stamp(a)
    conv_loop(a)
    conv_tail(a, st)
    st.stamp(a)
    if st.on:
        a("s_waitcnt vmcnt(0)")
    st.flush(a, S_WG, S_WAVE)
    a("s_endpgm")


def build(stamps=False, verbose=False):
    _uid[0] = 0
    a = Asm()
    st = Stamps(stamps)
    a("s_cmp_ge_u32 s2, 256")
    a("s_cbranch_scc1 L_end")
    load_ptrs(a)
    st.start(a)
    decode_ids(a)
    a("s_waitcnt lgkmcnt(0)")
    a(f"s_cmp_lt_u32 s{S_WAVE}, 4")
    a("s_cbranch_scc1 L_grole")
    c_role(a, st)
    a.label("L_grole")
    g_role(a, st)
    a.label("L_end")
    a("s_endpgm")
    body = a.finish(verbose)
    return build_file([(NAME + "_kernel", body, 256, 512, LDS_BYTES, 256)]), a.padded


if __name__ == "__main__":
    s, p = build(stamps=True, verbose="-v" in sys.argv)
    open("fused_st.s", "w").write(s)
    s, p = build(stamps=False)
    open("fused.s", "w").write(s)
    print("padded", p)
```

```python
import re

TRANS = ("v_exp_", "v_log_", "v_rcp_", "v_rsq_", "v_sqrt_", "v_sin_", "v_cos_")


def vr(base, n=1):
    return f"v{base}" if n == 1 else f"v[{base}:{base + n - 1}]"


def sr(base, n=1):
    return f"s{base}" if n == 1 else f"s[{base}:{base + n - 1}]"


def _regs(tok):
    tok = tok.strip()
    tok = tok.replace("abs(", "").replace(")", "").replace("|", "")
    if tok.startswith("-") and len(tok) > 1 and tok[1] in "vsa":
        tok = tok[1:]
    m = re.fullmatch(r"([vsa])(\d+)", tok)
    if m:
        return [(m.group(1), int(m.group(2)))]
    m = re.fullmatch(r"([vsa])\[(\d+):(\d+)\]", tok)
    if m:
        return [(m.group(1), i) for i in range(int(m.group(2)), int(m.group(3)) + 1)]
    if tok in ("vcc", "vcc_lo", "vcc_hi"):
        return [("s", "vcc")]
    if tok in ("exec", "exec_lo", "exec_hi"):
        return [("s", "exec")]
    if tok == "m0":
        return [("s", "m0")]
    return []


class Ins:
    __slots__ = ("text", "op", "ops", "mods", "kind", "w", "r", "srcc", "srcab", "passes", "wide_store", "data",
                 "label", "target", "states", "dpp")

    def __init__(self, text):
        self.text = text
        self.label = None
        self.target = None
        self.w, self.r = set(), set()
        self.srcc, self.srcab, self.data = set(), set(), set()
        self.passes = 0
        self.wide_store = False
        self.states = 1
        self.dpp = False
        code = text.split(";")[0].strip()
        if code.endswith(":"):
            self.kind = "label"
            self.label = code[:-1]
            self.op = ""
            self.states = 0
            return
        if not code or code.startswith("."):
            self.kind = "dir"
            self.op = ""
            self.states = 0
            return
        parts = code.split(None, 1)
        self.op = op = parts[0]
        rest = parts[1] if len(parts) > 1 else ""
        toks = [t.strip() for t in rest.split(",")] if rest else []
        mods = ""
        if toks:
            last = toks[-1].split(None, 1)
            toks[-1] = last[0]
            mods = last[1] if len(last) > 1 else ""
        clean = []
        for i, t in enumerate(toks):
            sp = t.split(None, 1)
            clean.append(sp[0])
            if len(sp) > 1:
                mods = " ".join([sp[1]] + toks[i + 1:]) + " " + mods
                break
        toks = clean
        self.ops, self.mods = toks, mods
        R = [_regs(t) for t in toks]
        flat = lambda L: set(x for l in L for x in l)
        if op.startswith("v_mfma"):
            self.kind = "mfma"
            self.w = set(R[0])
            self.srcab = set(R[1]) | set(R[2])
            self.srcc = set(R[3])
            self.r = self.srcab | self.srcc
            self.passes = 8 if "32x32" in op else 4
        elif op.startswith("v_smfmac"):
            self.kind = "mfma"
            self.w = set(R[0])
            self.srcab = set(R[1]) | set(R[2]) | set(R[3])
            self.srcc = set(R[0])
            self.r = self.srcab | self.srcc
            self.passes = 8
        elif op.startswith("v_"):
            self.kind = "valu"
            self.dpp = "dpp" in op or any(k in mods for k in ("quad_perm", "row_", "wave_"))
            if op.startswith("v_permlane") and "swap" in op or op.startswith("v_swap"):
                self.w = flat(R[:2])
                self.r = flat(R[:2])
            elif op.startswith("v_cmpx"):
                self.w = set(R[0]) | {("s", "exec")}
                self.r = flat(R[1:])
            elif "_co_" in op or op.startswith("v_div_scale") or op.startswith("v_mad_u64"):
                self.w = flat(R[:2])
                self.r = flat(R[2:])
            elif op == "v_nop":
                pass
            else:
                self.w = set(R[0])
                self.r = flat(R[1:])
                if op.startswith(("v_fmac", "v_pk_fmac", "v_dot2c", "v_writelane")) or self.dpp or "sdwa" in op:
                    self.r |= set(R[0])
        elif op.startswith("ds_"):
            self.kind = "ds"
            if op.startswith(("ds_read", "ds_bpermute", "ds_permute", "ds_swizzle", "ds_append")) or "_rtn" in op:
                self.w = set(R[0])
                self.r = flat(R[1:])
                if "addtid" in op or op == "ds_append":
                    self.r.add(("s", "m0"))
            else:
                self.r = flat(R)
        elif op.startswith("buffer_") and op not in ("buffer_inv", "buffer_wbl2"):
            self.kind = "vmem"
            if op.startswith("buffer_load"):
                if re.search(r"\blds\b", mods):
                    self.r = flat(R) | {("s", "m0")}
                else:
                    self.w = set(R[0])
                    self.r = flat(R[1:])
            else:
                self.r = flat(R)
                self.data = set(R[0])
                self.wide_store = "x3" in op or "x4" in op
                if "atomic" in op and "sc0" in mods:
                    self.w = set(R[0])
        elif op.startswith(("global_", "flat_")):
            self.kind = "vmem"
            if "load_lds" in op:
                self.r = flat(R) | {("s", "m0")}
            elif "_load" in op:
                self.w = set(R[0])
                self.r = flat(R[1:])
            elif "atomic" in op and "sc0" in mods:
                self.w = set(R[0])
                self.r = flat(R[1:])
            else:
                self.r = flat(R)
                self.data = set(R[1])
                self.wide_store = "x3" in op or "x4" in op
        elif op.startswith("s_") or op.startswith("buffer_"):
            self.kind = "salu"
            if op == "s_nop":
                self.states = int(toks[0], 0) + 1
            elif op.startswith(("s_cbranch", "s_branch")):
                self.target = toks[0]
            elif op.startswith(("s_cmp", "s_waitcnt", "s_barrier", "s_endpgm", "s_setprio", "s_sleep", "buffer_",
                                "s_bitcmp", "s_setreg")):
                self.r = flat(R)
            else:
                self.w = set(R[0]) if R else set()
                self.r = flat(R[1:])
                if "saveexec" in op:
                    self.w.add(("s", "exec"))
        else:
            raise ValueError("unknown instruction: " + text)


def _vg(S):
    return {x for x in S if x[0] in "va"}


def _sg(S):
    return {x for x in S if x[0] == "s"}


def required(p, c):
    n = 0
    if p.kind == "valu":
        pv, ps = _vg(p.w), _sg(p.w)
        if c.kind == "mfma":
            if pv & c.r:
                n = max(n, 2)
            if ("s", "exec") in ps:
                n = max(n, 4)
        if c.kind == "valu":
            if c.op.startswith("v_permlane") and pv & c.r:
                n = max(n, 2)
            if c.dpp and pv & c.r:
                n = max(n, 2)
            if c.dpp and ("s", "exec") in ps:
                n = max(n, 5)
            if c.op.startswith(("v_readlane", "v_readfirstlane")) and pv & c.r:
                n = max(n, 1)
            if p.op.startswith(TRANS) and pv & c.r:
                n = max(n, 1)
            if ("sdwa" in p.op or "op_sel" in p.mods) and pv & (c.r | c.w):
                n = max(n, 1)
            if ps & c.r:
                n = max(n, 4 if c.op.startswith(("v_readlane", "v_writelane")) else 2)
            if ("s", "exec") in ps and c.op.startswith(("v_readlane", "v_readfirstlane", "v_writelane", "v_permlane")):
                n = max(n, 4)
            if p.op.startswith("v_dot") and pv & (c.r | c.w):
                n = max(n, 3)
        if c.kind == "vmem" and ps & c.r:
            n = max(n, 5)
        if c.kind == "salu" and ps & c.r:
            n = max(n, 1)
    elif p.kind == "mfma":
        big = p.passes == 8
        if c.kind == "mfma":
            if p.w & c.srcab:
                n = max(n, 12 if big else 8)
            if p.w & c.srcc and not (p.w == c.srcc and p.passes == c.passes):
                n = max(n, 10 if big else 6)
            if p.w & c.w and not (p.w == c.srcc):
                n = max(n, 12 if big else 8)
        elif c.kind in ("valu", "ds", "vmem"):
            if p.w & (c.r | c.w):
                n = max(n, 12 if big else 8)
            if c.kind == "valu" and p.srcc & c.w:
                n = max(n, 7 if big else 3)
    elif p.kind == "vmem":
        if p.wide_store and p.data & c.w:
            n = max(n, 2)
    elif p.kind == "salu":
        if ("s", "m0") in p.w and c.kind in ("vmem", "ds") and ("s", "m0") in c.r:
            n = max(n, 1)
    return n


class Asm:
    def __init__(self):
        self.ins = []

    def __call__(self, text):
        for line in text.split("\n"):
            if line.strip():
                self.ins.append(Ins(line.strip()))
        return self

    def label(self, name):
        self(name + ":")

    def extend(self, lines):
        for l in lines:
            self(l)

    def finish(self, verbose=False):
        ins = self.ins
        labels = {x.label: i for i, x in enumerate(ins) if x.kind == "label"}
        preds = [[] for _ in ins]
        for i, x in enumerate(ins):
            if x.target is not None and x.target in labels:
                preds[labels[x.target]].append(i)
            if i + 1 < len(ins) and x.op not in ("s_branch", "s_endpgm"):
                preds[i + 1].append(i)
        pad = [0] * len(ins)
        for i, c in enumerate(ins):
            if c.kind in ("label", "dir"):
                continue
            need, why = 0, None
            stack = [(j, 0) for j in preds[i]]
            seen = {}
            while stack:
                j, d = stack.pop()
                if d >= 12 or seen.get(j, 99) <= d:
                    continue
                seen[j] = d
                p = ins[j]
                if p.kind not in ("label", "dir"):
                    r = required(p, c)
                    if r - d > need:
                        need, why = r - d, p
                for k in preds[j]:
                    stack.append((k, d + p.states + pad[j]))
            if need > 0:
                pad[i] = need
                if verbose:
                    print(f"pad {need}: [{why.text}] -> [{c.text}]")
        self.padded = sum(pad)
        lines = []
        for i, x in enumerate(ins):
            if pad[i]:
                lines.append(f"    s_nop {pad[i] - 1}")
            lines.append(x.text if x.kind in ("label", "dir") else "    " + x.text)
        return "\n".join(lines) + "\n"


def weave(main, fill, start=0, per=1, step=1):
    out = []
    fi = 0
    for i, m in enumerate(main):
        out.append(m)
        if i >= start and (i - start) % step == 0:
            for _ in range(per):
                if fi < len(fill):
                    out.append(fill[fi])
                    fi += 1
    out.extend(fill[fi:])
    return out
```

```python
from asmlib import *
import os
DEV = os.path.join(os.path.dirname(os.path.abspath(__file__)), "..", "dev")

NAME = "concat_heads__ssm_conv_h3__sliding_local_dilated__prompt"

HEADER = """; Kernarg layout for this problem (96 bytes, ptrs only, base s[0:1]):
"""

P_Q, P_K, P_V, P_SH, P_H, P_D, P_X, P_W, P_WO, P_OUT, P_DBG, P_WS = [8 + 2 * i for i in range(12)]

WS_O = 0
WS_KV = 4 << 20
WS_Z = 8 << 20
WS_CNT = 12 << 20
WS_STAMP = 128 << 20

MFMA = "v_mfma_f32_16x16x32_bf16"


def mfma(d, a, b, c=None):
    cs = vr(d, 4) if c is None else (c if isinstance(c, str) else vr(c, 4))
    return f"{MFMA} {vr(d, 4)}, {vr(a, 4)}, {vr(b, 4)}, {cs}"


def load_ptrs(a):
    a("s_load_dwordx16 s[8:23], s[0:1], 0")
    a("s_load_dwordx8 s[24:31], s[0:1], 64")


def srd(a, d, ptr, nbytes, off=0):
    if off:
        a(f"s_add_u32 s{d}, s{ptr}, {off:#x}")
        a(f"s_addc_u32 s{d + 1}, s{ptr + 1}, 0")
    else:
        a(f"s_mov_b32 s{d}, s{ptr}")
        a(f"s_mov_b32 s{d + 1}, s{ptr + 1}")
    a(f"s_mov_b32 s{d + 2}, {nbytes:#x}")
    a(f"s_mov_b32 s{d + 3}, 0x20000")


class Stamps:
    def __init__(self, on):
        self.on = on

    def role(self, first_wave):
        pass

    def start(self, a):
        if self.on:
            a("s_mov_b32 s100, 0")
            a("v_mov_b32 v254, 0")
            a("v_mov_b32 v255, 0")
            self.stamp(a)

    def stamp(self, a, i=None):
        if self.on:
            a("s_memtime s[96:97]")
            a("s_memrealtime s[98:99]")
            a("s_waitcnt lgkmcnt(0)")
            a("s_mov_b32 s101, m0")
            a("s_mov_b32 m0, s100")
            a("v_writelane_b32 v254, s96, m0")
            a("v_writelane_b32 v255, s98, m0")
            a("s_mov_b32 m0, s101")
            a("s_cselect_b32 s101, 1, 0")
            a("s_add_u32 s100, s100, 1")
            a("s_cmp_lg_u32 s101, 0")

    def flush(self, a, s_wg, s_wave, vt=253):
        if not self.on:
            return
        self.stamp(a)
        a("s_mov_b64 exec, -1")
        srd(a, 92, P_WS, 256 * 8 * 512, WS_STAMP)
        a(f"s_lshl_b32 s100, s{s_wg}, 3")
        a(f"s_add_u32 s100, s100, s{s_wave}")
        a("s_lshl_b32 s100, s100, 9")
        a(f"v_mbcnt_lo_u32_b32 v253, -1, 0")
        a(f"v_mbcnt_hi_u32_b32 v253, -1, v253")
        a(f"v_lshlrev_b32 v253, 2, v253")
        a(f"buffer_store_dword v254, v253, s[92:95], s100 offen")
        a(f"buffer_store_dword v255, v253, s[92:95], s100 offen offset:256")


def kernel_begin(name):
    return f""".text
.globl {name}
.p2align 8
.type {name},@function
{name}:
"""


def kernel_desc(name, vgpr=256, sgpr=102):
    return f""".section .rodata,"a"
.p2align 6
.amdhsa_kernel {name}
  .amdhsa_next_free_vgpr {vgpr}
  .amdhsa_next_free_sgpr {sgpr}
  .amdhsa_accum_offset {min(256, (vgpr + 3) // 4 * 4)}
  .amdhsa_group_segment_fixed_size 0
  .amdhsa_kernarg_size 96
  .amdhsa_user_sgpr_count 2
  .amdhsa_user_sgpr_kernarg_segment_ptr 1
  .amdhsa_system_sgpr_workgroup_id_x 1
  .amdhsa_float_denorm_mode_32 3
.end_amdhsa_kernel
"""


def build_file(kernels):
    s = HEADER
    if len(kernels) == 1 and kernels[0][0] == NAME + "_kernel":
        n, _, g, b, l, _ = kernels[0]
        s += f"; @launch grid=({g},1,1) block=({b},1,1) lds={l}\n"
    else:
        for n, _, g, b, l, _ in kernels:
            s += f"; @launch kernel={n} grid=({g},1,1) block=({b},1,1) lds={l}\n"
    s += '.amdgcn_target "amdgcn-amd-amdhsa--gfx950"\n'
    for n, body, *_ in kernels:
        s += kernel_begin(n) + body
    for n, _, g, b, l, v in kernels:
        s += kernel_desc(n, v)
    return s


class Probe:
    on = False

    def __init__(self, wave, idx, wg=37, idx0=0):
        self.wave, self.idx, self.wg, self.n, self.idx0 = wave, idx, wg, 0, idx0

    def start(self, a):
        a("s_memrealtime s[96:97]")
        a("s_waitcnt lgkmcnt(0)")
        a("s_mov_b32 s98, s96")
        a("s_mov_b32 s92, s96")

    def role(self, first_wave):
        self.n = 0
        self.active = first_wave <= self.wave < first_wave + 4

    def stamp(self, a, i=None):
        self.n += 1
        if self.active and self.n == self.idx:
            a("s_memrealtime s[98:99]")
            a("s_waitcnt lgkmcnt(0)")
        if self.active and self.n == self.idx0:
            a("s_memrealtime s[92:93]")
            a("s_waitcnt lgkmcnt(0)")

    def flush(self, a, s_wg, s_wave, vt=253):
        if not self.active:
            return
        a("s_waitcnt vmcnt(0)")
        self.stamp(a)
        if self.wg < 256:
            a(f"s_cmp_lg_u32 s{s_wg}, {self.wg}")
            a("s_cbranch_scc1 L_probe_done")
        a(f"s_cmp_lg_u32 s{s_wave}, {self.wave}")
        a("s_cbranch_scc1 L_probe_done")
        a("s_sub_u32 s98, s98, s92")
        a("s_mul_i32 s98, s98, 10")
        a("s_add_u32 s98, s98, 10000")
        a("L_probe_loop:")
        a("s_memrealtime s[94:95]")
        a("s_waitcnt lgkmcnt(0)")
        a("s_sub_u32 s94, s94, s96")
        a("s_cmp_lt_u32 s94, s98")
        a("s_cbranch_scc1 L_probe_loop")
        a("L_probe_done:")


class LightStamps:
    on = True

    def __init__(self, op="s_memrealtime"):
        self.names = {}
        self.op = op

    def start(self, a):
        a("v_mov_b32 v255, 0")
        a(f"{self.op} s[98:99]")

    def role(self, first_wave):
        self.cur = self.names.setdefault(first_wave, ["start"])
        self.n = len(self.cur) - 1

    def stamp(self, a, name=None):
        a(f"v_writelane_b32 v255, s98, {self.n}")
        a(f"{self.op} s[98:99]")
        self.n += 1
        self.cur.append(str(name if name is not None else self.n))

    def flush(self, a, s_wg, s_wave, vt=253):
        a("s_waitcnt lgkmcnt(0)")
        self.stamp(a, "end")
        a("s_waitcnt lgkmcnt(0)")
        a(f"v_writelane_b32 v255, s98, {self.n}")
        a("s_mov_b64 exec, -1")
        srd(a, 92, P_WS, 256 * 8 * 512, WS_STAMP)
        a(f"s_lshl_b32 s100, s{s_wg}, 3")
        a(f"s_add_u32 s100, s100, s{s_wave}")
        a("s_lshl_b32 s100, s100, 9")
        a(f"v_mbcnt_lo_u32_b32 v253, -1, 0")
        a(f"v_mbcnt_hi_u32_b32 v253, -1, v253")
        a(f"v_lshlrev_b32 v253, 2, v253")
        a(f"buffer_store_dword v255, v253, s[92:95], s100 offen")
        a(f"buffer_store_dword v255, v253, s[92:95], s100 offen offset:256")


class SkewProbe:
    on = False

    def __init__(self, name0, name1):
        self.n0, self.n1 = name0, name1

    def start(self, a):
        a("s_memrealtime s[96:97]")
        a("s_waitcnt lgkmcnt(0)")
        a("s_mov_b32 s98, s96")
        a("s_mov_b32 s92, s96")

    def role(self, first_wave):
        self.active = first_wave == 0

    def stamp(self, a, name=None):
        if self.active and name == self.n1:
            a("s_memrealtime s[98:99]")
            a("s_waitcnt lgkmcnt(0)")
        if self.active and name == self.n0:
            a("s_memrealtime s[92:93]")
            a("s_waitcnt lgkmcnt(0)")

    def flush(self, a, s_wg, s_wave, vt=253):
        if not self.active:
            return
        a("s_waitcnt vmcnt(0)")
        self.stamp(a, "end")
        a(f"s_cmp_lg_u32 s{s_wave}, 0")
        a("s_cbranch_scc1 L_probe_done")
        srd(a, 64, P_DBG, 256)
        a("s_not_b32 s92, s92")
        a("v_mov_b32 v1, s98")
        a("v_mov_b32 v2, s92")
        a("s_mov_b64 exec, 1")
        a("buffer_atomic_umax v1, off, s[64:67], 0 offset:128 sc1")
        a("buffer_atomic_umax v2, off, s[64:67], 0 offset:132 sc1")
        a(f"s_cmp_lg_u32 s{s_wg}, 37")
        a("s_cbranch_scc1 L_probe_done")
        a("s_mov_b32 s98, 8000")
        a("s_mov_b32 s93, 0")
        a("L_probe_loop:")
        a("s_memrealtime s[94:95]")
        a("s_waitcnt lgkmcnt(0)")
        a("s_sub_u32 s94, s94, s96")
        a("s_cmp_lt_u32 s94, s98")
        a("s_cbranch_scc1 L_probe_loop")
        a("s_cmp_lg_u32 s93, 0")
        a("s_cbranch_scc1 L_probe_done")
        a("s_mov_b32 s93, 1")
        a("buffer_load_dwordx2 v[2:3], off, s[64:67], 0 offset:128 sc1")
        a("s_waitcnt vmcnt(0)")
        a("v_add_u32 v2, v2, v3")
        a("v_readfirstlane_b32 s98, v2")
        a("s_add_u32 s98, s98, 1")
        a("s_min_u32 s98, s98, 20000")
        a("s_mul_i32 s98, s98, 10")
        a("s_add_u32 s98, s98, 10000")
        a("s_branch L_probe_loop")
        a("L_probe_done:")
```

```python
import sys
from common import *
from ksched import *

STAGE = 41984
X_HALO, W_OFF, NSTAGE = 16384, 17408, 16
LDS_BYTES = 163840
EX = (STAGE + 36864, 3 * STAGE + 33792)
H_REG, H_PITCH, H_COPY = 3 * STAGE, 8448, 4224
U_REG, U_PITCH, U_COPY = STAGE, 9216, 4576
FLAGS = H_REG + 8400
F_GJOIN, F_GGO, F_CJOIN, F_WO2, F_CGO, F_EX, F_S15, F_AT, F_WO1, F_CD, F_GZ = 0, 4, 8, 12, 16, 20, 24, 28, 32, 36, 40
POST_ST, POST_PITCH = STAGE + 2 * U_PITCH, 4352
WS_O, WS_KV, WS_Z, WS_CNT = 0, 4 << 20, 9 << 20, 14 << 20
KVP = ZP = 4224
CNT_O, CNT_Z, NCNT = 0, 256, 512

BASE = dict(zearly=0, rev=0, stagpos=3, ctn=4, g2tail=0, park0=0, parkpre=0, alc=None, al=15, smf=1, noswap=0, wend=0, shold=0, stb0=1, cearly=0, sub=0, qtail=0, zhold=None, presample=4, park=1, parkat=(4, 2), cord=0, g2serp=0, dmod='', serp=1, kx=None, zb=0, pmap=0, wx3=1, wnt=0, xnt=0, xmod=' nt', wtmod='', cwo1=0, cpollfirst=0, sigfirst=0, wo1a=10, prio_av=2, prio_j=2, tight=1, nap=1, pd=8, nfx=1, wo2=0, wo2nap=0, prio_w2=1, zld=' sc1', uld=' sc1', zst=' sc1', kst=' sc1', zloc=0, pollfirst=1, woat=20, woatp=(40, 2), cgx=2, rep=1, holdex=0, oblds=1, debt={}, pm=4, qat=0, hold=None, latesetup=0, cst=0, ospec=0, ilv=1, wxcd=0, bpre=0, b0early=0, drain=4, rot2=4, wo0=0, depth=6, ushift=1,
            prio_g1=2, prio_c1=0, prio_cs=3, prio_at=2, prio_g2=0, prio_conv=1, prio_ct=1, prio_wo=0, wper=4, d0=6,
            nt=" nt", hmod="", ost=" nt", stagbits=1, codepf=1, tb1=None, late="wu wt wh hfill",
            sched={-1: "tb0-4|qa cinit", 1: "|tb4-8", 3: "|tb8-12@0", 4: "|tb8-12@1 sig0 sh0-4", 5: "|sig1 sh4-8", 6: "|sig2 sh8-12",
                   7: "|tb12-16@0 sig3 sh12-16", 8: "|tb12-16@1 sh16-20", 9: "|sh20-24", 10: "|sh24-28", 11: "|sh28-32",
                   13: "pld|q pchk", 14: "s15 u h ufill"})
CFG = dict(BASE)

S_WG, S_WAVE, S_PAR, S_RB, S_HP, S_T0 = 2, 3, 4, 5, 6, 7
S_CNT = 52


def wo_base(c):
    if c < 5:
        return 8192 * c
    if c < 10:
        return 2 * STAGE + 8192 * (c - 5)
    return H_REG + H_PITCH * (c - 10) if c < 14 else U_REG + U_PITCH * (c - 14)


def decode_ids(a):
    a("v_lshrrev_b32 v1, 6, v0")
    a(f"s_and_b32 s{S_PAR}, s2, 1")
    a(f"v_readfirstlane_b32 s{S_WAVE}, v1")
    a("v_and_b32 v0, 63, v0")
    a(f"s_bfe_u32 s{S_RB}, s2, 0x30003")
    a(f"s_bfe_u32 s{S_HP}, s2, 0x20001")
    a(f"s_lshr_b32 s{S_T0}, s2, 6")
    a(f"s_lshl2_add_u32 s{S_HP}, s{S_HP}, s{S_T0}")


def unpack(a, dlo, dhi, src):
    a(f"v_lshlrev_b32 v{dlo}, 16, v{src}")
    a(f"v_and_b32 v{dhi}, 0xffff0000, v{src}")


def cvt2(dst, src):
    return [f"v_cvt_pk_bf16_f32 v{dst}, v{src}, v{src + 1}", f"v_cvt_pk_bf16_f32 v{dst + 1}, v{src + 2}, v{src + 3}"]


def lds_add(a, va, vone, off):
    a("s_mov_b64 exec, 1")
    a(f"ds_add_u32 v{va}, v{vone} offset:{off}")
    a("s_mov_b64 exec, -1")


def join_signal_wait(a, va, f_join, f_go, s_sig, s_wait, vt, st, between=None, want=16, after=None, sampled=False):
    other, done = uid("jo"), uid("jd")
    a(f"v_mov_b32 v{vt + 1}, 1")
    a("s_mov_b64 exec, 1")
    a(f"ds_add_rtn_u32 v{vt}, v{va}, v{vt + 1} offset:{f_join}")
    a("s_waitcnt lgkmcnt(0)")
    a(f"v_readfirstlane_b32 s{st + 2}, v{vt}")
    a(f"s_cmp_eq_u32 s{st + 2}, 3")
    a(f"s_cbranch_scc0 {other}a")
    a("s_mov_b64 exec, 0xffff")
    a(f"v_lshlrev_b32 v{vt}, 8, v0")
    a(f"buffer_atomic_add v{vt + 1}, v{vt}, s[{S_CNT}:{S_CNT + 3}], s{s_sig} offen sc1")
    a.label(other + "a")
    a("s_mov_b64 exec, -1")
    if between:
        between(a)
    a(f"s_cmp_eq_u32 s{st + 2}, 3")
    a(f"s_cbranch_scc0 {other}")
    spin_scalar(a, S_CNT, f"s{s_wait}", 16, st, first=not sampled)
    a(f"v_mov_b32 v{vt}, 16")
    lds_add(a, va, vt, f_go)
    if want == 16 and not after:
        a(f"s_branch {done}")
    a.label(other)
    if after:
        after(a)
    spin_lds(a, va, f_go, want, vt, st)
    a.label(done)


TV = 251
TS = 88


def touch_setup(a, t=90):
    a(f"s_lshr_b32 s{t}, s2, 3")
    a(f"s_and_b32 s{t + 1}, s{S_WAVE}, 3")
    a(f"s_lshl2_add_u32 s{t}, s{t}, s{t + 1}")
    a(f"s_and_b32 s{t + 1}, s2, 6")
    a(f"s_lshl3_add_u32 s{TS}, s{t}, s{t + 1}")
    a(f"s_lshl1_add_u32 s{TS}, s{TS}, s{S_PAR}")
    a(f"s_lshl_b32 s{TS}, s{TS}, 11")
    a(f"s_and_b32 s{TS + 1}, s2, 7")
    a(f"s_and_b32 s{t + 1}, s{t}, 1")
    a(f"s_lshl1_add_u32 s{TS + 1}, s{TS + 1}, s{t + 1}")
    a(f"s_lshr_b32 s{t}, s{t}, 1")
    a(f"s_mul_i32 s{t}, s{t}, 48")
    a(f"s_add_u32 s{TS + 1}, s{TS + 1}, s{t}")
    a(f"s_lshl_b32 s{TS + 1}, s{TS + 1}, 7")
    a(f"v_and_b32 v{TV}, 1, v0")
    a(f"v_lshlrev_b32 v{TV}, 12, v{TV}")
    a(f"v_lshrrev_b32 v{TV + 1}, 1, v0")
    a(f"v_lshl_add_u32 v{TV}, v{TV + 1}, 7, v{TV}")
    a(f"v_lshrrev_b32 v{TV - 1}, 2, v0")
    a(f"v_mul_u32_u24 v{TV - 1}, {64 * 6144}, v{TV - 1}")
    a(f"v_and_b32 v{TV + 1}, 3, v0")
    a(f"v_lshl_add_u32 v{TV + 1}, v{TV + 1}, 11, v{TV - 1}")


def touch_batch(a, vm, s0, s1, sx, sw):
    mx = sum(3 << (2 * i) for i in range(s0, s1))
    mw = sum(7 << (4 * i) for i in range(s0, s1))
    wm = " nt" if s0 < CFG["wnt"] else ""
    a(f"s_mov_b32 exec_lo, {mw & 0xffffffff:#x}")
    a(f"s_mov_b32 exec_hi, {mw >> 32:#x}")
    a(f"buffer_load_dword v{TV - 1}, v{TV + 1}, s[{sw}:{sw + 3}], s{TS + 1} offen{wm}")
    if CFG["wx3"]:
        skip = uid("wx3")
        a.ins.pop()
        a(f"s_bfe_u32 s{S_T0}, s{TS + 1}, 0x30007")
        a(f"s_cmp_lg_u32 s{S_T0}, 1")
        a(f"s_cbranch_scc1 {skip}")
        a(f"buffer_load_dword v{TV - 1}, v{TV + 1}, s[{sw}:{sw + 3}], s{TS + 1} offen offset:256")
        a.label(skip)
        a(f"buffer_load_dword v{TV - 1}, v{TV + 1}, s[{sw}:{sw + 3}], s{TS + 1} offen")
    if CFG["wxcd"]:
        a(f"s_xor_b32 s{TS + 1}, s{TS + 1}, 256")
        a(f"buffer_load_dword v{TV - 1}, v{TV + 1}, s[{sw}:{sw + 3}], s{TS + 1} offen{wm}")
        a(f"s_xor_b32 s{TS + 1}, s{TS + 1}, 256")
    a(f"s_mov_b32 exec_lo, {mx:#x}")
    a("s_mov_b32 exec_hi, 0")
    xx = s0 < CFG["xnt"]
    for k in range(4 if xx else 1):
        a(f"buffer_load_dword v{TV - 1}, v{TV}, s[{sx}:{sx + 3}], s{TS} offen{CFG['xmod'] if xx else ''}")
        if xx:
            a(f"s_xor_b32 s{TS}, s{TS}, {(8192, 16384, 8192, 16384)[k]}")
    a("s_mov_b64 exec, -1")
    vm.issue("tb", 2 + CFG["wxcd"] + 3 * xx)


def ctouch_setup(a):
    n = CFG["ctn"]
    a(f"s_lshr_b32 s{S_T0}, s2, 6")
    a(f"s_mul_i32 s90, s{S_T0}, {256 * 4096}")
    a(f"s_sub_u32 s{TS}, s{TS}, s90")
    a(f"s_mul_i32 s90, s{S_T0}, {16 * 6144}")
    a(f"s_sub_u32 s{TS + 1}, s{TS + 1}, s90")
    a(f"v_lshrrev_b32 v20, 3, v0")
    a(f"v_mul_u32_u24 v20, {256 * 4096 - 4 * 128}, v20")
    a(f"v_add_u32 v{TV}, v{TV}, v20")
    a(f"v_lshrrev_b32 v20, 4, v0")
    a(f"v_mul_u32_u24 v20, {4 * 64 * 6144 - 16 * 6144}, v20")
    a(f"v_sub_u32 v{TV + 1}, v{TV + 1}, v20")


def ctouch(a, vm, s0, n, sx, sw):
    mx = sum(((1 << (2 * n)) - 1) << (8 * k) for k in range(4))
    mw = sum(7 << (16 * k + 4 * i) for k in range(4) for i in range(n))
    skip = uid("wx3")
    a(f"s_add_u32 s{S_T0 - 1}, s{TS + 1}, {64 * 6144 * s0}")
    a(f"s_mov_b32 exec_lo, {mw & 0xffffffff:#x}")
    a(f"s_mov_b32 exec_hi, {mw >> 32:#x}")
    a(f"s_bfe_u32 s{S_T0}, s{TS + 1}, 0x30007")
    a(f"s_cmp_lg_u32 s{S_T0}, 1")
    a(f"s_cbranch_scc1 {skip}")
    a(f"buffer_load_dword v{TV - 1}, v{TV + 1}, s[{sw}:{sw + 3}], s{S_T0 - 1} offen offset:256")
    a.label(skip)
    a(f"buffer_load_dword v{TV - 1}, v{TV + 1}, s[{sw}:{sw + 3}], s{S_T0 - 1} offen")
    a(f"s_mov_b32 exec_lo, {mx:#x}")
    a("s_mov_b32 exec_hi, 0")
    a(f"buffer_load_dword v{TV - 1}, v{TV}, s[{sx}:{sx + 3}], s{TS} offen offset:{128 * s0}")
    a("s_mov_b64 exec, -1")
    vm.issue("tb", 2)


GP_K, GP_V, GP_TU, GP_T, GP_TR, GP_U, GP_A = 108, 136, 152, 4, 36, 184, 230
GP_S1, GP_S2, GP_S3, GP_TG, GP_TN, GP_LB, GP_X = 72, 76, 80, 84, 85, 86, 87


def gpre_addr(a):
    A, T = GP_A, GP_X
    pre_tile(a, GP_TG, GP_TN, S_WAVE, T)
    a(f"s_mul_i32 s{GP_LB}, s{S_WAVE}, {H_PITCH}")
    a(f"s_add_u32 s{GP_LB}, s{GP_LB}, {H_REG}")
    a(f"s_lshl_b32 s{T}, s{GP_TN}, 9")
    a(f"s_add_u32 s{T}, s{T}, s{GP_TG}")
    a(f"s_lshl_b32 s{T}, s{T}, 7")
    a(f"v_and_b32 v{A + 1}, 7, v0")
    a(f"v_lshl_add_u32 v{A + 1}, v{A + 1}, 4, s{T}")
    a(f"v_lshrrev_b32 v{A}, 3, v0")
    a(f"v_lshl_add_u32 v{A}, v{A}, 13, v{A + 1}")
    for i in range(3):
        a(f"v_subrev_u32 v{A + 1 + i}, {2048 * (3 - i)}, v{A}")
    a(f"v_add_u32 v{A + 4}, 4096, v{A}")
    a(f"v_lshlrev_b32 v{A + 5}, 4, v0")
    a(f"s_lshl_b32 s{T}, s{GP_TG}, 9")
    a(f"s_add_u32 m0, s{GP_LB}, 4224")


def gpre_loads(a, vm):
    A, nt = GP_A, CFG["nt"]
    srd(a, GP_S3, P_SH, 8192)
    srd(a, GP_S1, P_K, 4 << 20)
    a("s_mov_b32 exec_hi, 0")
    a(f"buffer_load_dwordx4 v{A + 5}, s[{GP_S3}:{GP_S3 + 3}], s{GP_X} offen lds")
    a("s_mov_b64 exec, -1")
    vm.issue("taps")
    rows = [(A + 1, 0), (A + 2, 0), (A + 3, 0), (A, 0), (A, 2048), (A + 4, 0), (A + 4, 2048)]
    for i, (va, off) in enumerate(rows):
        a(f"buffer_load_dwordx4 {vr(GP_K + 4 * i, 4)}, v{va}, s[{GP_S1}:{GP_S1 + 3}], 0 offen offset:{off}{nt}")
        vm.issue(("k", i))
    srd(a, GP_S2, P_V, 4 << 20)
    for i, (va, off) in enumerate(rows[3:]):
        a(f"buffer_load_dwordx4 {vr(GP_V + 4 * i, 4)}, v{va}, s[{GP_S2}:{GP_S2 + 3}], 0 offen offset:{off}{nt}")
        vm.issue(("v", i))


def gpre_compute(a, vm, st):
    A, T = GP_A, GP_X
    a(f"v_and_b32 v{A + 1}, 7, v0")
    a(f"v_lshl_add_u32 v{A}, v{A + 1}, 6, s{GP_LB}")
    a(f"v_mul_u32_u24 v{A + 1}, 528, v{A + 1}")
    a(f"v_lshrrev_b32 v{A + 2}, 3, v0")
    a(f"v_xor_b32 v{A + 2}, 7, v{A + 2}")
    a(f"v_lshl_add_u32 v{A + 1}, v{A + 2}, 3, v{A + 1}")
    a(f"v_add_u32 v{A + 1}, s{GP_LB}, v{A + 1}")
    if not CFG["cst"]:
        kvt_addr(a, A + 2, GP_LB, GP_TG, GP_TN, T, GP_S3)
    vm.wait(a, "taps")
    for d in range(4):
        a(f"ds_read_b128 {vr(GP_TR + 4 * d, 4)}, v{A} offset:{4224 + 16 * d}")
    for d in range(4):
        a(f"s_waitcnt lgkmcnt({3 - d})")
        for e in (0, 1):
            for h in (0, 1):
                unpack(a, GP_TU + 8 * d + 4 * h + e, GP_TU + 8 * d + 4 * h + 2 + e, GP_TR + 4 * d + 2 * e + h)
    for i in range(0, 16, 2):
        a(f"v_mov_b64 v[{GP_TR + i}:{GP_TR + i + 1}], 0")
    p = lambda r: vr(r, 2)
    for i in range(7):
        vm.wait(a, ("k", i))
        for d in range(4):
            unpack(a, GP_U + 2 * d, GP_U + 2 * d + 1, GP_K + 4 * i + d)
        for r in range(4):
            t = r + 3 - i
            if 0 <= t <= 3:
                for d in range(4):
                    acc = p(GP_T + 8 * d + 2 * r)
                    if t == 3:
                        a(f"v_pk_mul_f32 {acc}, {p(GP_U + 2 * d)}, {p(GP_TU + 8 * d + 2 * t)}")
                    else:
                        a(f"v_pk_fma_f32 {acc}, {p(GP_U + 2 * d)}, {p(GP_TU + 8 * d + 2 * t)}, {acc}")
    st.stamp(a, "kdone")
    for r in range(4):
        vm.wait(a, ("v", r))
        for d in range(4):
            unpack(a, GP_U + 2 * d, GP_U + 2 * d + 1, GP_V + 4 * r + d)
        for d in range(4):
            acc = p(GP_T + 8 * d + 2 * r)
            a(f"v_pk_mul_f32 {acc}, {acc}, {p(GP_U + 2 * d)}")
    R = GP_K
    for j in range(8):
        t = GP_T + 8 * (j >> 1) + (j & 1)
        a(f"v_cvt_pk_bf16_f32 v{R + 2 * j}, v{t + 6}, v{t + 4}")
        a(f"v_cvt_pk_bf16_f32 v{R + 2 * j + 1}, v{t + 2}, v{t}")
        a(f"ds_write_b64 v{A + 1}, {vr(R + 2 * j, 2)} offset:{64 * j}")
    if not CFG["cst"]:
        kvt_read(a, A + 2, A + 4 if CFG["stb0"] else GP_TU)
    for i in range(0, 32, 2):
        a(f"v_mov_b64 v[{GP_T + i}:{GP_T + i + 1}], 0")
    st.stamp(a, "vdone")
    a("s_waitcnt lgkmcnt(0)")
    if not CFG["cst"] and not CFG["stb0"]:
        kvt_store(a, A + 2, GP_TU, T, GP_S3)


def pre_tile(a, tg, tn, w, t):
    pm = CFG["pm"]
    if pm == 4:
        a(f"s_and_b32 s{tg}, s2, 3")
        if CFG["pmap"]:
            a(f"s_lshl_b32 s{tg}, s{tg}, 1")
            a(f"s_lshr_b32 s{tg}, 0x8d, s{tg}")
            a(f"s_and_b32 s{tg}, s{tg}, 3")
        a(f"s_lshl2_add_u32 s{tg}, s{tg}, s{w}")
        a(f"s_lshr_b32 s{tn}, s2, 2")
    else:
        a(f"s_and_b32 s{tg}, s2, 7")
        a(f"s_lshr_b32 s{t}, s{w}, 1")
        a(f"s_lshl1_add_u32 s{tg}, s{tg}, s{t}")
        a(f"s_lshr_b32 s{tn}, s2, 3")
        a(f"s_and_b32 s{t}, s{w}, 1")
        a(f"s_lshl1_add_u32 s{tn}, s{tn}, s{t}")


def kvt_addr(a, A, lb, tg, tn, T, sd):
    a(f"v_lshrrev_b32 v{A}, 5, v0")
    a(f"v_add_u32 v{A}, v0, v{A}")
    a(f"v_lshl_add_u32 v{A}, v{A}, 4, s{lb}")
    a(f"s_mul_i32 s{T}, s{tg}, {KVP}")
    a(f"s_sub_u32 s{T}, s{T}, s{tn}")
    a(f"s_lshl_b32 s{T}, s{T}, 6")
    a(f"s_add_u32 s{T}, s{T}, 4032")
    a(f"v_and_b32 v{A + 1}, 3, v0")
    a(f"v_lshl_add_u32 v{A + 1}, v{A + 1}, 4, s{T}")
    a(f"v_lshrrev_b32 v{A + 2}, 2, v0")
    a(f"v_mul_u32_u24 v{A + 2}, {KVP}, v{A + 2}")
    a(f"v_add_u32 v{A + 1}, v{A + 1}, v{A + 2}")
    srd(a, sd, P_WS, 1024 * KVP, WS_KV)


def kvt_read(a, A, R):
    for i in range(4):
        a(f"ds_read_b128 {vr(R + 4 * i, 4)}, v{A} offset:{1056 * i}")


def kvt_store(a, A, R, T, sd):
    for i in range(4):
        a(f"s_mov_b32 s{T}, {16 * KVP * i}")
        a(f"buffer_store_dwordx4 {vr(R + 4 * i, 4)}, v{A + 1}, s[{sd}:{sd + 3}], s{T} offen{CFG['kst']}")


ACC = 4
accQ = lambda b, d: ACC + 4 * (2 * b + d)
accK = lambda b, d: ACC + 32 + 4 * (2 * b + d)
accV = lambda b, d: ACC + 64 + 4 * (2 * b + d)
ACC_KH, ACC_VH = ACC + 96, ACC + 100
FR = 108


def frX(s, b):
    if CFG["smf"]:
        return FR + 32 if b == 4 else FR + 56 * s + 4 * b
    return FR + 44 * s + 4 * b


def frW(s, part, d):
    if CFG["smf"]:
        if part and not d:
            return FR + 40 + 8 * (part - 1) + 4 * s
        return FR + 56 * s + 16 + 4 * (d if part == 0 else part + 1)
    return FR + 44 * s + 20 + 4 * (2 * part + d)


SIDX = 202
AD = 196
G_HH, G_HALF, G_BUF, G_DELTA, G_CNT, G_T = 32, 33, 34, 35, 36, 37
GV_O, GV_OUT, GV_WO, GV_FL, GV_RD = 224, 226, 227, 228, 229


def compute_setup(a):
    a(f"s_lshr_b32 s{G_HH}, s{S_WAVE}, 1")
    a(f"s_and_b32 s{G_HALF}, s{S_WAVE}, 1")
    a("v_and_b32 v1, 15, v0")
    a("v_lshrrev_b32 v2, 4, v0")
    a("v_lshrrev_b32 v3, 1, v1")
    a("v_xor_b32 v3, v2, v3")
    a("v_lshlrev_b32 v3, 4, v3")
    a(f"v_lshl_add_u32 v3, v1, 7, v3")
    a(f"s_lshl_b32 s{G_T}, s{G_HALF}, 13")
    a(f"v_add_u32 v{AD}, s{G_T}, v3")
    a(f"v_xor_b32 v{AD + 1}, 64, v{AD}")
    if CFG["smf"]:
        a(f"v_and_b32 v{AD + 2}, 7, v1")
        a("v_lshlrev_b32 v3, 1, v2")
        a(f"v_xor_b32 v3, v3, v{AD + 2}")
        a("v_lshlrev_b32 v3, 4, v3")
        a(f"v_lshl_add_u32 v3, v{AD + 2}, 7, v3")
        a(f"v_lshrrev_b32 v{SIDX}, 3, v1")
        a(f"v_lshl_add_u32 v3, v{SIDX}, 2, v3")
        a(f"v_add_u32 v{AD + 2}, {X_HALO}, v3")
        a(f"v_xor_b32 v{AD + 3}, 16, v{AD + 2}")
        a(f"v_mul_u32_u24 v{SIDX}, 0xaaaa, v{SIDX}")
        a(f"v_add_u32 v{SIDX}, 0x4444, v{SIDX}")
    else:
        a("v_and_b32 v3, 6, v1")
        a("v_xor_b32 v3, v2, v3")
        a("v_lshlrev_b32 v3, 4, v3")
        a(f"v_and_b32 v{AD + 2}, 7, v1")
        a(f"v_lshl_add_u32 v3, v{AD + 2}, 7, v3")
        a(f"v_add_u32 v{AD + 2}, {X_HALO}, v3")
        a(f"v_xor_b32 v{AD + 3}, 64, v{AD + 2}")
    a("v_bfe_u32 v3, v0, 2, 2")
    a(f"v_lshl_add_u32 v{AD + 4}, v2, 3, v3")
    a(f"v_lshlrev_b32 v{AD + 4}, 7, v{AD + 4}")
    a("v_bfe_u32 v3, v0, 3, 2")
    a(f"v_xor_b32 v3, s{S_WAVE}, v3")
    a(f"v_lshl_add_u32 v{AD + 4}, v3, 5, v{AD + 4}")
    a("v_and_b32 v3, 3, v0")
    a(f"v_lshl_add_u32 v{AD + 4}, v3, 3, v{AD + 4}")
    a(f"v_add_u32 v{AD + 4}, {W_OFF}, v{AD + 4}")
    a(f"v_xor_b32 v{AD + 5}, 32, v{AD + 4}")
    for i in range(48, 104, 2):
        a(f"v_mov_b64 v[{ACC + i}:{ACC + i + 1}], 0")
    a(f"s_mov_b32 s{G_BUF}, 0")
    a(f"v_mov_b32 v{GV_FL}, {FLAGS}")


def reads(s, ks):
    def rx(b):
        if b == 4:
            return f"ds_read_b128 {vr(frX(s, 4), 4)}, v{AD + 2 + ks}"
        return f"ds_read_b128 {vr(frX(s, b), 4)}, v{AD + ks} offset:{2048 * b}"

    def rw(part, d):
        return [f"ds_read_b64_tr_b16 {vr(frW(s, part, d) + 2 * j, 2)}, v{AD + 4 + d} offset:{8192 * part + 4096 * ks + 512 * j}"
                for j in (0, 1)]
    halo = [rx(4)]
    if CFG["smf"]:
        halo = [f"ds_read2_b32 {vr(frX(s, 4) + 2 * j, 2)}, v{AD + 2 + j} offset1:2" for j in (0, 1)] if ks else []
    return [rx(0)] + rw(0, 0) + [rx(1)] + rw(0, 1) + [rx(2)] + rw(1, 0) + [rx(3)] + rw(1, 1) + halo + rw(2, 0) + rw(2, 1)


mQ = lambda s, b, d: mfma(accQ(b, d), frW(s, 0, d), frX(s, b))
mK = lambda s, b, d: mfma(accK(b, d), frW(s, 1, d), frX(s, b))
mV = lambda s, b, d: mfma(accV(b, d), frX(s, b), frW(s, 2, d))
mKH = lambda s: mfma(ACC_KH, frW(s, 1, 0), frX(s, 4))
mVH = lambda s: mfma(ACC_VH, frX(s, 4), frW(s, 2, 0))


smf = lambda acc, part: f"v_smfmac_f32_16x16x64_bf16 {vr(acc, 4)}, {vr(frX(0, 4), 4)}, {vr(frW(0, part, 0), 8)}, v{SIDX}"


def mfmas(s):
    R = range(4)
    if CFG["smf"]:
        Rr = (3, 2, 1, 0)
        return ([mQ(s, b, 0) for b in R] + [mQ(s, b, 1) for b in Rr] + [mK(s, b, 1) for b in R] + [mK(s, b, 0) for b in Rr] +
                [mV(s, b, 0) for b in R] + [mV(s, b, 1) for b in Rr])
    if CFG["serp"] == 2:
        W4 = [(mQ, 0), (mQ, 1), (mK, 1), (mK, 0)]
        L = [f(s, b, d) for b in (1, 2, 3) for f, d in (W4 if b % 2 == 0 else W4[::-1])]
        L = [f(s, 0, d) for f, d in W4] + L
        return L[:4] + [mKH(s)] + L[4:] + [mV(s, b, d) for b in (3, 2, 1, 0) for d in ((0, 1) if b % 2 else (1, 0))] + [mVH(s)]
    if CFG["serp"]:
        Rr = (3, 2, 1, 0)
        return ([mQ(s, b, 0) for b in R] + [mQ(s, b, 1) for b in Rr] + [mK(s, b, 1) for b in R] + [mK(s, b, 0) for b in Rr] + [mKH(s)] +
                [mVH(s)] + [mV(s, b, 0) for b in R] + [mV(s, b, 1) for b in Rr])
    return ([mQ(s, b, 0) for b in R] + [mQ(s, b, 1) for b in R] + [mK(s, b, 0) for b in R] + [mKH(s)] +
            [mK(s, b, 1) for b in R] + [mV(s, b, 0) for b in R] + [mVH(s)] + [mV(s, b, 1) for b in R])


def compute_loop(a):
    a(f"s_mov_b32 s{G_T}, {STAGE}")
    a(f"s_mov_b32 s{G_CNT}, {NSTAGE - 1}")
    a("s_barrier")
    a.extend(reads(0, 0))
    if CFG["stb0"]:
        kvt_store(a, GP_A + 2, GP_A + 4, GP_X, GP_S3)
    if CFG["al"] is not None:
        a("s_branch L_g1_head")
        a(".p2align 6")
        a.label("L_g1_head")
    a("s_waitcnt lgkmcnt(0)")
    a.label("L_g1_loop")
    m0 = mfmas(0)
    fill = reads(1, 1) + [f"ds_read_b32 v1, v{GV_FL} offset:{F_S15}",
                          f"s_add_u32 s{G_BUF}, s{G_BUF}, {STAGE}",
                          f"s_cmp_eq_u32 s{G_BUF}, {3 * STAGE}",
                          f"s_cselect_b32 s{G_DELTA}, {-2 * STAGE}, s{G_T}",
                          f"s_cselect_b32 s{G_BUF}, 0, s{G_BUF}",
                          f"s_bitcmp1_b32 {(1 << 1) | (1 << (NSTAGE - CFG['drain'])):#x}, s{G_CNT}"]
    if CFG["rev"]:
        a.ins[[i for i, x in enumerate(a.ins) if x.text == f"s_mov_b32 s{G_T}, {STAGE}"][-1]] = Ins(f"s_mov_b32 s{G_T}, {-STAGE}")
        fill = reads(1, 1) + [f"s_cmp_eq_u32 s{G_BUF}, 0",
                              f"s_cselect_b32 s{G_DELTA}, {2 * STAGE}, s{G_T}",
                              f"s_add_u32 s{G_BUF}, s{G_BUF}, s{G_DELTA}",
                              f"s_cmp_eq_u32 s{G_CNT}, {NSTAGE - CFG['drain']}"]
    adds = [f"v_add_u32 v{AD + i}, s{G_DELTA}, v{AD + i}" for i in range(6)]
    m1 = mfmas(1)
    fill1 = reads(0, 0) + [f"s_sub_u32 s{G_CNT}, s{G_CNT}, 1", f"s_cmp_lg_u32 s{G_CNT}, 0"]
    if CFG["smf"]:
        a.extend(weave(m0[:16], fill[:16]))
        a.extend(weave(m0[16:23], fill[16:] + adds, per=2))
        a(m0[23])
        a("s_waitcnt lgkmcnt(0)")
        if CFG["smf"] == 2:
            a(m1.pop(0))
            m1 = [smf(ACC_KH, 1)] + m1[:2] + [smf(ACC_VH, 2)] + m1[2:]
        elif CFG["smf"] == 3:
            a(smf(ACC_KH, 1))
            m1 = m1[:1] + [smf(ACC_VH, 2)] + m1[1:]
        else:
            a(smf(ACC_KH, 1))
            a(smf(ACC_VH, 2))
        a("s_cbranch_scc1 L_g1_rare")
        a.label("L_g1_bar")
        a("s_barrier")
        a.label("L_g1_nobar")
        a.extend(weave(m1[:-1], fill1))
        a("s_waitcnt lgkmcnt(0)")
        a(m1[-1])
    elif CFG["tight"]:
        k = CFG["tight"]
        a.extend(weave(m0[:18], fill[:18]))
        a.extend(weave(m0[18:24], fill[18:] + adds, per=2))
        a(m0[24])
        a("s_waitcnt lgkmcnt(0)")
        a(m0[25])
        a.extend(m1[:k - 1])
        a("s_cbranch_scc1 L_g1_rare")
        a.label("L_g1_bar")
        a("s_barrier")
        a.label("L_g1_nobar")
        a.extend(weave(m1[k - 1:25], fill1))
        a("s_waitcnt lgkmcnt(0)")
        a(m1[25])
    else:
        a.extend(weave(m0[:23], fill))
        a("s_waitcnt lgkmcnt(0)")
        a.extend(weave(m0[23:], adds, per=2))
        a("s_cbranch_scc1 L_g1_rare")
        a.label("L_g1_bar")
        a("s_barrier")
        a.label("L_g1_nobar")
        a.extend(weave(m1, fill1))
        a("s_waitcnt lgkmcnt(0)")
    a("s_cbranch_scc1 L_g1_loop")
    a.extend(weave(mfmas(0), reads(1, 1)))
    a("s_waitcnt lgkmcnt(0)")


def compute_rare(a):
    a.label("L_g1_rare")
    a("s_waitcnt vmcnt(0)")
    if CFG["rev"]:
        a("s_branch L_g1_bar")
        return
    a(f"s_cmp_lg_u32 s{G_CNT}, 1")
    a("s_cbranch_scc1 L_g1_bar")
    spin_lds(a, GV_FL, F_S15, 4, 1, G_T + 1, first=False)
    a("s_branch L_g1_nobar")


QF = FR
KF = FR + 16
HX = FR + 36
VF = 230
MC, MP, MP0 = 204, 208, 212
BC = 216
OA = 218
EXW, EXW3, EXR, EXK = 219, 220, 221, 203
G_SRDO = 40


def attn_setup(a):
    a("v_and_b32 v1, 15, v0")
    a("v_lshrrev_b32 v2, 4, v0")
    a("v_lshlrev_b32 v2, 2, v2")
    a("v_sub_u32 v1, v1, v2")
    a(f"s_mov_b32 s{G_T}, 0xf149f2ca")
    a(f"v_mov_b32 v3, s{G_T}")
    a(f"s_or_b32 s{G_T + 1}, s{S_RB}, s{G_HALF}")
    a(f"s_cmp_eq_u32 s{G_T + 1}, 0")
    a(f"s_cselect_b32 s{G_T + 1}, s{G_T}, 0")
    for i in range(4):
        a(f"v_subrev_u32 v2, {i}, v1")
        a("v_cmp_gt_u32 vcc, 8, v2")
        a("v_cmp_gt_i32 s[64:65], -8, v2")
        a("v_ashrrev_i32 v2, 31, v2")
        a(f"v_cndmask_b32 v{MC + i}, v3, 0, vcc")
        a(f"v_cndmask_b32 v{MP + i}, v3, 0, s[64:65]")
        if i & 1:
            a(f"v_alignbit_b32 v{BC + (i >> 1)}, v2, v{BC + (i >> 1)}, 16")
        else:
            a(f"v_mov_b32 v{BC + (i >> 1)}, v2")
        a(f"v_min_f32 v{MP0 + i}, s{G_T + 1}, v{MP + i}")
    a(f"s_mul_i32 s{G_T}, s{G_HH}, {EX[1] - EX[0]}")
    a(f"s_add_u32 s{G_T}, s{G_T}, {EX[0]}")
    a(f"v_lshl_add_u32 v{EXW3}, v0, 3, s{G_T}")
    a(f"s_lshl_b32 s{G_T + 1}, s{G_HALF}, 9")
    a(f"v_add_u32 v{EXW}, s{G_T + 1}, v{EXW3}")
    if CFG["smf"]:
        a(f"s_add_u32 s{G_T + 1}, s{G_T + 1}, s{G_T}")
        a("v_and_b32 v1, 3, v0")
        a(f"v_lshl_add_u32 v1, v1, 1, s{G_T + 1}")
        a("v_bfe_u32 v2, v0, 2, 2")
        a("v_lshl_add_u32 v1, v2, 7, v1")
        a("v_lshrrev_b32 v2, 4, v0")
        a("v_xor_b32 v2, 2, v2")
        a(f"v_lshl_add_u32 v{EXK}, v2, 5, v1")
    a(f"s_mul_i32 s{G_T + 1}, s{G_HALF}, {2048 + 512}")
    a(f"v_add_u32 v{EXR}, s{G_T + 1}, v{EXW3}")
    a(f"v_xor_b32 v{EXR + 1}, 512, v{EXR}")
    a(f"s_lshl3_add_u32 s{G_T}, s{S_PAR}, s{S_RB}")
    a(f"s_lshl1_add_u32 s{G_T}, s{G_T}, s{G_HALF}")
    a(f"s_lshl_b32 s{G_T}, s{G_T}, 7")
    a(f"s_lshl1_add_u32 s{G_T + 1}, s{S_HP}, s{G_HH}")
    a(f"s_add_u32 s{G_T}, s{G_T}, s{G_T + 1}")
    a(f"s_lshl_b32 s{G_T}, s{G_T}, 10")
    a(f"v_lshl_add_u32 v{OA}, v0, 4, s{G_T}")
    srd(a, G_SRDO, P_WS, 4 << 20, WS_O)


def xreduce(a, op, r):
    a(f"v_permlane32_swap_b32 v{r[2]}, v{r[3]}")
    a(f"v_permlane32_swap_b32 v{r[0]}, v{r[1]}")
    a(f"{op} v{r[2]}, v{r[2]}, v{r[3]}")
    a(f"{op} v{r[0]}, v{r[0]}, v{r[1]}")
    a(f"v_permlane16_swap_b32 v{r[0]}, v{r[2]}")
    a(f"{op} v{r[0]}, v{r[0]}, v{r[2]}")


def xbroadcast(a, r):
    a(f"v_permlane16_swap_b32 v{r[0]}, v{r[2]}")
    a(f"v_mov_b32 v{r[1]}, v{r[0]}")
    a(f"v_mov_b32 v{r[3]}, v{r[2]}")
    a(f"v_permlane32_swap_b32 v{r[0]}, v{r[1]}")
    a(f"v_permlane32_swap_b32 v{r[2]}, v{r[3]}")


def attention(a, st):
    kf = lambda b: KF + 4 * (b + 1)
    vf = lambda d, b: VF + 10 * d + 2 * (b + 1)
    Sc = lambda b: accQ(b, 0)
    Sp = lambda b: accQ(b, 1)
    D = (0, 1)
    pub3 = ([f"s_cmp_eq_u32 s{G_HALF}, 0\ns_cbranch_scc0 L_at_nopub\n" +
             "\n".join(f"ds_write_b64 v{EXW3}, {vr(kf(3) + 2 * d, 2)} offset:{2048 + 512 * d}\n"
                       f"ds_write_b64 v{EXW3}, {vr(vf(d, 3), 2)} offset:{2048 + 1024 + 512 * d}" for d in D) +
             f"\nL_at_nopub:\ns_mov_b64 exec, 1\nds_add_u32 v{GV_FL}, v2 offset:{F_EX}\ns_mov_b64 exec, -1"])
    if CFG["smf"]:
        M = [(smf(ACC_KH, 1), []),
             (smf(ACC_VH, 2), [f"v_permlane32_swap_b32 v{ACC_KH + i}, v{ACC_VH + i}" for i in range(4)] +
              [f"v_add_f32 v{ACC_KH + i}, v{ACC_KH + i}, v{ACC_VH + i}" for i in range(4)] + cvt2(HX, ACC_KH) +
              [f"ds_write_b64 v{EXW}, {vr(HX, 2)} offset:1024"] +
              [f"ds_write_b16{'_d16_hi' if i & 1 else ''} v{EXK}, v{HX + (i >> 1)} offset:{8 * i}" for i in range(4)])]
    else:
        M = [(mKH(1), cvt2(HX, ACC_KH) + [f"ds_write_b64 v{EXW}, {vr(HX, 2)}"]),
             (mVH(1), cvt2(HX + 2, ACC_VH) + [f"ds_write_b64 v{EXW}, {vr(HX + 2, 2)} offset:1024"])]
    M += [(mK(1, 3, d), cvt2(kf(3) + 2 * d, accK(3, d))) for d in D]
    M += [(mV(1, 3, d), cvt2(vf(d, 3), accV(3, d)) + (pub3 if d else [])) for d in D]
    for b in (3, 2, 1, 0):
        M += [(mQ(1, b, d), cvt2(QF + 4 * b + 2 * d, accQ(b, d))) for d in D]
        if b:
            M += [(mK(1, b - 1, d), cvt2(kf(b - 1) + 2 * d, accK(b - 1, d))) for d in D]
    for b in (2, 1, 0):
        M += [(mV(1, b, d), cvt2(vf(d, b), accV(b, d))) for d in D]
    M[-3] = (M[-3][0], [f"ds_read_b32 v1, v{GV_FL} offset:{F_EX}"] + M[-3][1])
    R = [accK(0, 0) + i for i in range(4)]

    def merge(b):
        return ([f"v_max_f32 v{Sc(b) + i}, v{Sc(b) + i}, v{Sp(b) + i}" for i in range(4)] +
                [f"v_max3_f32 v{R[b]}, v{Sc(b)}, v{Sc(b) + 1}, v{Sc(b) + 2}", f"v_max_f32 v{R[b]}, v{R[b]}, v{Sc(b) + 3}"])
    S = []
    for b in (3, 2, 1):
        S += [(mfma(Sc(b), kf(b), QF + 4 * b, MC), []), (mfma(Sp(b), kf(b - 1), QF + 4 * b, MP), [])]
    S += [(mfma(Sc(0), kf(0), QF, MC), [])]
    a("v_mov_b32 v2, 1")
    lag_weave(a, M + S, lag=8, per=2)
    st.stamp(a, "g1end")
    a("s_waitcnt lgkmcnt(0)")
    spin_lds(a, GV_FL, F_EX, 4, 1, G_T, first=False)
    for d in D:
        a(f"ds_read_b64 {vr(kf(-1) + 2 * d, 2)}, v{EXR + d}")
    for d in D:
        a(f"ds_read_b64 {vr(vf(d, -1), 2)}, v{EXR + d} offset:1024")
    a.extend(merge(3) + merge(2))
    a("s_waitcnt lgkmcnt(2)")
    a(mfma(Sp(0), kf(-1), QF, MP0))
    a(f"s_setprio {CFG['prio_av']}")
    a(f"s_mov_b32 s{G_T}, 0x3e8293ee")
    a.extend(merge(1) + merge(0))
    xreduce(a, "v_max_f32", R)
    a(f"v_mul_f32 v{R[2]}, s{G_T}, v{R[0]}")
    a(f"v_mul_f32 v{R[0]}, s{G_T}, v{R[0]}")
    xbroadcast(a, R)
    for b in range(4):
        for i in range(4):
            a(f"v_fma_f32 v{Sc(b) + i}, v{Sc(b) + i}, s{G_T}, -v{R[b]}")
    for b in (3, 2, 1, 0):
        for i in range(4):
            a(f"v_exp_f32 v{Sc(b) + i}, v{Sc(b) + i}")
    for b in (3, 2, 1, 0):
        a(f"v_add_f32 v{R[b]}, v{Sc(b)}, v{Sc(b) + 1}")
        a(f"v_add_f32 v{Sp(b)}, v{Sc(b) + 2}, v{Sc(b) + 3}")
        a(f"v_add_f32 v{R[b]}, v{R[b]}, v{Sp(b)}")
    xreduce(a, "v_add_f32", R)
    a(f"v_rcp_f32 v{R[2]}, v{R[0]}")
    a(f"v_rcp_f32 v{R[0]}, v{R[0]}")
    xbroadcast(a, R)
    a("s_waitcnt lgkmcnt(0)")
    O = lambda b, d: accV(b, d)
    sw = lambda b: [f"v_swap_b32 v{QF + 4 * b + j}, v{QF + 4 * b + 2 + j}" for j in (0, 1)]

    def finish(b):
        for d in D:
            a.extend(cvt2(QF + 4 * b + 2 * d, O(b, d)))
        if not CFG["noswap"]:
            a(f"s_cbranch_scc1 L_at_noswap{b}")
            a.extend(sw(b))
            a.label(f"L_at_noswap{b}")
        a(f"s_mov_b32 s{G_T}, {32768 * b}")
        a(f"buffer_store_dwordx4 {vr(QF + 4 * b, 4)}, v{OA}, s[{G_SRDO}:{G_SRDO + 3}], s{G_T} offen sc1")
    if not CFG["noswap"]:
        a(f"s_cmp_eq_u32 s{G_HALF}, 0")
    for b in range(4):
        for i in range(4):
            a(f"v_mul_f32 v{Sc(b) + i}, v{Sc(b) + i}, v{R[b]}")
        a.extend(cvt2(Sp(b) + 2, Sc(b)))
        for j in (0, 1):
            a(f"v_and_b32 v{Sp(b) + j}, v{BC + j}, v{Sp(b) + 2 + j}")
        for j in (0, 1):
            a(f"v_xor_b32 v{Sp(b) + 2 + j}, v{Sp(b) + j}, v{Sp(b) + 2 + j}")
        if b:
            finish(b - 1)
        if b == CFG["hold"]:
            lds_add(a, GV_FL, 2, F_AT)
        a(f"s_setprio {CFG['prio_at']}")
        for d in D:
            a(mfma(O(b, d), vf(d, b - 1), Sp(b), "0"))
        a(f"s_setprio {CFG['prio_av']}")
    finish(3)


G_SRDWO, G_SRDOUT = 44, 48
G_SIG, G_WAIT, G_GC, G_CB, G_WOM, G_ROT, G_WOS = 56, 57, 58, 59, 60, 61, 62
G2_ACC, G2_WF, G2_AD, G2_OR = 4, 36, 84, 96
G2_SETS = (0, 2 * STAGE, 3 * STAGE)
G2_AD2, G2_OA = 232, 244
G2_PK, G2_PA = 172, 230


def g2_cb(a, s_cb, t):
    a(f"s_bfe_u32 s{s_cb}, s2, 0x10002")
    a(f"s_lshr_b32 s{t}, s2, 5")
    a(f"s_lshl3_add_u32 s{s_cb}, s{s_cb}, s{t}")


def wo_voffset(a, vd, s_cb, st, vt):
    a(f"v_lshrrev_b32 v{vt}, 4, v0")
    a(f"v_lshlrev_b32 v{vt}, 1, v{vt}")
    a(f"v_xor_b32 v{vt}, v0, v{vt}")
    a(f"v_and_b32 v{vt}, 7, v{vt}")
    a(f"s_lshl_b32 s{st}, s{s_cb}, 7")
    a(f"v_lshl_add_u32 v{vt}, v{vt}, 4, s{st}")
    a(f"v_lshrrev_b32 v{vd}, 3, v0")
    a(f"v_lshl_add_u32 v{vd}, v{vd}, 11, v{vt}")


def wo_dma(vo, srd_, s_m, s_so, pieces):
    L = []
    for lo, kr in pieces:
        L += [f"s_add_u32 m0, s{s_m}, {lo}",
              f"s_add_u32 s{s_so + 1}, s{s_so}, {kr * 2048}",
              f"s_and_b32 s{s_so + 1}, s{s_so + 1}, 0x1fffff",
              f"buffer_load_dwordx4 v{vo}, s[{srd_}:{srd_ + 3}], s{s_so + 1} offen lds"]
    return L


GV_WO2 = 223


def wo_dma_g(pieces):
    L = []
    for k, (c, g) in enumerate(pieces):
        if g == 0 or k == 0:
            L += [f"s_add_u32 m0, s{G_WOM}, {wo_base(c)}", f"s_xor_b32 s{G_WOS + 1}, s{G_WOS}, {c * 131072}"]
        L.append(f"buffer_load_dwordx4 v{GV_WO2 if g else GV_WO}, s[{G_SRDWO}:{G_SRDWO + 3}], s{G_WOS + 1} offen offset:{1024 * g} lds")
    return L


def g2_setup(a):
    T = G_T
    a(f"s_and_b32 s{G_GC}, s2, 3")
    a(f"s_bfe_u32 s{T}, s2, 0x20003")
    a(f"s_lshl2_add_u32 s{G_GC}, s{G_GC}, s{T}")
    g2_cb(a, G_CB, T)
    srd(a, G_SRDWO, P_WO, 2 << 20)
    srd(a, G_SRDOUT, P_OUT, 8 << 20)
    a(f"s_lshl3_add_u32 s{G_SIG}, s{S_PAR}, s{S_RB}")
    a(f"s_lshl4_add_u32 s{G_SIG}, s{G_SIG}, {CNT_O}")
    a(f"s_lshl_b32 s{G_SIG}, s{G_SIG}, 8")
    a(f"s_lshl4_add_u32 s{G_WAIT}, s{G_GC}, {CNT_O}")
    a(f"s_add_u32 s{G_WAIT}, s{G_WAIT}, s{G_CB}")
    a(f"s_lshl_b32 s{G_WAIT}, s{G_WAIT}, 8")
    a(f"s_lshl2_add_u32 s{T}, s{G_GC}, s{S_WAVE}")
    a(f"s_lshl_b32 s{T + 1}, s{T}, 16")
    a(f"v_lshl_add_u32 v{GV_O}, v0, 4, s{T + 1}")
    a(f"v_add_u32 v{GV_O + 1}, 0x8000, v{GV_O}")
    a(f"s_and_b32 s{T}, s{T}, 31")
    a(f"s_lshl_b32 s{T}, s{T}, 6")
    a(f"s_lshr_b32 s{T + 1}, s{G_GC}, 3")
    a(f"s_add_u32 s{T}, s{T}, s{T + 1}")
    a(f"s_lshl_b32 s{T}, s{T}, 5")
    a(f"s_add_u32 s{T}, s{T}, s{G_CB}")
    a(f"s_add_u32 s{T}, s{T}, 16")
    a(f"s_lshl_b32 s{T}, s{T}, 7")
    if CFG["oblds"]:
        a("v_lshrrev_b32 v1, 3, v0")
        a(f"v_lshl_add_u32 v1, v1, 13, s{T}")
        a("v_and_b32 v2, 7, v0")
        a(f"v_lshl_add_u32 v{GV_OUT}, v2, 4, v1")
    else:
        a("v_and_b32 v1, 15, v0")
        a(f"v_lshl_add_u32 v1, v1, 13, s{T}")
        a("v_bfe_u32 v2, v0, 4, 1")
        a("v_lshl_add_u32 v1, v2, 5, v1")
        a("v_lshrrev_b32 v2, 5, v0")
        a(f"v_lshl_add_u32 v{GV_OUT}, v2, 4, v1")
    wo_voffset(a, GV_WO, G_CB, T, 1)
    a(f"v_add_u32 v{GV_WO2}, {8 * 2048 - 1024}, v{GV_WO}")
    assert CFG["rot2"] in (0, 4)
    a(f"s_lshl_b32 s{G_WOM}, s{S_WAVE}, 11")
    a(f"s_mul_i32 s{G_ROT}, s{G_CB}, {CFG['rot2']}")
    a(f"s_and_b32 s{G_ROT}, s{G_ROT}, 7")
    a(f"s_lshl3_add_u32 s{G_WOS}, s{G_ROT}, s{S_WAVE}")
    a(f"s_lshl_b32 s{G_WOS}, s{G_WOS}, 15")
    a("v_lshrrev_b32 v1, 2, v0")
    a("v_lshlrev_b32 v1, 7, v1")
    a("v_bfe_u32 v2, v0, 3, 2")
    a("v_lshl_add_u32 v1, v2, 5, v1")
    a("v_and_b32 v2, 3, v0")
    a(f"v_lshl_add_u32 v{GV_RD}, v2, 3, v1")


def g2_pre(a):
    if CFG["noswap"]:
        a(f"s_lshl_b32 s{G_T}, s{G_HH}, 11")
        a(f"v_add_u32 v{GV_RD}, s{G_T}, v{GV_RD}")
    for j in range(1 + CFG["noswap"]):
        A = G2_AD2 if j else G2_AD
        for s_, base in enumerate(G2_SETS):
            for cb in range(4):
                if base:
                    a(f"v_add_u32 v{A + 4 * s_ + cb}, {base}, v{A + cb}")
                else:
                    a(f"v_xor_b32 v{A + cb}, {32 * cb + 2048 * j}, v{GV_RD}")
    if CFG["g2tail"]:
        a.extend(ob_addr())
    if CFG["park"]:
        a(f"v_lshl_add_u32 v{G2_PA + 1}, v0, 4, s{G_WOM}")
        a(f"v_add_u32 v{G2_PA}, {H_REG}, v{G2_PA + 1}")
    for i in range(8):
        a(f"s_add_u32 s{64 + i}, s{G_ROT}, {i}")
        a(f"s_and_b32 s{64 + i}, s{64 + i}, 7")
        a(f"s_lshl_b32 s{64 + i}, s{64 + i}, 12")


def g2_main(a, st):
    vm, lg = Q("vmcnt", 63), Q("lgkmcnt", 15)
    WP = CFG["wper"]
    PD, D = CFG["pd"], CFG["depth"]
    NF = PD + CFG["nfx"]
    assert G2_WF + 4 * NF <= G2_AD
    NR = max(D + 1, CFG['d0'])
    assert G2_OR + 8 * NR <= (G2_PK if CFG['park'] and not CFG['parkpre'] else GV_WO2)
    oreg = lambda h, i: G2_OR + 8 * (h % NR) + 4 * i

    def oload(h, i):
        vm.issue(("o", h))
        return f"buffer_load_dwordx4 {vr(oreg(h, i), 4)}, v{GV_O + i}, s[{G_SRDO}:{G_SRDO + 3}], s{64 + (h >> 2)} offen offset:{1024 * (h & 3)} sc1"

    def wread(f, j):
        h, cb = f >> 2, f & 3
        s_ = max(i for i, b in enumerate(G2_SETS) if b <= wo_base(h >> 1))
        off = wo_base(h >> 1) + 4096 * (h & 1) + 2048 * j - G2_SETS[s_]
        assert 0 <= off and off + 4096 <= 65536
        lg.issue(("w", f))
        if CFG["noswap"] and j:
            return f"ds_read_b64_tr_b16 {vr(G2_WF + 4 * (f % NF) + 2, 2)}, v{G2_AD2 + 4 * s_ + cb} offset:{off - 2048}"
        return f"ds_read_b64_tr_b16 {vr(G2_WF + 4 * (f % NF) + 2 * j, 2)}, v{G2_AD + 4 * s_ + cb} offset:{off}"

    nxt = [0]

    def more(limit):
        if nxt[0] < min(64, limit):
            a(oload(nxt[0] >> 1, nxt[0] & 1))
            nxt[0] += 1
    for f in range(max(PD, CFG["d0"])):
        more(2 * CFG["d0"])
        more(2 * CFG["d0"])
        if f < PD:
            if f == 7:
                lg.wait(a, ("w", 0))
            a(wread(f, 0))
            a(wread(f, 1))
    for k in range(CFG["park0"]):
        if k == 0:
            spin_lds(a, GV_FL, F_CD, 4, 1, G_T)
            lg.drained()
            a(f"s_waitcnt vmcnt({nxt[0]})")
        c = 10 + k // 2
        a(f"ds_write_b128 v{G2_PA + (c >= 14)}, {vr(G2_PK + 4 * k, 4)} offset:{wo_base(c) - (H_REG if c < 14 else 0) + 1024 * (k & 1)}")
        lg.issue("pk")
        if k == 11:
            lds_add(a, GV_FL, 2, F_WO2)
            lg.issue("pk")
    tailfill = ob_addr() if CFG["oblds"] else []
    st.stamp(a, "g2iss")
    for f in range(120 if CFG['g2tail'] else 128):
        h, cb = f >> 2, f & 3
        if CFG["wo1a"] < 10:
            if f == 1:
                lds_add(a, GV_FL, 2, F_WO1)
                lg.issue("add")
            if f + PD == 8 * CFG["wo1a"] - 4:
                a(f"ds_read_b32 v1, v{GV_FL} offset:{F_WO1}")
                lg.issue("flag")
            if f + PD == 8 * CFG["wo1a"]:
                lg.wait(a, "flag")
                spin_lds(a, GV_FL, F_WO1, 4, 1, G_T, first=False)
        if CFG["zhold"] is not None and f == 4 * CFG["zhold"] + 1:
            lds_add(a, GV_FL, 2, F_GZ)
            lg.issue("gz")
        if CFG["park"] and not CFG["parkpre"]:
            p0, pst = CFG["parkat"]
            if f == p0 - 4 and not CFG["park0"]:
                a(f"ds_read_b32 v1, v{GV_FL} offset:{F_CD}")
                lg.issue("flag")
            if f == p0 and not CFG["park0"]:
                lg.wait(a, "flag")
                spin_lds(a, GV_FL, F_CD, 4, 1, G_T, first=False)
            k = (f - p0) // pst + CFG['park0']
            if f >= p0 and (f - p0) % pst == 0 and k < 12:
                c = 10 + k // 2
                a(f"ds_write_b128 v{G2_PA + (c >= 14)}, {vr(G2_PK + 4 * k, 4)} offset:{wo_base(c) - (H_REG if c < 14 else 0) + 1024 * (k & 1)}")
                lg.issue("pk")
                if k == 11:
                    assert f + PD < 80 - 4
                    lds_add(a, GV_FL, 2, F_WO2)
                    lg.issue("pk")
        if f + PD == 80 - 4 and not CFG['parkpre']:
            a(f"ds_read_b32 v1, v{GV_FL} offset:{F_WO2}")
            lg.issue("flag")
        if f + PD == 80:
            if not CFG["parkpre"]:
                lg.wait(a, "flag")
                spin_lds(a, GV_FL, F_WO2, 4, 1, G_T, first=False)
            st.stamp(a, "wo2")
        w = []
        n = vm.need(("o", h)) if cb == 0 else None
        if n is not None:
            w.append(f"vmcnt({n})")
        n = lg.need(("w", min(127, f + WP - 1))) if f % WP == 0 else None
        if n is not None:
            w.append(f"lgkmcnt({n})")
        if w:
            a("s_waitcnt " + " ".join(w))
        if cb == 0 and h in (4, 8, 12, 24, 28):
            st.stamp(a, f"h{h}")
        for i in (0, 1):
            ii = i ^ (cb & 1) if CFG["g2serp"] else i
            a(mfma(G2_ACC + 16 * ii + 4 * cb, G2_WF + 4 * (f % NF), oreg(h, ii), "0" if h == 0 else None))
            if f + PD < 128:
                a(wread(f + PD, i))
            else:
                for _ in range(2):
                    if tailfill:
                        a(tailfill.pop(0))
        more(2 * (h + D) + (cb + 1) // 2)
    if CFG["g2tail"]:
        P, A = G2_PK, G2_OA
        mm = lambda i, f: mfma(G2_ACC + 16 * i + 4 * (f & 3), G2_WF + 4 * (f % NF), oreg(f >> 2, i))
        fin = lambda i, cb: cvt2(P + 8 * i + 2 * cb, G2_ACC + 16 * i + 4 * cb) + [f"ds_write_b64 v{A + cb}, {vr(P + 8 * i + 2 * cb, 2)}"]
        rd = lambda i: [f"ds_read_b128 {vr(P + 16 + 8 * i + 4 * k, 4)}, v{A + 4} offset:{1024 * k}" for k in (0, 1)]
        sto = lambda n, c: (f"s_mov_b32 s{G_T}, {8 * 8192 * n}\ns_waitcnt lgkmcnt({c})\n"
                            f"buffer_store_dwordx4 {vr(P + 16 + 4 * n, 4)}, v{GV_OUT}, s[{G_SRDOUT}:{G_SRDOUT + 3}], s{G_T} offen{CFG['ost']}")
        a(f"s_waitcnt vmcnt({vm.need(('o', 30))}) lgkmcnt({lg.need(('w', 123))})")
        a.extend([mm(0, f) for f in range(120, 124)])
        a("s_waitcnt vmcnt(0) lgkmcnt(0)")
        M = [(mm(0, 124 + cb) + ("\ns_nop 0\ns_nop 0" if cb < 3 and CFG.get("tnop") else ""), fin(0, cb) + (rd(0) if cb == 3 else [])) for cb in range(4)]
        for cb in range(4):
            M += [(mm(1, 120 + cb), []), (mm(1, 124 + cb), fin(1, cb) + (rd(1) if cb == 3 else []))]
        lag_weave(a, M, lag=6 if CFG.get("tnop") else 8, per=CFG["g2tail"])
        st.stamp(a, "g2end")
        k = [i for i, x in enumerate(a.ins) if x.op == "ds_write_b64"][-2]
        a.ins[k:k] = [Ins(x) for n, c in ((0, 3), (1, 2)) for x in sto(n, c).split("\n")]
        a(sto(2, 1))
        a(sto(3, 0))
        return
    assert not tailfill
    st.stamp(a, "g2end")
    P = G2_WF
    if CFG["oblds"]:
        for i in (0, 1):
            for cb in range(4):
                a.extend(cvt2(P + 8 * i + 2 * cb, G2_ACC + 16 * i + 4 * cb))
                a(f"ds_write_b64 v{G2_AD + cb}, {vr(P + 8 * i + 2 * cb, 2)}")
            for k in (0, 1):
                a(f"ds_read_b128 {vr(P + 16 + 8 * i + 4 * k, 4)}, v{G2_AD + 4} offset:{1024 * k}")
        for n in range(4):
            a(f"s_mov_b32 s{G_T}, {8 * 8192 * n}")
            a(f"s_waitcnt lgkmcnt({(7, 6, 1, 0)[n]})")
            a(f"buffer_store_dwordx4 {vr(P + 16 + 4 * n, 4)}, v{GV_OUT}, s[{G_SRDOUT}:{G_SRDOUT + 3}], s{G_T} offen{CFG['ost']}")
        return
    a(f"s_mov_b32 s{G_T}, {16 * 8192}")
    for p in (0, 1):
        for i in (0, 1):
            for cb in (2 * p, 2 * p + 1):
                a.extend(cvt2(P + 8 * i + 2 * cb, G2_ACC + 16 * i + 4 * cb))
        for i in (0, 1):
            for j in (0, 1):
                a(f"v_permlane16_swap_b32 v{P + 8 * i + 4 * p + j}, v{P + 8 * i + 4 * p + 2 + j}")
        for i in (0, 1):
            a(f"buffer_store_dwordx4 {vr(P + 8 * i + 4 * p, 4)}, v{GV_OUT}, s[{G_SRDOUT}:{G_SRDOUT + 3}], {f's{G_T}' if i else 0} offen offset:{64 * p}{CFG['ost']}")


def ob_addr():
    A, T = G2_OA if CFG["g2tail"] else G2_AD, G_T
    return [f"s_mul_i32 s{T}, s{G_HH}, {EX[1] - EX[0]}",
            f"s_lshl_b32 s{T + 1}, s{G_HALF}, 11",
            f"s_add_u32 s{T}, s{T}, s{T + 1}",
            f"s_add_u32 s{T}, s{T}, {EX[0]}",
            f"v_lshrrev_b32 v1, 5, v0",
            f"v_xor_b32 v1, v1, v0",
            f"v_and_b32 v1, 7, v1",
            f"v_lshl_add_u32 v1, v1, 4, s{T}",
            f"v_bfe_u32 v2, v0, 4, 1",
            f"v_lshl_add_u32 v1, v2, 3, v1",
            f"v_and_b32 v2, 15, v0",
            f"v_lshl_add_u32 v{A}, v2, 7, v1",
            ] + [f"v_xor_b32 v{A + cb}, {32 * cb}, v{A}" for cb in (1, 2, 3)] + [
            f"v_lshrrev_b32 v1, 3, v0",
            f"v_xor_b32 v1, v1, v0",
            f"v_and_b32 v1, 7, v1",
            f"v_and_b32 v2, 56, v0",
            f"v_add_u32 v1, v1, v2",
            f"v_lshl_add_u32 v{A + 4}, v1, 4, s{T}"]


def g_entry(a, vm, st):
    if CFG["codepf"]:
        a("s_bfe_u32 s34, s2, 0x20003")
        a(f"s_lshl2_add_u32 s34, s34, s{S_WAVE}")
        a("s_lshl_b32 s34, s34, 7")
        a("v_lshl_add_u32 v1, v0, 11, s34")
        a("v_min_u32 v1, L_end-L_entry-8, v1")
        a("s_mov_b64 exec, 0xffff")
        a(f"global_load_dword v{TV - 2}, v1, s[32:33]")
        a("s_mov_b64 exec, -1")
    gpre_addr(a)
    st.stamp(a, "addr")
    a("s_waitcnt lgkmcnt(0)")
    gpre_loads(a, vm)
    st.stamp(a, "kvis")
    if CFG["tb1"]:
        touch_setup(a)
        srd(a, 64, P_X, 4 << 20)
        srd(a, 68, P_W, 6 << 20)
        touch_batch(a, vm, *CFG["tb1"], 64, 68)
    if CFG["bpre"]:
        a("s_barrier")
    a("s_branch L_grole")


def g_role(a, st, vm):
    a(f"s_setprio {CFG['prio_g1']}")
    srd(a, S_CNT, P_WS, NCNT * 256, WS_CNT)
    if not CFG["latesetup"]:
        compute_setup(a)
        attn_setup(a)
        g2_setup(a)
    st.stamp(a, "setup")
    gpre_compute(a, vm, st)
    if CFG["latesetup"]:
        compute_setup(a)
        attn_setup(a)
        g2_setup(a)
    a(f"s_and_b32 s{G_T}, s2, 7")
    a(f"s_xor_b32 s{G_T}, s{G_T}, {CFG['cgx']}")
    a(f"s_lshl_b32 s{G_T}, s{G_T}, 5")
    a(f"s_lshr_b32 s{G_T + 1}, s2, 3")
    a(f"s_add_u32 s{G_T}, s{G_T}, s{G_T + 1}")
    a(f"s_add_u32 s{G_T}, s{G_T}, {CNT_Z}")
    a(f"s_lshl_b32 s{G_T}, s{G_T}, 8")
    a(f"s_cmp_eq_u32 s{G_HALF}, 0")
    a(f"s_cselect_b32 s{G_T}, s{G_T}, s{G_WAIT}")
    a(f"s_cmp_eq_u32 s{G_HH}, 0")
    a("s_cbranch_scc0 L_noclear")
    a("s_mov_b64 exec, 1")
    a(f"buffer_store_dword v{ACC}, off, s[{S_CNT}:{S_CNT + 3}], s{G_T} sc1")
    a("s_mov_b64 exec, -1")
    a.label("L_noclear")
    st.stamp(a, "pre")
    compute_loop(a)
    a(f"s_setprio {CFG['prio_at']}")
    pieces = [(c, g) for c in range(10) for g in (0, 1)]
    if CFG.get("x_nowo1"):
        pieces = []
    pieces = pieces[CFG["cwo1"]:]
    if CFG["rev"]:
        pieces = pieces[:10]
    b = Asm()
    attention(b, st)
    nw, (w0, wstep) = CFG["woat"], CFG["woatp"]
    fill = wo_dma_g(pieces[:nw])
    pieces = pieces[nw:]
    k0 = max(i for i, x in enumerate(b.ins) if x.kind == "label" and x.label.startswith("L_sl_done")) + w0
    k1 = max(i for i, x in enumerate(b.ins) if x.op == "s_cmp_eq_u32")
    if CFG["noswap"]:
        k1 = [i for i, x in enumerate(b.ins) if x.op == "buffer_store_dwordx4"][CFG["wend"]]
    for i, x in enumerate(b.ins):
        if i == k1:
            a.extend(fill)
            fill = []
        a.ins.append(x)
        if i > k0 and (i - k0) % wstep == 0 and fill:
            a(fill.pop(0))
    st.stamp(a, "attn")
    n0 = min(CFG["wo0"], len(pieces))
    a(f"s_setprio {CFG['prio_wo']}")
    a.extend(wo_dma_g(pieces[:n0]))
    g2_pre(a)
    a(f"s_waitcnt vmcnt({n0})")
    a(f"s_setprio {CFG['prio_j']}")
    st.stamp(a, "ostd")

    def between(x):
        if CFG["sigfirst"]:
            spin_lds(x, GV_FL, F_GJOIN, 4, 1, G_T)
        x(f"s_setprio {CFG['prio_wo']}")
        x.extend(wo_dma_g(pieces[n0:]))
        for k in range(12 * CFG["park"]):
            if k == CFG["presample"] and not CFG["parkpre"]:
                skip = uid("ps")
                x(f"s_cmp_eq_u32 s{G_T + 2}, 3")
                x(f"s_cbranch_scc0 {skip}")
                x(f"s_load_dword s{G_T}, s[{S_CNT}:{S_CNT + 1}], s{G_WAIT} glc")
                x.label(skip)
            if k % 2 == 0:
                x(f"s_xor_b32 s{G_WOS + 1}, s{G_WOS}, {(10 + k // 2) * 131072}")
            x(f"buffer_load_dwordx4 {vr(G2_PK + 4 * k, 4)}, v{GV_WO2 if k & 1 else GV_WO}, s[{G_SRDWO}:{G_SRDWO + 3}], s{G_WOS + 1} offen offset:{1024 * (k & 1)}")
        x(f"s_setprio {CFG['prio_g2']}")
        if CFG["parkpre"]:
            spin_lds(x, GV_FL, F_CD, 4, 1, G_T)
            skip = uid("ps")
            x(f"s_cmp_eq_u32 s{G_T + 2}, 3")
            x(f"s_cbranch_scc0 {skip}")
            x(f"s_load_dword s{G_T}, s[{S_CNT}:{S_CNT + 1}], s{G_WAIT} glc")
            x.label(skip)
            for k in range(12):
                c = 10 + k // 2
                x(f"s_waitcnt vmcnt({11 - k})")
                x(f"ds_write_b128 v{G2_PA + (c >= 14)}, {vr(G2_PK + 4 * k, 4)} offset:{wo_base(c) - (H_REG if c < 14 else 0) + 1024 * (k & 1)}")
        if not CFG["pollfirst"]:
            after(x)

    def after(x):
        x(f"s_waitcnt vmcnt({20 - 2 * CFG['wo1a'] + 12 * CFG['park']})")
        lds_add(x, GV_FL, 2, F_GGO)
        st.stamp(x, "wo1")
    join_signal_wait(a, GV_FL, F_GJOIN, F_GGO, G_SIG, G_WAIT, 1, G_T, between, want=24 if CFG['cwo1'] or CFG['rev'] else 20, after=after if CFG["pollfirst"] else None,
                     sampled=CFG["presample"] is not None)
    st.stamp(a, "oflag")
    g2_main(a, st)
    st.stamp(a, "st")
    if st.on:
        a("s_waitcnt vmcnt(0)")
    st.flush(a, S_WG, S_WAVE)
    a("s_endpgm")
    compute_rare(a)


L_SRDX, L_SRDW = 32, 36
L_SOX, L_SOW = 40, 41
L_BX, L_BW = 43, 44
L_EX = 46
L_T = 48
LV_X, LV_H, LV_W = 2, 6, 7
C_W = 70


def loader_setup(a):
    T = L_T
    a(f"s_sub_u32 s{C_W}, s{S_WAVE}, 4")
    a(f"s_lshl_b32 s{L_BX}, s{C_W}, 12")
    a(f"s_lshl_b32 s{L_BW}, s{C_W}, 11")
    a(f"s_add_u32 s{L_BW}, s{L_BW}, {W_OFF}")
    a(f"s_lshl_b32 s{T + 1}, s{C_W}, 4")
    a(f"s_lshl_b64 s[{L_EX}:{L_EX + 1}], 0xffff, s{T + 1}")
    a("v_lshrrev_b32 v13, 3, v0")
    a("v_and_b32 v14, 7, v0")
    a("v_lshrrev_b32 v15, 4, v0")
    a(f"s_lshl2_add_u32 s{T + 2}, s{S_RB}, s{C_W}")
    a(f"s_lshl_b32 s{T + 2}, s{T + 2}, 6")
    a(f"s_add_u32 s{T + 2}, s{T + 2}, s{S_PAR}")
    a(f"s_lshl_b32 s{T + 2}, s{T + 2}, 11")
    a(f"v_lshl_add_u32 v16, v13, 12, s{T + 2}")
    a("v_xor_b32 v17, v14, v15")
    a(f"v_lshl_add_u32 v{LV_X}, v17, 4, v16")
    a(f"v_xor_b32 v{LV_X + 1}, 64, v{LV_X}")
    a(f"v_add_u32 v{LV_X + 1}, {8 * 4096 - 1024}, v{LV_X + 1}")
    a(f"v_add_u32 v{LV_X + 2}, {16 * 4096 - 2048}, v{LV_X}")
    a(f"v_add_u32 v{LV_X + 3}, {16 * 4096 - 2048}, v{LV_X + 1}")
    a(f"s_lshl_b32 s{T + 1}, s{S_RB}, 7")
    a(f"s_sub_u32 s{T + 1}, s{T + 1}, 8")
    a(f"s_max_i32 s{T + 1}, s{T + 1}, 0")
    a(f"s_lshl1_add_u32 s{T + 1}, s{T + 1}, s{S_PAR}")
    a(f"s_lshl_b32 s{T + 1}, s{T + 1}, 11")
    a(f"v_lshl_add_u32 v16, v13, 12, s{T + 1}")
    a("v_lshlrev_b32 v17, 1, v15")
    a(f"v_xor_b32 v18, v14, {'v13' if CFG['smf'] else 'v17'}")
    a(f"v_lshl_add_u32 v{LV_H}, v18, 4, v16")
    a(f"s_mul_i32 s{T + 1}, s{C_W}, {16 * 48}")
    a(f"s_add_u32 s{T + 1}, s{T + 1}, s{S_HP}")
    a(f"s_lshl_b32 s{T + 1}, s{T + 1}, 7")
    a(f"v_mul_u32_u24 v16, 6144, v13")
    a("v_and_b32 v17, 2, v17")
    a("v_xor_b32 v17, v14, v17")
    a("v_lshlrev_b32 v17, 4, v17")
    a(f"v_add3_u32 v{LV_W}, v17, v16, s{T + 1}")
    a(f"v_xor_b32 v{LV_W + 1}, 64, v{LV_W}")
    a(f"v_add_u32 v{LV_W + 1}, {8 * 6144 - 1024}, v{LV_W + 1}")
    for part in (1, 2):
        for kgi in (0, 1):
            a(f"v_add_u32 v{LV_W + 2 * part + kgi}, {2048 * part}, v{LV_W + kgi}")
    if CFG["kx"]:
        a(f"s_add_u32 s{L_XC}, s{S_RB}, s{S_HP}")
        a(f"s_and_b32 s{L_XC}, s{L_XC}, {CFG['kx'][1]}")
        a(f"s_lshl_b32 s{L_XC}, s{L_XC}, 7")
    a.extend(korder(0))
    if CFG["sub"]:
        a(f"s_movk_i32 s{L_BH}, {X_HALO}")
        a(f"s_mov_b32 s{L_XC}, {STAGE}")


L_XC = 42


def korder(t):
    if CFG["kx"] and t >= CFG["kx"][0]:
        return [f"s_xor_b32 s{L_SOX}, s{L_XC}, {128 * t}", f"s_mul_i32 s{L_SOW}, s{L_SOX}, 3072"]
    return [f"s_movk_i32 s{L_SOX}, {128 * t}", f"s_mov_b32 s{L_SOW}, {64 * 6144 * t}"]


def loader_groups(t):
    buf = STAGE * ((-t if CFG['rev'] else t) % 3)
    W = [([] if kgi else [f"s_add_u32 m0, s{L_BW}, {buf + 8192 * part}"],
          [f"buffer_load_dwordx4 v{LV_W + 2 * part + kgi}, s[{L_SRDW}:{L_SRDW + 3}], s{L_SOW} offen offset:{1024 * kgi}{CFG['dmod']} lds"])
         for part in range(3) for kgi in (0, 1)]
    X = [([f"s_add_u32 m0, s{L_BX}, {buf}"] if CFG["ilv"] or not i else [],
          [f"buffer_load_dwordx4 v{LV_X + i}, s[{L_SRDX}:{L_SRDX + 3}], s{L_SOX} offen offset:{1024 * i}{CFG['dmod']} lds"]) for i in range(4)]
    G = [X[0]] + W[:2] + [X[1]] + W[2:4] + [X[2]] + W[4:] + [X[3]] if CFG["ilv"] else W[:2] + X + W[2:]
    G.append(([f"s_mov_b32 m0, {buf + X_HALO}"],
              [f"s_mov_b64 exec, s[{L_EX}:{L_EX + 1}]",
               f"buffer_load_dwordx4 v{LV_H}, s[{L_SRDX}:{L_SRDX + 3}], s{L_SOX} offen lds",
               "s_mov_b64 exec, -1",
               ] + korder(t + 1)))
    return G


L_BH, L_RET = 49, 50


def loader_sub(a):
    a.label("L_stage")
    lx = lambda i: f"buffer_load_dwordx4 v{LV_X + i}, s[{L_SRDX}:{L_SRDX + 3}], s{L_SOX} offen offset:{1024 * i} lds"
    lw = lambda i: f"buffer_load_dwordx4 v{LV_W + i}, s[{L_SRDW}:{L_SRDW + 3}], s{L_SOW} offen offset:{1024 * (i & 1)} lds"
    for part in range(3):
        a(f"s_mov_b32 m0, s{L_BX}")
        if part == 0:
            a(f"s_cmp_ge_u32 s{L_BH}, {2 * STAGE}")
            a(f"s_cselect_b32 s{L_T}, {-2 * STAGE}, s{L_XC}")
        a(lx(part))
        a(f"s_add_u32 m0, s{L_BW}, {8192 * part}")
        a(lw(2 * part))
        a(lw(2 * part + 1))
    a(f"s_mov_b32 m0, s{L_BX}")
    a(f"s_add_u32 s{L_BX}, s{L_BX}, s{L_T}")
    a(lx(3))
    a(f"s_mov_b32 m0, s{L_BH}")
    a(f"s_mov_b64 exec, s[{L_EX}:{L_EX + 1}]")
    a(f"buffer_load_dwordx4 v{LV_H}, s[{L_SRDX}:{L_SRDX + 3}], s{L_SOX} offen lds")
    a("s_mov_b64 exec, -1")
    a(f"s_add_u32 s{L_BW}, s{L_BW}, s{L_T}")
    a(f"s_add_u32 s{L_BH}, s{L_BH}, s{L_T}")
    a(f"s_addk_i32 s{L_SOX}, 128")
    a(f"s_add_u32 s{L_SOW}, s{L_SOW}, {64 * 6144}")
    a(f"s_setpc_b64 s[{L_RET}:{L_RET + 1}]")


C_A, C_B, C_WS = 56, 60, 64
C_CG, C_M, C_CH = 68, 69, 71
C_D, C_SIG, C_T = 72, 73, 74
C_HB, C_UB, C_WOS = 80, 81, 82
C_HO, C_UO, C_CB, C_STG, C_KW = 84, 85, 86, 87, 45
HR = 132
CACC, CA, CBF, QR = 16, 48, 112, 208
CV = 224
AA, AB = CV + 8, CV + 9
DF = CV + 16
ONE = CV + 20


def c_setup(a):
    T = C_T
    a(f"s_and_b32 s{C_SIG}, s2, 7")
    a(f"s_xor_b32 s{C_SIG}, s{C_SIG}, {CFG['cgx']}")
    a(f"s_lshr_b32 s{T}, s2, 7")
    a(f"s_lshl1_add_u32 s{C_CG}, s{C_SIG}, s{T}")
    a(f"s_bfe_u32 s{C_M}, s2, 0x40003")
    a(f"s_lshl4_add_u32 s{C_CH}, s{C_CG}, s{C_M}")
    a(f"s_lshl2_add_u32 s{C_CH}, s{C_CH}, s{C_W}")
    a(f"s_mul_i32 s{C_HB}, s{C_W}, {H_PITCH}")
    a(f"s_add_u32 s{C_HB}, s{C_HB}, {H_REG}")
    a(f"s_mul_i32 s{C_UB}, s{C_W}, {U_PITCH}")
    a(f"s_add_u32 s{C_UB}, s{C_UB}, {U_REG}")
    srd(a, S_CNT, P_WS, NCNT * 256, WS_CNT)
    srd(a, C_WS, P_WS, 1024 * ZP, WS_Z)
    a(f"s_lshl_b32 s{C_HO}, s{C_CH}, 12")
    a(f"s_mul_i32 s{C_UO}, s{C_CH}, {KVP}")
    a(f"s_add_u32 s{C_UO}, s{C_UO}, {WS_KV}")
    a(f"s_lshr_b32 s{C_D}, s{C_CH}, 1")
    a(f"s_lshl_b32 s{C_D}, s{C_D}, 2")
    a(f"s_load_dword s{C_D}, s[{P_D}:{P_D + 1}], s{C_D}")
    a(f"v_lshlrev_b32 v{CV}, 4, v0")
    for e in range(4):
        a(f"v_mov_b32 v{CV + 4 + e}, 0")
    a(f"v_mov_b32 v{CV + 3}, {FLAGS}")
    a(f"v_mov_b32 v{ONE}, 1")
    a(f"s_bfe_u32 s{C_STG}, s2, {CFG['stagpos'] | (CFG['stagbits'] << 16):#x}")
    a("s_mov_b64 exec, 1")
    a(f"ds_write_b128 v{CV + 3}, {vr(CV + 4, 4)}")
    a(f"ds_write_b128 v{CV + 3}, {vr(CV + 4, 4)} offset:16")
    a(f"ds_write_b128 v{CV + 3}, {vr(CV + 4, 4)} offset:32")
    a("s_mov_b64 exec, -1")


def chan_srd(a, d, ptr, s_off):
    a(f"s_add_u32 s{d}, s{ptr}, s{s_off}")
    a(f"s_addc_u32 s{d + 1}, s{ptr + 1}, 0")
    a(f"s_movk_i32 s{d + 2}, 4096")
    a(f"s_mov_b32 s{d + 3}, 0x20000")


def h_loads(a, vm):
    nt = CFG["hmod"]
    chan_srd(a, C_A, P_H, C_HO)
    a(f"s_add_u32 m0, s{C_HB}, 64")
    for e in range(4):
        a(f"v_mov_b32 v{HR + e}, 0")
    for i in range(4):
        a(f"buffer_load_dwordx4 v{CV}, s[{C_A}:{C_A + 3}], 0 offen offset:{1024 * i}{nt} lds")
    a(f"s_add_u32 m0, s{C_HB}, {H_COPY + 80}")
    a("s_mov_b64 exec, 0x100")
    a(f"buffer_load_dwordx4 {vr(HR, 4)}, off, s[{C_A}:{C_A + 3}], 0{nt}")
    a("s_mov_b64 exec, -1")
    for i in range(4):
        a(f"buffer_load_dwordx4 v{CV}, s[{C_A}:{C_A + 3}], 14 offen offset:{1024 * i}{nt} lds")
    vm.issue("h", 9)


def h_piece(i):
    def f(a, vm):
        nt = CFG["hmod"]
        chan_srd(a, C_A, P_H, C_HO)
        a(f"s_add_u32 m0, s{C_HB}, 64")
        if i == 0:
            for e in range(4):
                a(f"v_mov_b32 v{HR + e}, 0")
        a(f"buffer_load_dwordx4 v{CV}, s[{C_A}:{C_A + 3}], 0 offen offset:{1024 * i}{nt} lds")
        a(f"s_add_u32 m0, s{C_HB}, {H_COPY + 80}")
        if i == 0:
            a("s_mov_b64 exec, 0x100")
            a(f"buffer_load_dwordx4 {vr(HR, 4)}, off, s[{C_A}:{C_A + 3}], 0{nt}")
            a("s_mov_b64 exec, -1")
        a(f"buffer_load_dwordx4 v{CV}, s[{C_A}:{C_A + 3}], 14 offen offset:{1024 * i}{nt} lds")
        vm.issue("h", 2 + (i == 0))
    return f


def h_fill(a):
    a(f"v_cmp_lt_u32 vcc, 3, v0")
    a(f"v_mov_b32 v{HR + 8}, {H_COPY - 64}")
    a(f"v_lshlrev_b32 v{HR + 4}, 16, v{HR}")
    a(f"v_cndmask_b32 v{HR + 8}, 0, v{HR + 8}, vcc")
    for e in range(1, 4):
        a(f"v_alignbit_b32 v{HR + 4 + e}, v{HR + e}, v{HR + e - 1}, 16")
    a(f"v_add3_u32 v{HR + 8}, v{HR + 8}, v{CV}, s{C_HB}")
    a("s_mov_b64 exec, 0x1ff")
    a(f"ds_write_b128 v{HR + 8}, {vr(HR + 4, 4)}")
    a("s_mov_b64 exec, -1")


def u_loads(a, vm):
    chan_srd(a, C_A, P_WS, C_UO)
    for c in (0, 1):
        a(f"s_add_u32 m0, s{C_UB}, {(U_COPY - 4 * CFG['ushift']) * c}")
        for i in range(4):
            a(f"buffer_load_dwordx4 v{CV}, s[{C_A}:{C_A + 3}], {4 * c * (1 - CFG['ushift'])} offen offset:{1024 * i}{CFG['uld']} lds")
    vm.issue("u", 8)


def u_fill(a):
    t = CV + 10
    a(f"v_lshrrev_b32 v{t}, 5, v0")
    a(f"v_mul_u32_u24 v{t}, {U_COPY - 512}, v{t}")
    a(f"v_add3_u32 v{t}, v{t}, v{CV}, s{C_UB}")
    a("s_mov_b32 exec_lo, 0xfffffff")
    a("s_mov_b32 exec_hi, 0xfffffff")
    a(f"ds_write_b128 v{t}, {vr(CV + 4, 4)} offset:4096")
    if CFG["ushift"]:
        a("s_mov_b64 exec, 1")
        a(f"ds_write_b32 v{t}, v{CV + 4} offset:{U_COPY + 4092}")
    a("s_mov_b64 exec, -1")


def q_addr(a):
    T, vd, vt = C_T, CV + 1, CV + 10
    a(f"s_lshr_b32 s{T}, s{C_M}, 2")
    a(f"s_and_b32 s{T + 1}, s{C_M}, 3")
    a(f"s_lshl3_add_u32 s{T}, s{T}, s{C_W if CFG['zb'] else T + 1}")
    a(f"s_lshl3_add_u32 s{T}, s{T}, s{T + 1 if CFG['zb'] else C_W}")
    a(f"s_lshl_b32 s{T}, s{T}, 3")
    a(f"v_bfe_u32 v{vt}, v0, 3, 1")
    a(f"v_lshl_add_u32 v{vd}, v{vt}, 8, s{T}")
    a(f"v_bfe_u32 v{vt}, v0, 4, 1")
    a(f"v_lshl_add_u32 v{vd}, v{vt}, 1, v{vd}")
    a(f"v_lshrrev_b32 v{vt}, 5, v0")
    a(f"v_lshl_add_u32 v{vd}, v{vt}, 5, v{vd}")
    a(f"s_lshl_b32 s{T}, s{C_CG}, 7")
    a(f"v_and_b32 v{vt}, 7, v0")
    a(f"v_lshl_add_u32 v{vt}, v{vt}, 4, s{T}")
    a(f"v_lshl_add_u32 v{vd + 1}, v{vd}, 12, v{vt}")
    a(f"v_lshl_add_u32 v{vd}, v{vd}, 11, v{vt}")


def q_loads(a, vm):
    T = C_T + 1
    srd(a, C_B, P_Q, 4 << 20)
    a(f"s_movk_i32 s{T}, 8192")
    for i, (so, off) in enumerate((("0", 0), ("0", 2048), (f"s{T}", 0), (f"s{T}", 2048))):
        a(f"buffer_load_dwordx4 {vr(QR + 4 * i, 4)}, v{CV + 1}, s[{C_B}:{C_B + 3}], {so} offen offset:{off}{CFG['nt']}")
    vm.issue("q", 4)


def q_touch(a, vm):
    T, t = C_T, CV + 10
    srd(a, C_B, P_Q, 4 << 20)
    a(f"s_lshr_b32 s{T}, s2, 3")
    a(f"s_lshl2_add_u32 s{T}, s{T}, s{C_W}")
    a(f"s_lshl_b32 s{T}, s{T}, 7")
    a(f"s_lshr_b32 s{T + 1}, s{C_CG}, 1")
    a(f"s_add_u32 s{T}, s{T}, s{T + 1}")
    a(f"s_lshl_b32 s{T}, s{T}, 8")
    a(f"v_lshrrev_b32 v{t}, 1, v0")
    a(f"v_and_b32 v{t + 1}, 1, v0")
    a(f"v_lshlrev_b32 v{t + 1}, 7, v{t + 1}")
    a(f"v_lshl_add_u32 v{t}, v{t}, 11, v{t + 1}")
    a("s_mov_b32 exec_hi, 0")
    a(f"buffer_load_dword v{TV - 1}, v{t}, s[{C_B}:{C_B + 3}], s{T} offen")
    a("s_mov_b64 exec, -1")
    vm.issue("qt")


def wo_chip_touch(a, vm):
    T, t = C_T, CV + 10
    srd(a, C_B, P_WO, 2 << 20)
    a(f"s_lshl2_add_u32 s{T}, s2, s{C_W}")
    a(f"s_lshl_b32 s{T}, s{T}, 11")
    a(f"v_lshlrev_b32 v{t}, 7, v0")
    a("s_mov_b64 exec, 0xffff")
    a(f"buffer_load_dword v{TV - 1}, v{t}, s[{C_B}:{C_B + 3}], s{T} offen")
    a("s_mov_b64 exec, -1")
    vm.issue("wc")


def wo_touch(a, vm, k=0, n=1, mask=None):
    T, t = C_T, CV + 10
    srd(a, C_B, P_WO, 2 << 20)
    a(f"s_lshr_b32 s{T}, s2, 3")
    a(f"s_lshl2_add_u32 s{T}, s{T}, s{C_W}")
    a(f"s_bfe_u32 s{T + 1}, s2, 0x10002")
    a(f"s_lshl4_add_u32 s{T}, s{T}, s{T + 1}")
    a(f"s_lshl_b32 s{T}, s{T}, 10")
    a(f"v_lshrrev_b32 v{t}, 3, v0")
    a(f"v_and_b32 v{t + 1}, 7, v0")
    a(f"v_lshlrev_b32 v{t + 1}, 7, v{t + 1}")
    a(f"v_lshl_add_u32 v{t}, v{t}, 11, v{t + 1}")
    m = ((1 << (64 // n)) - 1) << (64 // n * k)
    if mask:
        m, n = mask, 2
    if n > 1:
        a(f"s_mov_b32 exec_lo, {m & 0xffffffff:#x}")
        a(f"s_mov_b32 exec_hi, {m >> 32:#x}")
    a(f"buffer_load_dword v{TV - 1}, v{t}, s[{C_B}:{C_B + 3}], s{T} offen{CFG['wtmod']}")
    if n > 1:
        a("s_mov_b64 exec, -1")
    vm.issue("wt")


def conv_reads(s, step):
    L = []
    for j in range(8):
        L.append(f"ds_read_b128 {vr(CBF + 32 * s + 4 * j, 4)}, v{AB} offset:{512 * (7 - j) + 64 * step}")
        for e in (0, 1):
            L.append(f"ds_read_b64 {vr(CA + 32 * s + 4 * j + 2 * e, 2)}, v{AA} offset:{512 * j + 64 * step + 8 * e}")
    return L


def conv_mfmas(s, order=None):
    order = CFG["cord"] if order is None else order
    if order == 0:
        P = [(j, cb - j) for cb in range(8) for j in range(cb + 1)]
    elif order == 1:
        P = [(j, i) for j in range(8) for i in (range(7 - j, -1, -1) if j % 2 == 0 else range(8 - j))]
    else:
        P = [(j, i) for i in range(8) for j in (range(7 - i, -1, -1) if i % 2 == 0 else range(8 - i))]
    return [mfma(CACC + 4 * (i + j), CA + 32 * s + 4 * j, CBF + 32 * s + 4 * i) for j, i in P]


def conv_init(a):
    T, t = C_T, CV + 10
    a(f"v_and_b32 v{t}, 1, v0")
    a(f"v_xor_b32 v{t}, 1, v{t}")
    a(f"v_mul_u32_u24 v{AA}, {H_COPY}, v{t}")
    a(f"v_mul_u32_u24 v{AB}, {U_COPY}, v{t}")
    a(f"v_bfe_u32 v{t}, v0, 1, 3")
    a(f"v_lshl_add_u32 v{AA}, v{t}, 3, v{AA}")
    a(f"v_xor_b32 v{t}, 7, v{t}")
    a(f"v_lshl_add_u32 v{AB}, v{t}, 6, v{AB}")
    a(f"v_lshrrev_b32 v{t}, 4, v0")
    a(f"v_lshl_add_u32 v{AA}, v{t}, 4, v{AA}")
    a(f"v_lshl_add_u32 v{AB}, v{t}, 4, v{AB}")
    a(f"v_add3_u32 v{AA}, v{AA}, s{C_HB}, 8")
    a(f"v_add_u32 v{AB}, s{C_UB}, v{AB}")
    a("s_waitcnt lgkmcnt(0)")
    a(f"s_bitcmp1_b32 s{C_CH}, 0")
    a(f"s_cselect_b32 s{T}, 0, 16")
    a(f"s_lshl_b32 s{C_D}, s{C_D}, s{T}")
    a(f"s_and_b32 s{C_D}, s{C_D}, 0xffff0000")
    a(f"v_and_b32 v{t + 1}, 1, v0")
    a(f"v_lshlrev_b32 v{t + 1}, 4, v{t + 1}")
    a(f"v_lshrrev_b32 v{t + 1}, v{t + 1}, s{C_D}")
    a(f"v_bfe_u32 v{t + 2}, v0, 1, 3")
    a(f"v_lshl_add_u32 v{t + 2}, v{t}, 1, v{t + 2}")
    a(f"v_cmp_eq_u32 vcc, 7, v{t + 2}")
    a(f"v_mov_b32 v{DF + 1}, 0")
    a(f"v_mov_b32 v{DF + 3}, 0")
    a(f"v_cndmask_b32 v{DF}, 0, v{t + 1}, vcc")
    a(f"v_cmp_eq_u32 vcc, 6, v{t + 2}")
    a(f"v_cndmask_b32 v{DF + 2}, 0, v{t + 1}, vcc")


def wo1_by_c(a, vm):
    T, t = C_T, CV + 10
    g2_cb(a, C_CB, T)
    wo_voffset(a, t + 1, C_CB, T, t + 2)
    srd(a, L_SRDX, P_WO, 2 << 20)
    a(f"s_mul_i32 s{T}, s{C_CB}, {CFG['rot2']}")
    a(f"s_and_b32 s{T}, s{T}, 7")
    a(f"s_lshl3_add_u32 s{L_SOX}, s{T}, s{C_W}")
    a(f"s_lshl_b32 s{L_SOX}, s{L_SOX}, 15")
    a(f"s_lshl_b32 s{L_BX}, s{C_W}, 11")
    if CFG["rev"]:
        a.extend(wo_dma(t + 1, L_SRDX, L_BX, L_SOX, [(wo_base(c) + 1024 * g, 64 * c + 8 * g) for c in range(5, 10) for g in (0, 1)]))
        vm.issue("wo1", 10)
        return
    spin_lds(a, CV + 3, F_EX, 4, t, T)
    n = CFG["cwo1"]
    a.extend(wo_dma(t + 1, L_SRDX, L_BX, L_SOX, [(wo_base(c) + 1024 * g, 64 * c + 8 * g) for c in range(10) for g in (0, 1)][:n]))
    vm.issue("wo1", n)


def conv_loop(a, st):
    T = C_T
    if CFG["holdex"]:
        spin_lds(a, CV + 3, F_EX, CFG["holdex"], CV + 10, T)
        a(f"s_setprio {CFG['prio_conv']}")
    a.extend(conv_reads(0, 0))
    a(f"s_setprio {CFG['prio_conv']}")
    if CFG["hold"] is not None:
        spin_lds(a, CV + 3, F_AT, 4, CV + 10, T)
    a(f"s_mov_b32 s{T}, 3")
    a("s_waitcnt lgkmcnt(0)")
    st.stamp(a, "conv")
    for cb in range(8):
        a(mfma(CACC + 4 * cb, DF, CBF + 4 * cb, "0"))
    if CFG["alc"] is not None:
        a.ins[-8:-8] = [Ins(".p2align 6")] + [Ins("s_nop 0")] * CFG["alc"]
    a.label("L_conv")
    a.extend(weave(conv_mfmas(0), conv_reads(1, 1) + ([f"s_cmp_lg_u32 s{T}, {CFG['qat']}"] if CFG["qat"] else [])))
    if CFG["qat"]:
        a("s_cbranch_scc1 L_conv_noq")
        q_loads(a, Q("vmcnt", 63))
        a.label("L_conv_noq")
    if CFG["cwo1"]:
        a(f"s_cmp_lg_u32 s{T}, 3")
        a("s_cbranch_scc1 L_conv_nowo")
        a(f"s_waitcnt vmcnt({4 if CFG['qat'] == 3 else 0})")
        lds_add(a, CV + 3, ONE, F_GGO)
        a.label("L_conv_nowo")
    a("s_waitcnt lgkmcnt(0)")
    a.extend(weave(conv_mfmas(1), conv_reads(0, 2) + [f"v_add_u32 v{AA}, 128, v{AA}", f"v_add_u32 v{AB}, 128, v{AB}",
                                                      f"s_sub_u32 s{T}, s{T}, 1", f"s_cmp_lg_u32 s{T}, 0"]))
    a("s_waitcnt lgkmcnt(0)")
    a("s_cbranch_scc1 L_conv")
    st.stamp(a, "cv6")
    b = Rec()
    t = CV + 10
    b(f"s_mul_i32 s{T}, s{C_CG}, {ZP}")
    b(f"s_and_b32 s{T + 1}, s{C_CH}, 63")
    if CFG["zb"]:
        b(f"s_lshl2_add_u32 s{T}, s{T + 1}, s{T}")
        b(f"s_lshl_b32 s{T}, s{T}, 6")
        b(f"v_and_b32 v{t}, 15, v0")
        b(f"v_lshl_add_u32 v{t}, v{t}, 4, s{T}")
        b(f"v_lshrrev_b32 v{t + 1}, 4, v0")
        b(f"v_mul_u32_u24 v{t + 1}, {4 * ZP}, v{t + 1}")
    else:
        b(f"s_add_u32 s{T}, s{T}, s{T + 1}")
        b(f"s_lshl_b32 s{T}, s{T}, 6")
        b(f"v_and_b32 v{t}, 3, v0")
        b(f"v_lshl_add_u32 v{t}, v{t}, 4, s{T}")
        b(f"v_and_b32 v{t + 1}, 12, v0")
        b(f"v_lshrrev_b32 v{t + 2}, 4, v0")
        b(f"v_add_u32 v{t + 1}, v{t + 1}, v{t + 2}")
        b(f"v_mul_u32_u24 v{t + 1}, {ZP}, v{t + 1}")
    b(f"v_add_u32 v{t}, v{t}, v{t + 1}")
    m6 = conv_mfmas(0, 0)
    k = CFG["zearly"]
    a.extend(weave(m6[:36 - k], conv_reads(1, 1) + b.items, per=2 if k else 1))
    a("s_waitcnt lgkmcnt(0)")
    if CFG["park"]:
        lds_add(a, CV + 3, ONE, F_CD)
    st.stamp(a, "cv7")


def conv_tail(a, st):
    T, t = C_T, CV + 10
    b = Rec()
    if not CFG["park"]:
        g2_cb(b, C_CB, T)
        wo_voffset(b, t + 1, C_CB, T, t + 2)
        srd(b, C_A, P_WO, 2 << 20)
        b(f"s_mul_i32 s{T}, s{C_CB}, {CFG['rot2']}")
        b(f"s_and_b32 s{T}, s{T}, 7")
        b(f"s_lshl1_add_u32 s{C_WOS}, s{T}, s{C_W}")
        b(f"s_lshl_b32 s{C_WOS}, s{C_WOS}, 17")
    b(f"s_lshl4_add_u32 s{C_SIG}, s{C_CG}, {CNT_Z}")
    b(f"s_add_u32 s{C_KW}, s{C_SIG}, s{C_M}")
    b(f"s_lshl_b32 s{C_SIG}, s{C_SIG}, 8")
    b(f"s_lshl_b32 s{C_KW}, s{C_KW}, 8")
    P = CA
    M = [[m, []] for m in conv_mfmas(1, 0)]
    k6 = CFG["zearly"]
    if k6:
        P = 176
        M[36 - k6:36 - k6] = [[m, []] for m in conv_mfmas(0, 0)[36 - k6:]]
    for k, x in enumerate(b.items):
        M[k // 2][0] += "\n" + x
    for cb in range(8):
        last = (cb + 1) * (cb + 2) // 2 - 1
        if last >= 36 - k6:
            last += k6
        M[last][1] += cvt2(P + 2 * cb, CACC + 4 * cb)
        if cb & 1 and not CFG.get("x_nozst"):
            p = cb >> 1
            M[last][1] += [f"s_mov_b32 s{T + 2}, {16 * ZP * p}",
                           f"buffer_store_dwordx4 {vr(P + 4 * p, 4)}, v{t}, s[{C_WS}:{C_WS + 3}], s{T + 2} offen{CFG['zst']}"]
    lag_weave(a, M, lag=8, per=2)
    a(f"s_setprio {CFG['prio_ct']}")
    st.stamp(a, "zst")
    w2 = [(1024 * g, 640 + 8 * g) for g in range(8)]
    if CFG.get("x_nowo2") or CFG["park"]:
        w2 = []
    n2 = CFG["wo2"]
    a.extend(wo_dma(t + 1, C_A, C_HB, C_WOS, w2[:n2]))
    a(f"s_waitcnt vmcnt({n2})")
    st.stamp(a, "zstd")
    QU = CBF

    def between(a):
        if CFG["qtail"] == 1:
            q_loads(a, Q("vmcnt", 63))
            a("s_waitcnt vmcnt(0)")
        for r in range(4 if CFG["qtail"] < 2 else 0):
            for d in range(4):
                unpack(a, QU + 8 * r + 2 * d, QU + 8 * r + 2 * d + 1, QR + 4 * r + d)
        if CFG["wo2nap"]:
            a(f"s_sleep {CFG['wo2nap']}")
        a(f"s_setprio {CFG['prio_w2']}")
        a.extend(wo_dma(t + 1, C_A, C_HB, C_WOS, w2[n2:]))
        if w2:
            a(f"s_cmp_ge_u32 s{C_W}, 2")
            a("s_cbranch_scc1 L_nowo3")
            a.extend(wo_dma(t + 1, C_A, C_UB, C_WOS, [(1024 * g, 896 + 8 * g) for g in range(8)]))
            a.label("L_nowo3")
        a(f"s_setprio {CFG['prio_ct']}")
        a(f"s_mul_i32 s{T + 3}, s{C_W}, {POST_PITCH}")
        a(f"s_add_u32 s{T + 3}, s{T + 3}, {POST_ST}")
        a(f"v_lshrrev_b32 v{t}, 5, v0")
        a(f"v_lshl_add_u32 v{t}, v{t}, 1, v0")
        a(f"v_lshl_add_u32 v{t}, v{t}, 4, s{T + 3}")
        a(f"v_and_b32 v{t + 1}, 7, v0")
        a(f"v_mul_u32_u24 v{t + 1}, 544, v{t + 1}")
        a(f"v_lshrrev_b32 v{t + 2}, 3, v0")
        a(f"v_lshl_add_u32 v{t + 1}, v{t + 2}, 3, v{t + 1}")
        a(f"v_add_u32 v{t + 1}, s{T + 3}, v{t + 1}")
        if CFG["zb"]:
            a(f"s_lshr_b32 s{T + 3}, s{C_CH}, 2")
            a(f"s_mul_i32 s{T + 3}, s{T + 3}, {4 * ZP // 64}")
            a(f"s_add_u32 s{T + 3}, s{T + 3}, s{C_W}")
            a(f"s_lshl_b32 s{T + 3}, s{T + 3}, 6")
            a(f"v_lshrrev_b32 v{t + 2}, 2, v0")
            a(f"v_mul_u32_u24 v{t + 2}, 192, v{t + 2}")
            a(f"v_add_u32 v{CV}, v{CV}, v{t + 2}")
        else:
            a(f"s_mul_i32 s{T + 3}, s{C_CH}, {ZP}")
        srd(a, C_B, P_OUT, 8 << 20)
        if not CFG["cpollfirst"]:
            after(a)

    def after(a):
        if CFG["park"]:
            return
        a("s_waitcnt vmcnt(0)")
        lds_add(a, CV + 3, ONE, F_WO2)

    join_signal_wait(a, CV + 3, F_CJOIN, F_CGO, C_SIG, C_KW, t + 3, T, between, after=after if CFG["cpollfirst"] else None)
    st.stamp(a, "zflag")
    if CFG.get("x_nopost"):
        return
    if CFG["zhold"] is not None and not CFG["shold"]:
        spin_lds(a, CV + 3, F_GZ, 1, t + 3, T)
    Z = CA
    for i in range(4):
        a(f"buffer_load_dwordx4 {vr(Z + 4 * i, 4)}, v{CV}, s[{C_WS}:{C_WS + 3}], s{T + 3} offen offset:{0 if CFG['zb'] else 1024 * i}{CFG['zld']}")
        if CFG["zb"]:
            a(f"s_add_u32 s{T + 3}, s{T + 3}, 4096")
    nq = 4 if CFG["qtail"] == 2 else 0
    if nq:
        q_loads(a, Q("vmcnt", 63))
        srd(a, C_B, P_OUT, 8 << 20)
    for i in range(4):
        a(f"s_waitcnt vmcnt({3 - i + nq})")
        a(f"ds_write_b128 v{t}, {vr(Z + 4 * i, 4)} offset:{1088 * i}")
    st.stamp(a, "zld")
    for j in range(8):
        a(f"ds_read_b64 {vr(Z + 16 + 2 * j, 2)}, v{t + 1} offset:{64 * j}")
    ZU = CACC
    for j in range(8):
        a(f"s_waitcnt lgkmcnt({7 - j})")
        for e in (0, 1):
            unpack(a, ZU + 8 * (2 * e) + j, ZU + 8 * (2 * e + 1) + j, Z + 16 + 2 * j + e)
    for r in range(nq):
        a(f"s_waitcnt vmcnt({3 - r})")
        for d in range(4):
            unpack(a, QU + 8 * r + 2 * d, QU + 8 * r + 2 * d + 1, QR + 4 * r + d)
    for r, ro in enumerate((0, 1, 4, 5)):
        for j in range(8):
            a(f"v_mul_f32 v{ZU + 8 * r + j}, v{ZU + 8 * r + j}, v{QU + 8 * r + j}")
        for d in range(4):
            a(f"v_cvt_pk_bf16_f32 v{Z + 4 * r + d}, v{ZU + 8 * r + 2 * d}, v{ZU + 8 * r + 2 * d + 1}")
        if not CFG["shold"]:
            a(f"s_mov_b32 s{T}, {4096 * ro}")
            a(f"buffer_store_dwordx4 {vr(Z + 4 * r, 4)}, v{CV + 2}, s[{C_B}:{C_B + 3}], s{T} offen{CFG.get('osta', CFG['ost'])}")
    if CFG["shold"]:
        spin_lds(a, CV + 3, F_GZ, CFG["shold"], t + 3, T)
        for r, ro in enumerate((0, 1, 4, 5)):
            a(f"s_mov_b32 s{T}, {4096 * ro}")
            a(f"buffer_store_dwordx4 {vr(Z + 4 * r, 4)}, v{CV + 2}, s[{C_B}:{C_B + 3}], s{T} offen{CFG.get('osta', CFG['ost'])}")


def c_role(a, st):
    K = 1 << CFG["stagbits"]
    vm = MQ(K, C_STG)
    T = C_T
    loader_setup(a)
    touch_setup(a)
    a("s_waitcnt lgkmcnt(0)")
    srd(a, L_SRDX, P_X, 4 << 20)
    srd(a, L_SRDW, P_W, 6 << 20)
    a(f"s_setprio {CFG['prio_c1']}")
    st.stamp(a, "karg")
    c_setup(a)
    if CFG["cearly"]:
        q_addr(a)
        conv_init(a)
    if CFG["bpre"]:
        a("s_barrier")
    st.stamp(a, "cgo")

    def sig_kv(k):
        def f(a, vm):
            skip = uid("sig")
            a(f"s_bfe_u32 s{T}, s2, 0x20003")
            a(f"s_lshl2_add_u32 s{T}, s{T}, s{C_W}")
            a(f"s_cmp_lg_u32 s{T}, {4 * k}")
            a(f"s_cbranch_scc1 {skip}")
            srd(a, C_B, P_DBG, 256)
            a(f"s_and_b32 s{T}, s2, 3")
            a(f"s_lshl_b32 s{T}, s{T}, 6")
            a("s_mov_b64 exec, 1")
            a(f"buffer_atomic_add v{ONE}, off, s[{C_B}:{C_B + 3}], s{T} sc1")
            a("s_mov_b64 exec, -1")
            a.label(skip)
        return f

    def pld(a, vm):
        for j in range(4):
            a(f"s_load_dword s{4 + j}, s[{P_DBG}:{P_DBG + 1}], {64 * j}")

    def pchk(a, vm):
        done, loop = uid("pc_done"), uid("pc_loop")
        a(f"s_cmp_lg_u32 s{C_W}, 0")
        a(f"s_cbranch_scc1 {done}")
        a("s_waitcnt lgkmcnt(0)")
        a("s_min_u32 s4, s4, s5")
        a("s_min_u32 s6, s6, s7")
        a("s_min_u32 s4, s4, s6")
        a("s_cmp_ge_u32 s4, 64")
        a(f"s_cbranch_scc1 {done}")
        srd(a, C_B, P_DBG, 256)
        a(f"v_lshlrev_b32 v20, 6, v0")
        a(f"s_mov_b32 s{T}, {SPIN_MAX}")
        a("s_mov_b64 exec, 0xf")
        a.label(loop)
        a(f"buffer_load_dword v21, v20, s[{C_B}:{C_B + 3}], 0 offen sc1")
        a("s_waitcnt vmcnt(0)")
        a("v_cmp_gt_u32 vcc, 64, v21")
        a(f"s_cbranch_vccz {done}")
        a("s_sleep 4")
        a(f"s_sub_u32 s{T}, s{T}, 1")
        a(f"s_cbranch_scc0 {loop}")
        a.label(done)
        a("s_mov_b64 exec, -1")

    def s15(a, vm):
        vm.wait(a, ("S", 15))
        lds_add(a, CV + 3, ONE, F_S15)

    def only(k, fs):
        def f(a, vm):
            skip = uid("stg")
            a(f"s_cmp_lg_u32 s{C_STG}, {k}")
            a(f"s_cbranch_scc1 {skip}")
            vm.only = k
            for g in fs:
                g(a, vm)
            vm.only = None
            a.label(skip)
        return f

    def krd(a, vm):
        pre_tile(a, T, T + 1, C_W, T + 2)
        kvt_addr(a, 20, C_HB, T, T + 1, T + 2, C_A)
        kvt_read(a, 20, 24)

    def kst(a, vm):
        a("s_waitcnt lgkmcnt(0)")
        kvt_store(a, 20, 24, T, C_A)
        vm.issue("kst", 4)

    W = lambda *tags: (lambda a, vm: vm.wait(a, *tags))
    A = lambda f, *x: (lambda a, vm: f(a, *x))
    items = dict(s15=s15, pld=pld, pchk=pchk, sig0=sig_kv(0), sig1=sig_kv(1), sig2=sig_kv(2), sig3=sig_kv(3),
                 u=u_loads, h=h_loads, h0=h_piece(0), h1=h_piece(1), h2=h_piece(2), h3=h_piece(3), q=q_loads, wt=wo_touch, wo1=wo1_by_c, wc=wo_chip_touch, w3=lambda a, vm: wo_touch(a, vm, mask=0x0808080808080808),
                 wook=lambda a, vm: (vm.wait(a, "wo1"), lds_add(a, CV + 3, ONE, F_GGO)), qt=q_touch, hfill=A(h_fill), ufill=A(u_fill), cinit=A(conv_init), cts=A(ctouch_setup), qa=A(q_addr),
                 wh=W("h"), wu=W("u"), wwt=W("wt"), wq=W("q"), stm=lambda a, vm: st.stamp(a, "x"),
                 w4=lambda a, vm: a("s_waitcnt vmcnt(4)"), w2=lambda a, vm: a("s_waitcnt vmcnt(2)"), krd=krd, kst=kst, wst=W("kst"))

    def get(name):
        if "@" in name:
            n, k = name.split("@")
            return only(int(k), [get(x) for x in n.split("+")])
        if name[:2] == "wt" and "/" in name:
            return lambda a, vm: wo_touch(a, vm, *map(int, name[2:].split("/")))
        if name[:2] == "sq":
            k0, k1 = map(int, name[2:].split("-"))

            def fq(a, vm):
                a(f"v_readfirstlane_b32 s{T}, v{CV + 1}")
                for k in range(k0, k1):
                    a(f"s_load_dwordx2 s[90:91], s[{P_Q}:{P_Q + 1}], s{T} offset:{2048 * (256 * (k >> 4) + 32 * ((k >> 3) & 1) + (k & 7)) + 60}")
            return fq
        if name[:2] == "sw":
            k0, k1 = map(int, name[2:].split("-"))

            def f(a, vm):
                a(f"s_lshl2_add_u32 s{T}, s2, s{C_W}")
                a(f"s_lshl_b32 s{T}, s{T}, 11")
                for k in range(k0, k1):
                    a(f"s_load_dwordx2 s[90:91], s[{P_WO}:{P_WO + 1}], s{T} offset:{128 * k + 60}")
            return f
        if name[:2] in ("sh", "su"):
            k0, k1 = map(int, name[2:].split("-"))
            ptr, so = (P_H, C_HO) if name[1] == "h" else (P_WS, C_UO)
            return lambda a, vm: [a(f"s_load_dwordx2 s[90:91], s[{ptr}:{ptr + 1}], s{so} offset:{128 * k + 60}") for k in range(k0, k1)]
        if name.startswith("ct") and "-" in name:
            s0, s1 = map(int, name[2:].split("-"))
            return lambda a, vm: ctouch(a, vm, s0, s1 - s0, L_SRDX, L_SRDW)
        if name.startswith("tb"):
            return lambda a, vm: touch_batch(a, vm, *map(int, name[2:].split("-")), L_SRDX, L_SRDW)
        return items[name]

    todo = [(("S", t), g) for t in range(NSTAGE) for g in loader_groups(t)]
    pos = [0]

    def issue_to(n):
        while CFG["sub"] and pos[0] < min(n, len(todo)):
            a(f"s_call_b64 s[{L_RET}:{L_RET + 1}], L_stage")
            vm.issue(todo[pos[0]][0], 11)
            pos[0] += 11
        while pos[0] < min(n, len(todo)):
            tag, (p1, p2) = todo[pos[0]]
            a.extend(p1)
            a.extend(p2)
            vm.issue(tag)
            pos[0] += 1

    if CFG.get("x_noconv"):
        global conv_mfmas
        conv_mfmas = lambda s_: ["s_nop 0"] * 36
    for t in range(-1, 15 + CFG['rev']):
        if t >= 0:
            vm.wait(a, ("S", t))
            a("s_barrier")
            st.stamp(a, f"B{t}")
        pre, _, post = CFG["sched"].get(t, "").partition("|")
        for x in pre.split():
            get(x)(a, vm)
        issue_to(11 * (t + 3) - CFG["debt"].get(t, 0))
        for x in post.split():
            get(x)(a, vm)
    st.stamp(a, "uh")
    a(f"s_setprio {CFG['prio_cs']}")
    for x in CFG["late"].split():
        get(x)(a, vm)
    conv_loop(a, st)
    conv_tail(a, st)
    st.stamp(a, "st")
    if st.on:
        a("s_waitcnt vmcnt(0)")
    st.flush(a, S_WG, S_WAVE)
    a("s_endpgm")


def build(stamps=False, verbose=False, probe=None, **cfg):
    CFG.clear()
    CFG.update(BASE)
    CFG.update(cfg)
    reset_uid()
    NAP[0] = CFG['nap']
    a = Asm()
    st = SkewProbe(*probe) if probe else (LightStamps(CFG.get('clk', 's_memrealtime')) if stamps else Stamps(False))
    a("L_entry:")
    a("s_getpc_b64 s[32:33]")
    a("s_cmp_ge_u32 s2, 256")
    a("s_cbranch_scc1 L_end")
    st.start(a)
    load_ptrs(a)
    decode_ids(a)
    a(f"s_cmp_ge_u32 s{S_WAVE}, 4")
    a("s_cbranch_scc1 L_crole")
    gvm = Q("vmcnt", 63)
    st.role(0)
    g_entry(a, gvm, st)
    if CFG["sub"]:
        loader_sub(a)
    a.label("L_crole")
    st.role(4)
    c_role(a, st)
    a.label("L_grole")
    st.role(0)
    g_role(a, st, gvm)
    a.label("L_end")
    a("s_endpgm")
    body = a.finish(verbose)
    txt = build_file([(NAME + "_kernel", body, 256, 512, LDS_BYTES, 256)])
    if stamps and not probe:
        txt += "".join(f"; stamps{w}: " + " ".join(n) + "\n" for w, n in st.names.items())
    return txt, a.padded


def variants(d, stamps=True):
    for n, cfg in d.items():
        cfg = dict(cfg)
        if "sched" in cfg and not cfg.pop("full", 0):
            cfg["sched"] = {**BASE["sched"], **cfg["sched"]}
        open(f"{DEV}/v_{n}.s", "w").write(build(stamps=stamps, **cfg)[0])
    print(" ".join(f"v_{n}.s" for n in d))


if __name__ == "__main__":
    open(DEV + "/k_st.s", "w").write(build(stamps=True, verbose="-v" in sys.argv)[0])
    s, p = build()
    open(DEV + "/k.s", "w").write(s)
    print("padded", p)
    if "install" in sys.argv:
        open(DEV + f"/../{NAME}.s", "w").write(s)
```

```python
SPIN_MAX = 1 << 17
_uid = [0]
NAP = [1]


def reset_uid():
    _uid[0] = 0


def uid(p):
    _uid[0] += 1
    return f"L_{p}_{_uid[0]}"


class Q:
    def __init__(self, name, cap):
        self.name, self.cap, self.ops = name, cap, []

    def issue(self, tag, n=1):
        self.ops += [tag] * n

    def need(self, *tags):
        last = max((i for i, t in enumerate(self.ops) if t in tags), default=-1)
        if last < 0:
            return None
        n = len(self.ops) - 1 - last
        self.ops = self.ops[last + 1:]
        assert n <= self.cap, (self.name, n)
        return n

    def wait(self, a, *tags):
        n = self.need(*tags)
        if n is not None:
            a(f"s_waitcnt {self.name}({n})")

    def drained(self):
        self.ops = []


class MQ:
    def __init__(self, k, sreg):
        self.q, self.sreg, self.only = [Q("vmcnt", 63) for _ in range(k)], sreg, None

    def issue(self, tag, n=1):
        for i, q in enumerate(self.q):
            if self.only is None or self.only == i:
                q.issue(tag, n)

    def wait(self, a, *tags):
        ns = [q.need(*tags) for q in self.q]
        vals = sorted({n for n in ns if n is not None}, reverse=True)
        if not vals:
            return
        done = uid("mw")
        for j, v in enumerate(vals):
            a(f"s_waitcnt vmcnt({v})")
            if j + 1 < len(vals):
                mask = sum(1 << i for i, n in enumerate(ns) if n is None or n >= v)
                a(f"s_bitcmp1_b32 {mask}, s{self.sreg}")
                a(f"s_cbranch_scc1 {done}")
        if len(vals) > 1:
            a.label(done)


class Rec:
    def __init__(self):
        self.items = []

    def __call__(self, t):
        self.items.append(t)

    def label(self, n):
        self.items.append(n + ":")

    def extend(self, L):
        self.items += list(L)

    def issue(self, tag, n=1):
        self.items.append(("issue", tag, n))

    def wait(self, a, *tags):
        self.items.append(("wait", tags))

    def groups(self):
        it = self.items
        txt = [x if isinstance(x, str) else "" for x in it]
        reads_scc = lambda t: t.startswith(("s_addc", "s_subb", "s_cselect", "s_cbranch_scc"))
        keeps_scc = lambda t: not t.startswith("s_") or t.startswith(("s_mov", "s_movk", "s_waitcnt", "s_mul_i32", "s_load", "s_nop", "s_sleep", "s_mem"))
        labels = {t[:-1]: i for i, t in enumerate(txt) if t.endswith(":")}
        nosplit = [False] * (len(it) + 1)
        for i, t in enumerate(txt):
            if t.startswith(("s_cbranch", "s_branch")):
                j = labels[t.split()[1]]
                for k in range(min(i, j) + 1, max(i, j) + 1):
                    nosplit[k] = True
        full = True
        for i, t in enumerate(txt):
            if not full:
                nosplit[i] = True
            if " exec" in t and t.startswith("s_mov"):
                full = t == "s_mov_b64 exec, -1"
            if isinstance(it[i], tuple) and it[i][0] == "issue":
                nosplit[i] = True
            j = i
            while j < len(txt) and keeps_scc(txt[j]) and not reads_scc(txt[j]):
                j += 1
            if j < len(txt) and reads_scc(txt[j]):
                nosplit[i] = True
            if " m0," in t:
                j = i + 1
                while " lds" not in txt[j]:
                    j += 1
                for k in range(i + 1, j + 1):
                    nosplit[k] = True
        G, cur = [], []
        for i, x in enumerate(it):
            if cur and not nosplit[i]:
                G.append(cur)
                cur = []
            cur.append(x)
        if cur:
            G.append(cur)
        return G


def emit(a, vm, grp):
    n_vm = 0
    for x in grp:
        if isinstance(x, str):
            a(x)
        elif x[0] == "issue":
            vm.issue(x[1], x[2])
        else:
            vm.wait(a, *x[1])


def weave_stage(a, vm, tag, D, rec):
    G = rec.groups()
    has_m0 = lambda g: any(isinstance(x, str) and " m0," in x for x in g)
    total = sum(len(g) for g in G)
    done, gi = 0, 0
    for k, (p1, p2) in enumerate(D):
        quota = total * k // len(D)
        while gi < len(G) and done + len(G[gi]) // 2 < quota and (p1 or not has_m0(G[gi])):
            emit(a, vm, G[gi])
            done += len(G[gi])
            gi += 1
        a.extend(p1)
        a.extend(p2)
        vm.issue(tag)
    while gi < len(G):
        emit(a, vm, G[gi])
        gi += 1


def lag_weave(a, M, lag, per):
    from asmlib import Ins
    q = []
    for m, f in M:
        mi = Ins(m.split("\n")[0])
        dep = -1
        for k, (_, x) in enumerate(q):
            for line in x.split("\n"):
                xi = Ins(line)
                if mi.r & xi.w or mi.w & (xi.r | xi.w):
                    dep = k
        for _ in range(dep + 1):
            a(q.pop(0)[1])
        a(m)
        q += [(len(a.ins) + lag, x) for x in f]
        n = 0
        while q and n < per and q[0][0] <= len(a.ins):
            a(q.pop(0)[1])
            n += 1
    for _, x in q:
        a(x)


def spin_scalar(a, base, soff, want, st, first=True):
    done, loop, chk = uid("sg_done"), uid("sg_loop"), uid("sg_chk")
    a(f"s_mov_b32 s{st + 1}, {SPIN_MAX}")
    if not first:
        a(f"s_branch {chk}")
    a.label(loop)
    a(f"s_load_dword s{st}, s[{base}:{base + 1}], {soff} glc")
    a.label(chk)
    a("s_waitcnt lgkmcnt(0)")
    a(f"s_cmp_ge_u32 s{st}, {want}")
    a(f"s_cbranch_scc1 {done}")
    a(f"s_sub_u32 s{st + 1}, s{st + 1}, 1")
    a(f"s_cbranch_scc0 {loop}")
    a.label(done)


def spin_vector(a, srd_, soff, want, vt, st):
    done, loop = uid("sv_done"), uid("sv_loop")
    a(f"s_mov_b32 s{st + 1}, {SPIN_MAX}")
    a("s_mov_b64 exec, 1")
    a.label(loop)
    a(f"buffer_load_dword v{vt}, off, s[{srd_}:{srd_ + 3}], {soff} sc1")
    a("s_waitcnt vmcnt(0)")
    a(f"v_readfirstlane_b32 s{st}, v{vt}")
    a(f"s_cmp_ge_u32 s{st}, {want}")
    a(f"s_cbranch_scc1 {done}")
    a(f"s_sub_u32 s{st + 1}, s{st + 1}, 1")
    a(f"s_cbranch_scc0 {loop}")
    a.label(done)
    a("s_mov_b64 exec, -1")


def spin_lds(a, va, off, want, vt, st, first=True):
    done, loop = uid("sl_done"), uid("sl_loop")
    if not first:
        a(f"v_readfirstlane_b32 s{st}, v{vt}")
        a(f"s_cmp_ge_u32 s{st}, {want}")
        a(f"s_cbranch_scc1 {done}")
    a(f"s_mov_b32 s{st + 1}, {SPIN_MAX * 8}")
    a.label(loop)
    a(f"ds_read_b32 v{vt}, v{va} offset:{off}")
    a("s_waitcnt lgkmcnt(0)")
    a(f"v_readfirstlane_b32 s{st}, v{vt}")
    a(f"s_cmp_ge_u32 s{st}, {want}")
    a(f"s_cbranch_scc1 {done}")
    a(f"s_sleep {NAP[0]}")
    a(f"s_sub_u32 s{st + 1}, s{st + 1}, 1")
    a(f"s_cbranch_scc0 {loop}")
    a.label(done)
```

```python
import sys
from common import *
from ksched import *

STAGE = 41984
X_HALO, W_OFF, NSTAGE = 16384, 17408, 16
LDS_BYTES = 163840
EX = (STAGE + 36864, 3 * STAGE + 33792)
H_REG, H_PITCH, H_COPY = 3 * STAGE, 8448, 4224
U_REG, U_PITCH, U_COPY = STAGE, 9216, 4576
FLAGS = H_REG + 8400
F_GJOIN, F_GGO, F_CJOIN, F_WO2, F_CGO, F_EX, F_S15, F_AT, F_WO1, F_CD, F_GZ = 0, 4, 8, 12, 16, 20, 24, 28, 32, 36, 40
FULLW, FREEW = FLAGS + H_PITCH, X_HALO
POST_ST, POST_PITCH = STAGE + 2 * U_PITCH, 4352
WS_O, WS_KV, WS_Z, WS_CNT = 0, 4 << 20, 9 << 20, 14 << 20
KVP = ZP = 4224
CNT_O, CNT_Z, NCNT = 0, 256, 512

BASE = dict(stat=None, rsamp=(), ring=0, zearly=0, rev=0, stagpos=3, ctn=4, g2tail=0, park0=0, parkpre=0, alc=None, al=15, smf=1, noswap=0, wend=0, shold=0, stb0=1, cearly=0, sub=0, qtail=0, zhold=None, presample=4, park=1, parkat=(4, 2), cord=0, g2serp=0, dmod='', serp=1, kx=None, zb=0, pmap=0, wx3=1, wnt=0, xnt=0, xmod=' nt', wtmod='', cwo1=0, cpollfirst=0, sigfirst=0, wo1a=10, prio_av=2, prio_j=2, tight=1, nap=1, pd=8, nfx=1, wo2=0, wo2nap=0, prio_w2=1, zld=' sc1', uld=' sc1', zst=' sc1', kst=' sc1', zloc=0, pollfirst=1, woat=20, woatp=(40, 2), cgx=2, rep=1, holdex=0, oblds=1, debt={}, pm=4, qat=0, hold=None, latesetup=0, cst=0, ospec=0, ilv=1, wxcd=0, bpre=0, b0early=0, drain=4, rot2=4, wo0=0, depth=6, ushift=1,
            prio_g1=2, prio_c1=0, prio_cs=3, prio_at=2, prio_g2=0, prio_conv=1, prio_ct=1, prio_wo=0, wper=4, d0=6,
            nt=" nt", hmod="", ost=" nt", stagbits=1, codepf=1, tb1=None, late="wu wt wh hfill",
            sched={-1: "tb0-4|qa cinit", 1: "|tb4-8", 3: "|tb8-12@0", 4: "|tb8-12@1 sig0 sh0-4", 5: "|sig1 sh4-8", 6: "|sig2 sh8-12",
                   7: "|tb12-16@0 sig3 sh12-16", 8: "|tb12-16@1 sh16-20", 9: "|sh20-24", 10: "|sh24-28", 11: "|sh28-32",
                   13: "pld|q pchk", 14: "s15 u h ufill"})
CFG = dict(BASE)

S_WG, S_WAVE, S_PAR, S_RB, S_HP, S_T0 = 2, 3, 4, 5, 6, 7
S_CNT = 52


def wo_base(c):
    if c < 5:
        return 8192 * c
    if c < 10:
        return 2 * STAGE + 8192 * (c - 5)
    return H_REG + H_PITCH * (c - 10) if c < 14 else U_REG + U_PITCH * (c - 14)


def decode_ids(a):
    a("v_lshrrev_b32 v1, 6, v0")
    a(f"s_and_b32 s{S_PAR}, s2, 1")
    a(f"v_readfirstlane_b32 s{S_WAVE}, v1")
    a("v_and_b32 v0, 63, v0")
    a(f"s_bfe_u32 s{S_RB}, s2, 0x30003")
    a(f"s_bfe_u32 s{S_HP}, s2, 0x20001")
    a(f"s_lshr_b32 s{S_T0}, s2, 6")
    a(f"s_lshl2_add_u32 s{S_HP}, s{S_HP}, s{S_T0}")


def unpack(a, dlo, dhi, src):
    a(f"v_lshlrev_b32 v{dlo}, 16, v{src}")
    a(f"v_and_b32 v{dhi}, 0xffff0000, v{src}")


def cvt2(dst, src):
    return [f"v_cvt_pk_bf16_f32 v{dst}, v{src}, v{src + 1}", f"v_cvt_pk_bf16_f32 v{dst + 1}, v{src + 2}, v{src + 3}"]


def lds_add(a, va, vone, off):
    a("s_mov_b64 exec, 1")
    a(f"ds_add_u32 v{va}, v{vone} offset:{off}")
    a("s_mov_b64 exec, -1")


def join_signal_wait(a, va, f_join, f_go, s_sig, s_wait, vt, st, between=None, want=16, after=None, sampled=False):
    other, done = uid("jo"), uid("jd")
    a(f"v_mov_b32 v{vt + 1}, 1")
    a("s_mov_b64 exec, 1")
    a(f"ds_add_rtn_u32 v{vt}, v{va}, v{vt + 1} offset:{f_join}")
    a("s_waitcnt lgkmcnt(0)")
    a(f"v_readfirstlane_b32 s{st + 2}, v{vt}")
    a(f"s_cmp_eq_u32 s{st + 2}, 3")
    a(f"s_cbranch_scc0 {other}a")
    a("s_mov_b64 exec, 0xffff")
    a(f"v_lshlrev_b32 v{vt}, 8, v0")
    a(f"buffer_atomic_add v{vt + 1}, v{vt}, s[{S_CNT}:{S_CNT + 3}], s{s_sig} offen sc1")
    a.label(other + "a")
    a("s_mov_b64 exec, -1")
    if between:
        between(a)
    a(f"s_cmp_eq_u32 s{st + 2}, 3")
    a(f"s_cbranch_scc0 {other}")
    spin_scalar(a, S_CNT, f"s{s_wait}", 16, st, first=not sampled)
    a(f"v_mov_b32 v{vt}, 16")
    lds_add(a, va, vt, f_go)
    if want == 16 and not after:
        a(f"s_branch {done}")
    a.label(other)
    if after:
        after(a)
    spin_lds(a, va, f_go, want, vt, st)
    a.label(done)


TV = 251
TS = 88


def touch_setup(a, t=90):
    a(f"s_lshr_b32 s{t}, s2, 3")
    a(f"s_and_b32 s{t + 1}, s{S_WAVE}, 3")
    a(f"s_lshl2_add_u32 s{t}, s{t}, s{t + 1}")
    a(f"s_and_b32 s{t + 1}, s2, 6")
    a(f"s_lshl3_add_u32 s{TS}, s{t}, s{t + 1}")
    a(f"s_lshl1_add_u32 s{TS}, s{TS}, s{S_PAR}")
    a(f"s_lshl_b32 s{TS}, s{TS}, 11")
    a(f"s_and_b32 s{TS + 1}, s2, 7")
    a(f"s_and_b32 s{t + 1}, s{t}, 1")
    a(f"s_lshl1_add_u32 s{TS + 1}, s{TS + 1}, s{t + 1}")
    a(f"s_lshr_b32 s{t}, s{t}, 1")
    a(f"s_mul_i32 s{t}, s{t}, 48")
    a(f"s_add_u32 s{TS + 1}, s{TS + 1}, s{t}")
    a(f"s_lshl_b32 s{TS + 1}, s{TS + 1}, 7")
    a(f"v_and_b32 v{TV}, 1, v0")
    a(f"v_lshlrev_b32 v{TV}, 12, v{TV}")
    a(f"v_lshrrev_b32 v{TV + 1}, 1, v0")
    a(f"v_lshl_add_u32 v{TV}, v{TV + 1}, 7, v{TV}")
    a(f"v_lshrrev_b32 v{TV - 1}, 2, v0")
    a(f"v_mul_u32_u24 v{TV - 1}, {64 * 6144}, v{TV - 1}")
    a(f"v_and_b32 v{TV + 1}, 3, v0")
    a(f"v_lshl_add_u32 v{TV + 1}, v{TV + 1}, 11, v{TV - 1}")


def touch_batch(a, vm, s0, s1, sx, sw):
    mx = sum(3 << (2 * i) for i in range(s0, s1))
    mw = sum(7 << (4 * i) for i in range(s0, s1))
    wm = " nt" if s0 < CFG["wnt"] else ""
    a(f"s_mov_b32 exec_lo, {mw & 0xffffffff:#x}")
    a(f"s_mov_b32 exec_hi, {mw >> 32:#x}")
    a(f"buffer_load_dword v{TV - 1}, v{TV + 1}, s[{sw}:{sw + 3}], s{TS + 1} offen{wm}")
    if CFG["wx3"]:
        skip = uid("wx3")
        a.ins.pop()
        a(f"s_bfe_u32 s{S_T0}, s{TS + 1}, 0x30007")
        a(f"s_cmp_lg_u32 s{S_T0}, 1")
        a(f"s_cbranch_scc1 {skip}")
        a(f"buffer_load_dword v{TV - 1}, v{TV + 1}, s[{sw}:{sw + 3}], s{TS + 1} offen offset:256")
        a.label(skip)
        a(f"buffer_load_dword v{TV - 1}, v{TV + 1}, s[{sw}:{sw + 3}], s{TS + 1} offen")
    if CFG["wxcd"]:
        a(f"s_xor_b32 s{TS + 1}, s{TS + 1}, 256")
        a(f"buffer_load_dword v{TV - 1}, v{TV + 1}, s[{sw}:{sw + 3}], s{TS + 1} offen{wm}")
        a(f"s_xor_b32 s{TS + 1}, s{TS + 1}, 256")
    a(f"s_mov_b32 exec_lo, {mx:#x}")
    a("s_mov_b32 exec_hi, 0")
    xx = s0 < CFG["xnt"]
    for k in range(4 if xx else 1):
        a(f"buffer_load_dword v{TV - 1}, v{TV}, s[{sx}:{sx + 3}], s{TS} offen{CFG['xmod'] if xx else ''}")
        if xx:
            a(f"s_xor_b32 s{TS}, s{TS}, {(8192, 16384, 8192, 16384)[k]}")
    a("s_mov_b64 exec, -1")
    vm.issue("tb", 2 + CFG["wxcd"] + 3 * xx)


def ctouch_setup(a):
    n = CFG["ctn"]
    a(f"s_lshr_b32 s{S_T0}, s2, 6")
    a(f"s_mul_i32 s90, s{S_T0}, {256 * 4096}")
    a(f"s_sub_u32 s{TS}, s{TS}, s90")
    a(f"s_mul_i32 s90, s{S_T0}, {16 * 6144}")
    a(f"s_sub_u32 s{TS + 1}, s{TS + 1}, s90")
    a(f"v_lshrrev_b32 v20, 3, v0")
    a(f"v_mul_u32_u24 v20, {256 * 4096 - 4 * 128}, v20")
    a(f"v_add_u32 v{TV}, v{TV}, v20")
    a(f"v_lshrrev_b32 v20, 4, v0")
    a(f"v_mul_u32_u24 v20, {4 * 64 * 6144 - 16 * 6144}, v20")
    a(f"v_sub_u32 v{TV + 1}, v{TV + 1}, v20")


def ctouch(a, vm, s0, n, sx, sw):
    mx = sum(((1 << (2 * n)) - 1) << (8 * k) for k in range(4))
    mw = sum(7 << (16 * k + 4 * i) for k in range(4) for i in range(n))
    skip = uid("wx3")
    a(f"s_add_u32 s{S_T0 - 1}, s{TS + 1}, {64 * 6144 * s0}")
    a(f"s_mov_b32 exec_lo, {mw & 0xffffffff:#x}")
    a(f"s_mov_b32 exec_hi, {mw >> 32:#x}")
    a(f"s_bfe_u32 s{S_T0}, s{TS + 1}, 0x30007")
    a(f"s_cmp_lg_u32 s{S_T0}, 1")
    a(f"s_cbranch_scc1 {skip}")
    a(f"buffer_load_dword v{TV - 1}, v{TV + 1}, s[{sw}:{sw + 3}], s{S_T0 - 1} offen offset:256")
    a.label(skip)
    a(f"buffer_load_dword v{TV - 1}, v{TV + 1}, s[{sw}:{sw + 3}], s{S_T0 - 1} offen")
    a(f"s_mov_b32 exec_lo, {mx:#x}")
    a("s_mov_b32 exec_hi, 0")
    a(f"buffer_load_dword v{TV - 1}, v{TV}, s[{sx}:{sx + 3}], s{TS} offen offset:{128 * s0}")
    a("s_mov_b64 exec, -1")
    vm.issue("tb", 2)


GP_K, GP_V, GP_TU, GP_T, GP_TR, GP_U, GP_A = 108, 136, 152, 4, 36, 184, 230
GP_S1, GP_S2, GP_S3, GP_TG, GP_TN, GP_LB, GP_X = 72, 76, 80, 84, 85, 86, 87


def gpre_addr(a):
    A, T = GP_A, GP_X
    pre_tile(a, GP_TG, GP_TN, S_WAVE, T)
    a(f"s_mul_i32 s{GP_LB}, s{S_WAVE}, {H_PITCH}")
    a(f"s_add_u32 s{GP_LB}, s{GP_LB}, {H_REG}")
    a(f"s_lshl_b32 s{T}, s{GP_TN}, 9")
    a(f"s_add_u32 s{T}, s{T}, s{GP_TG}")
    a(f"s_lshl_b32 s{T}, s{T}, 7")
    a(f"v_and_b32 v{A + 1}, 7, v0")
    a(f"v_lshl_add_u32 v{A + 1}, v{A + 1}, 4, s{T}")
    a(f"v_lshrrev_b32 v{A}, 3, v0")
    a(f"v_lshl_add_u32 v{A}, v{A}, 13, v{A + 1}")
    for i in range(3):
        a(f"v_subrev_u32 v{A + 1 + i}, {2048 * (3 - i)}, v{A}")
    a(f"v_add_u32 v{A + 4}, 4096, v{A}")
    a(f"v_lshlrev_b32 v{A + 5}, 4, v0")
    a(f"s_lshl_b32 s{T}, s{GP_TG}, 9")
    a(f"s_add_u32 m0, s{GP_LB}, 4224")


def gpre_loads(a, vm):
    A, nt = GP_A, CFG["nt"]
    srd(a, GP_S3, P_SH, 8192)
    srd(a, GP_S1, P_K, 4 << 20)
    a("s_mov_b32 exec_hi, 0")
    a(f"buffer_load_dwordx4 v{A + 5}, s[{GP_S3}:{GP_S3 + 3}], s{GP_X} offen lds")
    a("s_mov_b64 exec, -1")
    vm.issue("taps")
    rows = [(A + 1, 0), (A + 2, 0), (A + 3, 0), (A, 0), (A, 2048), (A + 4, 0), (A + 4, 2048)]
    for i, (va, off) in enumerate(rows):
        a(f"buffer_load_dwordx4 {vr(GP_K + 4 * i, 4)}, v{va}, s[{GP_S1}:{GP_S1 + 3}], 0 offen offset:{off}{nt}")
        vm.issue(("k", i))
    srd(a, GP_S2, P_V, 4 << 20)
    for i, (va, off) in enumerate(rows[3:]):
        a(f"buffer_load_dwordx4 {vr(GP_V + 4 * i, 4)}, v{va}, s[{GP_S2}:{GP_S2 + 3}], 0 offen offset:{off}{nt}")
        vm.issue(("v", i))


def gpre_compute(a, vm, st):
    A, T = GP_A, GP_X
    a(f"v_and_b32 v{A + 1}, 7, v0")
    a(f"v_lshl_add_u32 v{A}, v{A + 1}, 6, s{GP_LB}")
    a(f"v_mul_u32_u24 v{A + 1}, 528, v{A + 1}")
    a(f"v_lshrrev_b32 v{A + 2}, 3, v0")
    a(f"v_xor_b32 v{A + 2}, 7, v{A + 2}")
    a(f"v_lshl_add_u32 v{A + 1}, v{A + 2}, 3, v{A + 1}")
    a(f"v_add_u32 v{A + 1}, s{GP_LB}, v{A + 1}")
    if not CFG["cst"]:
        kvt_addr(a, A + 2, GP_LB, GP_TG, GP_TN, T, GP_S3)
    vm.wait(a, "taps")
    for d in range(4):
        a(f"ds_read_b128 {vr(GP_TR + 4 * d, 4)}, v{A} offset:{4224 + 16 * d}")
    for d in range(4):
        a(f"s_waitcnt lgkmcnt({3 - d})")
        for e in (0, 1):
            for h in (0, 1):
                unpack(a, GP_TU + 8 * d + 4 * h + e, GP_TU + 8 * d + 4 * h + 2 + e, GP_TR + 4 * d + 2 * e + h)
    for i in range(0, 16, 2):
        a(f"v_mov_b64 v[{GP_TR + i}:{GP_TR + i + 1}], 0")
    p = lambda r: vr(r, 2)
    for i in range(7):
        vm.wait(a, ("k", i))
        for d in range(4):
            unpack(a, GP_U + 2 * d, GP_U + 2 * d + 1, GP_K + 4 * i + d)
        for r in range(4):
            t = r + 3 - i
            if 0 <= t <= 3:
                for d in range(4):
                    acc = p(GP_T + 8 * d + 2 * r)
                    if t == 3:
                        a(f"v_pk_mul_f32 {acc}, {p(GP_U + 2 * d)}, {p(GP_TU + 8 * d + 2 * t)}")
                    else:
                        a(f"v_pk_fma_f32 {acc}, {p(GP_U + 2 * d)}, {p(GP_TU + 8 * d + 2 * t)}, {acc}")
    st.stamp(a, "kdone")
    for r in range(4):
        vm.wait(a, ("v", r))
        for d in range(4):
            unpack(a, GP_U + 2 * d, GP_U + 2 * d + 1, GP_V + 4 * r + d)
        for d in range(4):
            acc = p(GP_T + 8 * d + 2 * r)
            a(f"v_pk_mul_f32 {acc}, {acc}, {p(GP_U + 2 * d)}")
    R = GP_K
    for j in range(8):
        t = GP_T + 8 * (j >> 1) + (j & 1)
        a(f"v_cvt_pk_bf16_f32 v{R + 2 * j}, v{t + 6}, v{t + 4}")
        a(f"v_cvt_pk_bf16_f32 v{R + 2 * j + 1}, v{t + 2}, v{t}")
        a(f"ds_write_b64 v{A + 1}, {vr(R + 2 * j, 2)} offset:{64 * j}")
    if not CFG["cst"]:
        kvt_read(a, A + 2, A + 4 if CFG["stb0"] else GP_TU)
    for i in range(0, 32, 2):
        a(f"v_mov_b64 v[{GP_T + i}:{GP_T + i + 1}], 0")
    st.stamp(a, "vdone")
    a("s_waitcnt lgkmcnt(0)")
    if not CFG["cst"] and not CFG["stb0"]:
        kvt_store(a, A + 2, GP_TU, T, GP_S3)


def pre_tile(a, tg, tn, w, t):
    pm = CFG["pm"]
    if pm == 4:
        a(f"s_and_b32 s{tg}, s2, 3")
        if CFG["pmap"]:
            a(f"s_lshl_b32 s{tg}, s{tg}, 1")
            a(f"s_lshr_b32 s{tg}, 0x8d, s{tg}")
            a(f"s_and_b32 s{tg}, s{tg}, 3")
        a(f"s_lshl2_add_u32 s{tg}, s{tg}, s{w}")
        a(f"s_lshr_b32 s{tn}, s2, 2")
    else:
        a(f"s_and_b32 s{tg}, s2, 7")
        a(f"s_lshr_b32 s{t}, s{w}, 1")
        a(f"s_lshl1_add_u32 s{tg}, s{tg}, s{t}")
        a(f"s_lshr_b32 s{tn}, s2, 3")
        a(f"s_and_b32 s{t}, s{w}, 1")
        a(f"s_lshl1_add_u32 s{tn}, s{tn}, s{t}")


def kvt_addr(a, A, lb, tg, tn, T, sd):
    a(f"v_lshrrev_b32 v{A}, 5, v0")
    a(f"v_add_u32 v{A}, v0, v{A}")
    a(f"v_lshl_add_u32 v{A}, v{A}, 4, s{lb}")
    a(f"s_mul_i32 s{T}, s{tg}, {KVP}")
    a(f"s_sub_u32 s{T}, s{T}, s{tn}")
    a(f"s_lshl_b32 s{T}, s{T}, 6")
    a(f"s_add_u32 s{T}, s{T}, 4032")
    a(f"v_and_b32 v{A + 1}, 3, v0")
    a(f"v_lshl_add_u32 v{A + 1}, v{A + 1}, 4, s{T}")
    a(f"v_lshrrev_b32 v{A + 2}, 2, v0")
    a(f"v_mul_u32_u24 v{A + 2}, {KVP}, v{A + 2}")
    a(f"v_add_u32 v{A + 1}, v{A + 1}, v{A + 2}")
    srd(a, sd, P_WS, 1024 * KVP, WS_KV)


def kvt_read(a, A, R):
    for i in range(4):
        a(f"ds_read_b128 {vr(R + 4 * i, 4)}, v{A} offset:{1056 * i}")


def kvt_store(a, A, R, T, sd):
    for i in range(4):
        a(f"s_mov_b32 s{T}, {16 * KVP * i}")
        a(f"buffer_store_dwordx4 {vr(R + 4 * i, 4)}, v{A + 1}, s[{sd}:{sd + 3}], s{T} offen{CFG['kst']}")


ACC = 4
accQ = lambda b, d: ACC + 4 * (2 * b + d)
accK = lambda b, d: ACC + 32 + 4 * (2 * b + d)
accV = lambda b, d: ACC + 64 + 4 * (2 * b + d)
ACC_KH, ACC_VH = ACC + 96, ACC + 100
FR = 108


def frX(s, b):
    if CFG["smf"]:
        return FR + 32 if b == 4 else FR + 56 * s + 4 * b
    return FR + 44 * s + 4 * b


def frW(s, part, d):
    if CFG["smf"]:
        if part and not d:
            return FR + 40 + 8 * (part - 1) + 4 * s
        return FR + 56 * s + 16 + 4 * (d if part == 0 else part + 1)
    return FR + 44 * s + 20 + 4 * (2 * part + d)


SIDX = 202
AD = 196
G_HH, G_HALF, G_BUF, G_DELTA, G_CNT, G_T = 32, 33, 34, 35, 36, 37
GV_O, GV_OUT, GV_WO, GV_FL, GV_RD = 224, 226, 227, 228, 229


def compute_setup(a):
    a(f"s_lshr_b32 s{G_HH}, s{S_WAVE}, 1")
    a(f"s_and_b32 s{G_HALF}, s{S_WAVE}, 1")
    a("v_and_b32 v1, 15, v0")
    a("v_lshrrev_b32 v2, 4, v0")
    a("v_lshrrev_b32 v3, 1, v1")
    a("v_xor_b32 v3, v2, v3")
    a("v_lshlrev_b32 v3, 4, v3")
    a(f"v_lshl_add_u32 v3, v1, 7, v3")
    a(f"s_lshl_b32 s{G_T}, s{G_HALF}, 13")
    a(f"v_add_u32 v{AD}, s{G_T}, v3")
    a(f"v_xor_b32 v{AD + 1}, 64, v{AD}")
    if CFG["smf"]:
        a(f"v_and_b32 v{AD + 2}, 7, v1")
        a("v_lshlrev_b32 v3, 1, v2")
        a(f"v_xor_b32 v3, v3, v{AD + 2}")
        a("v_lshlrev_b32 v3, 4, v3")
        a(f"v_lshl_add_u32 v3, v{AD + 2}, 7, v3")
        a(f"v_lshrrev_b32 v{SIDX}, 3, v1")
        a(f"v_lshl_add_u32 v3, v{SIDX}, 2, v3")
        a(f"v_add_u32 v{AD + 2}, {X_HALO}, v3")
        a(f"v_xor_b32 v{AD + 3}, 16, v{AD + 2}")
        a(f"v_mul_u32_u24 v{SIDX}, 0xaaaa, v{SIDX}")
        a(f"v_add_u32 v{SIDX}, 0x4444, v{SIDX}")
    else:
        a("v_and_b32 v3, 6, v1")
        a("v_xor_b32 v3, v2, v3")
        a("v_lshlrev_b32 v3, 4, v3")
        a(f"v_and_b32 v{AD + 2}, 7, v1")
        a(f"v_lshl_add_u32 v3, v{AD + 2}, 7, v3")
        a(f"v_add_u32 v{AD + 2}, {X_HALO}, v3")
        a(f"v_xor_b32 v{AD + 3}, 64, v{AD + 2}")
    a("v_bfe_u32 v3, v0, 2, 2")
    a(f"v_lshl_add_u32 v{AD + 4}, v2, 3, v3")
    a(f"v_lshlrev_b32 v{AD + 4}, 7, v{AD + 4}")
    a("v_bfe_u32 v3, v0, 3, 2")
    a(f"v_xor_b32 v3, s{S_WAVE}, v3")
    a(f"v_lshl_add_u32 v{AD + 4}, v3, 5, v{AD + 4}")
    a("v_and_b32 v3, 3, v0")
    a(f"v_lshl_add_u32 v{AD + 4}, v3, 3, v{AD + 4}")
    a(f"v_add_u32 v{AD + 4}, {W_OFF}, v{AD + 4}")
    a(f"v_xor_b32 v{AD + 5}, 32, v{AD + 4}")
    for i in range(48, 104, 2):
        a(f"v_mov_b64 v[{ACC + i}:{ACC + i + 1}], 0")
    a(f"s_mov_b32 s{G_BUF}, 0")
    a(f"v_mov_b32 v{GV_FL}, {FLAGS}")


def reads(s, ks):
    def rx(b):
        if b == 4:
            return f"ds_read_b128 {vr(frX(s, 4), 4)}, v{AD + 2 + ks}"
        return f"ds_read_b128 {vr(frX(s, b), 4)}, v{AD + ks} offset:{2048 * b}"

    def rw(part, d):
        return [f"ds_read_b64_tr_b16 {vr(frW(s, part, d) + 2 * j, 2)}, v{AD + 4 + d} offset:{8192 * part + 4096 * ks + 512 * j}"
                for j in (0, 1)]
    halo = [rx(4)]
    if CFG["smf"]:
        halo = [f"ds_read2_b32 {vr(frX(s, 4) + 2 * j, 2)}, v{AD + 2 + j} offset1:2" for j in (0, 1)] if ks else []
    return [rx(0)] + rw(0, 0) + [rx(1)] + rw(0, 1) + [rx(2)] + rw(1, 0) + [rx(3)] + rw(1, 1) + halo + rw(2, 0) + rw(2, 1)


mQ = lambda s, b, d: mfma(accQ(b, d), frW(s, 0, d), frX(s, b))
mK = lambda s, b, d: mfma(accK(b, d), frW(s, 1, d), frX(s, b))
mV = lambda s, b, d: mfma(accV(b, d), frX(s, b), frW(s, 2, d))
mKH = lambda s: mfma(ACC_KH, frW(s, 1, 0), frX(s, 4))
mVH = lambda s: mfma(ACC_VH, frX(s, 4), frW(s, 2, 0))


smf = lambda acc, part: f"v_smfmac_f32_16x16x64_bf16 {vr(acc, 4)}, {vr(frX(0, 4), 4)}, {vr(frW(0, part, 0), 8)}, v{SIDX}"


def mfmas(s):
    R = range(4)
    if CFG["smf"]:
        Rr = (3, 2, 1, 0)
        return ([mQ(s, b, 0) for b in R] + [mQ(s, b, 1) for b in Rr] + [mK(s, b, 1) for b in R] + [mK(s, b, 0) for b in Rr] +
                [mV(s, b, 0) for b in R] + [mV(s, b, 1) for b in Rr])
    if CFG["serp"] == 2:
        W4 = [(mQ, 0), (mQ, 1), (mK, 1), (mK, 0)]
        L = [f(s, b, d) for b in (1, 2, 3) for f, d in (W4 if b % 2 == 0 else W4[::-1])]
        L = [f(s, 0, d) for f, d in W4] + L
        return L[:4] + [mKH(s)] + L[4:] + [mV(s, b, d) for b in (3, 2, 1, 0) for d in ((0, 1) if b % 2 else (1, 0))] + [mVH(s)]
    if CFG["serp"]:
        Rr = (3, 2, 1, 0)
        return ([mQ(s, b, 0) for b in R] + [mQ(s, b, 1) for b in Rr] + [mK(s, b, 1) for b in R] + [mK(s, b, 0) for b in Rr] + [mKH(s)] +
                [mVH(s)] + [mV(s, b, 0) for b in R] + [mV(s, b, 1) for b in Rr])
    return ([mQ(s, b, 0) for b in R] + [mQ(s, b, 1) for b in R] + [mK(s, b, 0) for b in R] + [mKH(s)] +
            [mK(s, b, 1) for b in R] + [mV(s, b, 0) for b in R] + [mVH(s)] + [mV(s, b, 1) for b in R])


def compute_loop(a):
    a(f"s_mov_b32 s{G_T}, {STAGE}")
    a(f"s_mov_b32 s{G_CNT}, {1 if CFG['ring'] else NSTAGE - 1}")
    if CFG["ring"]:
        a("v_and_b32 v3, 3, v0")
        a("v_lshlrev_b32 v3, 2, v3")
        a(f"v_add_u32 v3, {FULLW}, v3")
        a(f"s_lshl_b32 s72, s{S_WAVE}, 1")
        a("s_lshl_b32 s72, 1, s72")
        a("s_sub_u32 s72, 64, s72")
        a("s_lshr_b64 s[72:73], -1, s72")
    a("s_barrier")
    a.extend(reads(0, 0))
    if CFG["stat"]:
        a(f"s_bfe_u32 s73, s2, {3 | (CFG['stat'][1] << 16):#x}")
        a(f"s_sub_u32 s73, {NSTAGE - 1 - CFG['stat'][0]}, s73")
        a("s_lshl_b32 s72, 1, s73")
        a(f"s_or_b32 s72, s72, {(1 << 1) | (1 << (NSTAGE - CFG['drain'])):#x}")
    elif CFG["stb0"]:
        kvt_store(a, GP_A + 2, GP_A + 4, GP_X, GP_S3)
    if CFG["al"] is not None:
        a("s_branch L_g1_head")
        a(".p2align 6")
        a.label("L_g1_head")
    a("s_waitcnt lgkmcnt(0)")
    a.label("L_g1_loop")
    m0 = mfmas(0)
    fill = reads(1, 1) + [f"ds_read_b32 v1, v{GV_FL} offset:{F_S15}",
                          f"s_add_u32 s{G_BUF}, s{G_BUF}, {STAGE}",
                          f"s_cmp_eq_u32 s{G_BUF}, {3 * STAGE}",
                          f"s_cselect_b32 s{G_DELTA}, {-2 * STAGE}, s{G_T}",
                          f"s_cselect_b32 s{G_BUF}, 0, s{G_BUF}",
                          f"s_bitcmp1_b32 {(1 << 1) | (1 << (NSTAGE - CFG['drain'])):#x}, s{G_CNT}"]
    if CFG["stat"]:
        fill[-1] = f"s_bitcmp1_b32 s72, s{G_CNT}"
    if CFG["rev"]:
        a.ins[[i for i, x in enumerate(a.ins) if x.text == f"s_mov_b32 s{G_T}, {STAGE}"][-1]] = Ins(f"s_mov_b32 s{G_T}, {-STAGE}")
        fill = reads(1, 1) + [f"s_cmp_eq_u32 s{G_BUF}, 0",
                              f"s_cselect_b32 s{G_DELTA}, {2 * STAGE}, s{G_T}",
                              f"s_add_u32 s{G_BUF}, s{G_BUF}, s{G_DELTA}",
                              f"s_cmp_eq_u32 s{G_CNT}, {NSTAGE - CFG['drain']}"]
    adds = [f"v_add_u32 v{AD + i}, s{G_DELTA}, v{AD + i}" for i in range(6)]
    if CFG["ring"]:
        m1 = mfmas(1)
        fill[-6] = "ds_read_b32 v1, v3"
        fill[-1] = f"s_cmp_eq_u32 s{G_CNT}, {CFG['drain']}"
        a.extend(weave(m0[:16], fill[:16]))
        a.extend(weave(m0[16:23], fill[16:] + adds, per=2))
        a(m0[23])
        a("s_cbranch_scc1 L_g1_drain")
        a.label("L_g1_drained")
        a("s_waitcnt lgkmcnt(0)")
        a(smf(ACC_KH, 1))
        a(f"v_cmp_gt_u32 vcc, s{G_CNT}, v1")
        a("s_mov_b64 exec, s[72:73]")
        a(f"ds_append v2 offset:{FREEW}")
        a("s_mov_b64 exec, -1")
        a(smf(ACC_VH, 2))
        if not CFG.get("nochk"):
            a("s_cbranch_vccnz L_g1_wait")
        a.label("L_g1_ready")
        a.extend(weave(m1[:-1], reads(0, 0) + [f"s_add_u32 s{G_CNT}, s{G_CNT}, 1", f"s_cmp_lg_u32 s{G_CNT}, {NSTAGE}"]))
        a("s_waitcnt lgkmcnt(0)")
        a(m1[-1])
        a("s_cbranch_scc1 L_g1_loop")
        a.extend(weave(mfmas(0), reads(1, 1)))
        a("s_waitcnt lgkmcnt(0)")
        return
    m1 = mfmas(1)
    fill1 = reads(0, 0) + [f"s_sub_u32 s{G_CNT}, s{G_CNT}, 1", f"s_cmp_lg_u32 s{G_CNT}, 0"]
    if CFG["smf"]:
        a.extend(weave(m0[:16], fill[:16]))
        a.extend(weave(m0[16:23], fill[16:] + adds, per=2))
        a(m0[23])
        a("s_waitcnt lgkmcnt(0)")
        if CFG["smf"] == 2:
            a(m1.pop(0))
            m1 = [smf(ACC_KH, 1)] + m1[:2] + [smf(ACC_VH, 2)] + m1[2:]
        elif CFG["smf"] == 3:
            a(smf(ACC_KH, 1))
            m1 = m1[:1] + [smf(ACC_VH, 2)] + m1[1:]
        else:
            a(smf(ACC_KH, 1))
            a(smf(ACC_VH, 2))
        a("s_cbranch_scc1 L_g1_rare")
        a.label("L_g1_bar")
        a("s_barrier")
        a.label("L_g1_nobar")
        a.extend(weave(m1[:-1], fill1))
        a("s_waitcnt lgkmcnt(0)")
        a(m1[-1])
    elif CFG["tight"]:
        k = CFG["tight"]
        a.extend(weave(m0[:18], fill[:18]))
        a.extend(weave(m0[18:24], fill[18:] + adds, per=2))
        a(m0[24])
        a("s_waitcnt lgkmcnt(0)")
        a(m0[25])
        a.extend(m1[:k - 1])
        a("s_cbranch_scc1 L_g1_rare")
        a.label("L_g1_bar")
        a("s_barrier")
        a.label("L_g1_nobar")
        a.extend(weave(m1[k - 1:25], fill1))
        a("s_waitcnt lgkmcnt(0)")
        a(m1[25])
    else:
        a.extend(weave(m0[:23], fill))
        a("s_waitcnt lgkmcnt(0)")
        a.extend(weave(m0[23:], adds, per=2))
        a("s_cbranch_scc1 L_g1_rare")
        a.label("L_g1_bar")
        a("s_barrier")
        a.label("L_g1_nobar")
        a.extend(weave(m1, fill1))
        a("s_waitcnt lgkmcnt(0)")
    a("s_cbranch_scc1 L_g1_loop")
    a.extend(weave(mfmas(0), reads(1, 1)))
    a("s_waitcnt lgkmcnt(0)")


def compute_rare(a):
    if CFG["ring"]:
        a.label("L_g1_drain")
        a("s_waitcnt vmcnt(0)")
        a("s_branch L_g1_drained")
        a.label("L_g1_wait")
        a(f"s_mov_b32 s{G_T + 1}, {SPIN_MAX * 8}")
        a.label("L_g1_spin")
        a("ds_read_b32 v1, v3")
        a("s_waitcnt lgkmcnt(0)")
        a(f"v_cmp_gt_u32 vcc, s{G_CNT}, v1")
        a("s_cbranch_vccz L_g1_ready")
        a(f"s_sub_u32 s{G_T + 1}, s{G_T + 1}, 1")
        a("s_cbranch_scc0 L_g1_spin")
        a("s_branch L_g1_ready")
        return
    a.label("L_g1_rare")
    if CFG["stat"]:
        a(f"s_cmp_lg_u32 s{G_CNT}, s73")
        a("s_cbranch_scc1 L_g1_rare2")
        kvt_store(a, GP_A + 2, GP_A + 4, GP_X, GP_S3)
        a("s_branch L_g1_bar")
        a.label("L_g1_rare2")
    a("s_waitcnt vmcnt(0)")
    if CFG["rev"]:
        a("s_branch L_g1_bar")
        return
    a(f"s_cmp_lg_u32 s{G_CNT}, 1")
    a("s_cbranch_scc1 L_g1_bar")
    spin_lds(a, GV_FL, F_S15, 4, 1, G_T + 1, first=False)
    a("s_branch L_g1_nobar")


QF = FR
KF = FR + 16
HX = FR + 36
VF = 230
MC, MP, MP0 = 204, 208, 212
BC = 216
OA = 218
EXW, EXW3, EXR, EXK = 219, 220, 221, 203
G_SRDO = 40


def attn_setup(a):
    a("v_and_b32 v1, 15, v0")
    a("v_lshrrev_b32 v2, 4, v0")
    a("v_lshlrev_b32 v2, 2, v2")
    a("v_sub_u32 v1, v1, v2")
    a(f"s_mov_b32 s{G_T}, 0xf149f2ca")
    a(f"v_mov_b32 v3, s{G_T}")
    a(f"s_or_b32 s{G_T + 1}, s{S_RB}, s{G_HALF}")
    a(f"s_cmp_eq_u32 s{G_T + 1}, 0")
    a(f"s_cselect_b32 s{G_T + 1}, s{G_T}, 0")
    for i in range(4):
        a(f"v_subrev_u32 v2, {i}, v1")
        a("v_cmp_gt_u32 vcc, 8, v2")
        a("v_cmp_gt_i32 s[64:65], -8, v2")
        a("v_ashrrev_i32 v2, 31, v2")
        a(f"v_cndmask_b32 v{MC + i}, v3, 0, vcc")
        a(f"v_cndmask_b32 v{MP + i}, v3, 0, s[64:65]")
        if i & 1:
            a(f"v_alignbit_b32 v{BC + (i >> 1)}, v2, v{BC + (i >> 1)}, 16")
        else:
            a(f"v_mov_b32 v{BC + (i >> 1)}, v2")
        a(f"v_min_f32 v{MP0 + i}, s{G_T + 1}, v{MP + i}")
    a(f"s_mul_i32 s{G_T}, s{G_HH}, {EX[1] - EX[0]}")
    a(f"s_add_u32 s{G_T}, s{G_T}, {EX[0]}")
    a(f"v_lshl_add_u32 v{EXW3}, v0, 3, s{G_T}")
    a(f"s_lshl_b32 s{G_T + 1}, s{G_HALF}, 9")
    a(f"v_add_u32 v{EXW}, s{G_T + 1}, v{EXW3}")
    if CFG["smf"]:
        a(f"s_add_u32 s{G_T + 1}, s{G_T + 1}, s{G_T}")
        a("v_and_b32 v1, 3, v0")
        a(f"v_lshl_add_u32 v1, v1, 1, s{G_T + 1}")
        a("v_bfe_u32 v2, v0, 2, 2")
        a("v_lshl_add_u32 v1, v2, 7, v1")
        a("v_lshrrev_b32 v2, 4, v0")
        a("v_xor_b32 v2, 2, v2")
        a(f"v_lshl_add_u32 v{EXK}, v2, 5, v1")
    a(f"s_mul_i32 s{G_T + 1}, s{G_HALF}, {2048 + 512}")
    a(f"v_add_u32 v{EXR}, s{G_T + 1}, v{EXW3}")
    a(f"v_xor_b32 v{EXR + 1}, 512, v{EXR}")
    a(f"s_lshl3_add_u32 s{G_T}, s{S_PAR}, s{S_RB}")
    a(f"s_lshl1_add_u32 s{G_T}, s{G_T}, s{G_HALF}")
    a(f"s_lshl_b32 s{G_T}, s{G_T}, 7")
    a(f"s_lshl1_add_u32 s{G_T + 1}, s{S_HP}, s{G_HH}")
    a(f"s_add_u32 s{G_T}, s{G_T}, s{G_T + 1}")
    a(f"s_lshl_b32 s{G_T}, s{G_T}, 10")
    a(f"v_lshl_add_u32 v{OA}, v0, 4, s{G_T}")
    srd(a, G_SRDO, P_WS, 4 << 20, WS_O)


def xreduce(a, op, r):
    a(f"v_permlane32_swap_b32 v{r[2]}, v{r[3]}")
    a(f"v_permlane32_swap_b32 v{r[0]}, v{r[1]}")
    a(f"{op} v{r[2]}, v{r[2]}, v{r[3]}")
    a(f"{op} v{r[0]}, v{r[0]}, v{r[1]}")
    a(f"v_permlane16_swap_b32 v{r[0]}, v{r[2]}")
    a(f"{op} v{r[0]}, v{r[0]}, v{r[2]}")


def xbroadcast(a, r):
    a(f"v_permlane16_swap_b32 v{r[0]}, v{r[2]}")
    a(f"v_mov_b32 v{r[1]}, v{r[0]}")
    a(f"v_mov_b32 v{r[3]}, v{r[2]}")
    a(f"v_permlane32_swap_b32 v{r[0]}, v{r[1]}")
    a(f"v_permlane32_swap_b32 v{r[2]}, v{r[3]}")


def attention(a, st):
    kf = lambda b: KF + 4 * (b + 1)
    vf = lambda d, b: VF + 10 * d + 2 * (b + 1)
    Sc = lambda b: accQ(b, 0)
    Sp = lambda b: accQ(b, 1)
    D = (0, 1)
    pub3 = ([f"s_cmp_eq_u32 s{G_HALF}, 0\ns_cbranch_scc0 L_at_nopub\n" +
             "\n".join(f"ds_write_b64 v{EXW3}, {vr(kf(3) + 2 * d, 2)} offset:{2048 + 512 * d}\n"
                       f"ds_write_b64 v{EXW3}, {vr(vf(d, 3), 2)} offset:{2048 + 1024 + 512 * d}" for d in D) +
             f"\nL_at_nopub:\ns_mov_b64 exec, 1\nds_add_u32 v{GV_FL}, v2 offset:{F_EX}\ns_mov_b64 exec, -1"])
    if CFG["smf"]:
        M = [(smf(ACC_KH, 1), []),
             (smf(ACC_VH, 2), [f"v_permlane32_swap_b32 v{ACC_KH + i}, v{ACC_VH + i}" for i in range(4)] +
              [f"v_add_f32 v{ACC_KH + i}, v{ACC_KH + i}, v{ACC_VH + i}" for i in range(4)] + cvt2(HX, ACC_KH) +
              [f"ds_write_b64 v{EXW}, {vr(HX, 2)} offset:1024"] +
              [f"ds_write_b16{'_d16_hi' if i & 1 else ''} v{EXK}, v{HX + (i >> 1)} offset:{8 * i}" for i in range(4)])]
    else:
        M = [(mKH(1), cvt2(HX, ACC_KH) + [f"ds_write_b64 v{EXW}, {vr(HX, 2)}"]),
             (mVH(1), cvt2(HX + 2, ACC_VH) + [f"ds_write_b64 v{EXW}, {vr(HX + 2, 2)} offset:1024"])]
    M += [(mK(1, 3, d), cvt2(kf(3) + 2 * d, accK(3, d))) for d in D]
    M += [(mV(1, 3, d), cvt2(vf(d, 3), accV(3, d)) + (pub3 if d else [])) for d in D]
    for b in (3, 2, 1, 0):
        M += [(mQ(1, b, d), cvt2(QF + 4 * b + 2 * d, accQ(b, d))) for d in D]
        if b:
            M += [(mK(1, b - 1, d), cvt2(kf(b - 1) + 2 * d, accK(b - 1, d))) for d in D]
    for b in (2, 1, 0):
        M += [(mV(1, b, d), cvt2(vf(d, b), accV(b, d))) for d in D]
    M[-3] = (M[-3][0], [f"ds_read_b32 v1, v{GV_FL} offset:{F_EX}"] + M[-3][1])
    R = [accK(0, 0) + i for i in range(4)]

    def merge(b):
        return ([f"v_max_f32 v{Sc(b) + i}, v{Sc(b) + i}, v{Sp(b) + i}" for i in range(4)] +
                [f"v_max3_f32 v{R[b]}, v{Sc(b)}, v{Sc(b) + 1}, v{Sc(b) + 2}", f"v_max_f32 v{R[b]}, v{R[b]}, v{Sc(b) + 3}"])
    S = []
    for b in (3, 2, 1):
        S += [(mfma(Sc(b), kf(b), QF + 4 * b, MC), []), (mfma(Sp(b), kf(b - 1), QF + 4 * b, MP), [])]
    S += [(mfma(Sc(0), kf(0), QF, MC), [])]
    a("v_mov_b32 v2, 1")
    lag_weave(a, M + S, lag=8, per=2)
    st.stamp(a, "g1end")
    a("s_waitcnt lgkmcnt(0)")
    spin_lds(a, GV_FL, F_EX, 4, 1, G_T, first=False)
    for d in D:
        a(f"ds_read_b64 {vr(kf(-1) + 2 * d, 2)}, v{EXR + d}")
    for d in D:
        a(f"ds_read_b64 {vr(vf(d, -1), 2)}, v{EXR + d} offset:1024")
    a.extend(merge(3) + merge(2))
    a("s_waitcnt lgkmcnt(2)")
    a(mfma(Sp(0), kf(-1), QF, MP0))
    a(f"s_setprio {CFG['prio_av']}")
    a(f"s_mov_b32 s{G_T}, 0x3e8293ee")
    a.extend(merge(1) + merge(0))
    xreduce(a, "v_max_f32", R)
    a(f"v_mul_f32 v{R[2]}, s{G_T}, v{R[0]}")
    a(f"v_mul_f32 v{R[0]}, s{G_T}, v{R[0]}")
    xbroadcast(a, R)
    for b in range(4):
        for i in range(4):
            a(f"v_fma_f32 v{Sc(b) + i}, v{Sc(b) + i}, s{G_T}, -v{R[b]}")
    for b in (3, 2, 1, 0):
        for i in range(4):
            a(f"v_exp_f32 v{Sc(b) + i}, v{Sc(b) + i}")
    for b in (3, 2, 1, 0):
        a(f"v_add_f32 v{R[b]}, v{Sc(b)}, v{Sc(b) + 1}")
        a(f"v_add_f32 v{Sp(b)}, v{Sc(b) + 2}, v{Sc(b) + 3}")
        a(f"v_add_f32 v{R[b]}, v{R[b]}, v{Sp(b)}")
    xreduce(a, "v_add_f32", R)
    a(f"v_rcp_f32 v{R[2]}, v{R[0]}")
    a(f"v_rcp_f32 v{R[0]}, v{R[0]}")
    xbroadcast(a, R)
    a("s_waitcnt lgkmcnt(0)")
    O = lambda b, d: accV(b, d)
    sw = lambda b: [f"v_swap_b32 v{QF + 4 * b + j}, v{QF + 4 * b + 2 + j}" for j in (0, 1)]

    def finish(b):
        for d in D:
            a.extend(cvt2(QF + 4 * b + 2 * d, O(b, d)))
        if not CFG["noswap"]:
            a(f"s_cbranch_scc1 L_at_noswap{b}")
            a.extend(sw(b))
            a.label(f"L_at_noswap{b}")
        a(f"s_mov_b32 s{G_T}, {32768 * b}")
        a(f"buffer_store_dwordx4 {vr(QF + 4 * b, 4)}, v{OA}, s[{G_SRDO}:{G_SRDO + 3}], s{G_T} offen sc1")
    if not CFG["noswap"]:
        a(f"s_cmp_eq_u32 s{G_HALF}, 0")
    for b in range(4):
        for i in range(4):
            a(f"v_mul_f32 v{Sc(b) + i}, v{Sc(b) + i}, v{R[b]}")
        a.extend(cvt2(Sp(b) + 2, Sc(b)))
        for j in (0, 1):
            a(f"v_and_b32 v{Sp(b) + j}, v{BC + j}, v{Sp(b) + 2 + j}")
        for j in (0, 1):
            a(f"v_xor_b32 v{Sp(b) + 2 + j}, v{Sp(b) + j}, v{Sp(b) + 2 + j}")
        if b:
            finish(b - 1)
        if b == CFG["hold"]:
            lds_add(a, GV_FL, 2, F_AT)
        a(f"s_setprio {CFG['prio_at']}")
        for d in D:
            a(mfma(O(b, d), vf(d, b - 1), Sp(b), "0"))
        a(f"s_setprio {CFG['prio_av']}")
    finish(3)


G_SRDWO, G_SRDOUT = 44, 48
G_SIG, G_WAIT, G_GC, G_CB, G_WOM, G_ROT, G_WOS = 56, 57, 58, 59, 60, 61, 62
G2_ACC, G2_WF, G2_AD, G2_OR = 4, 36, 84, 96
G2_SETS = (0, 2 * STAGE, 3 * STAGE)
G2_AD2, G2_OA = 232, 244
G2_PK, G2_PA = 172, 230


def g2_cb(a, s_cb, t):
    a(f"s_bfe_u32 s{s_cb}, s2, 0x10002")
    a(f"s_lshr_b32 s{t}, s2, 5")
    a(f"s_lshl3_add_u32 s{s_cb}, s{s_cb}, s{t}")


def wo_voffset(a, vd, s_cb, st, vt):
    a(f"v_lshrrev_b32 v{vt}, 4, v0")
    a(f"v_lshlrev_b32 v{vt}, 1, v{vt}")
    a(f"v_xor_b32 v{vt}, v0, v{vt}")
    a(f"v_and_b32 v{vt}, 7, v{vt}")
    a(f"s_lshl_b32 s{st}, s{s_cb}, 7")
    a(f"v_lshl_add_u32 v{vt}, v{vt}, 4, s{st}")
    a(f"v_lshrrev_b32 v{vd}, 3, v0")
    a(f"v_lshl_add_u32 v{vd}, v{vd}, 11, v{vt}")


def wo_dma(vo, srd_, s_m, s_so, pieces):
    L = []
    for lo, kr in pieces:
        L += [f"s_add_u32 m0, s{s_m}, {lo}",
              f"s_add_u32 s{s_so + 1}, s{s_so}, {kr * 2048}",
              f"s_and_b32 s{s_so + 1}, s{s_so + 1}, 0x1fffff",
              f"buffer_load_dwordx4 v{vo}, s[{srd_}:{srd_ + 3}], s{s_so + 1} offen lds"]
    return L


GV_WO2 = 223


def wo_dma_g(pieces):
    L = []
    for k, (c, g) in enumerate(pieces):
        if g == 0 or k == 0:
            L += [f"s_add_u32 m0, s{G_WOM}, {wo_base(c)}", f"s_xor_b32 s{G_WOS + 1}, s{G_WOS}, {c * 131072}"]
        L.append(f"buffer_load_dwordx4 v{GV_WO2 if g else GV_WO}, s[{G_SRDWO}:{G_SRDWO + 3}], s{G_WOS + 1} offen offset:{1024 * g} lds")
    return L


def g2_setup(a):
    T = G_T
    a(f"s_and_b32 s{G_GC}, s2, 3")
    a(f"s_bfe_u32 s{T}, s2, 0x20003")
    a(f"s_lshl2_add_u32 s{G_GC}, s{G_GC}, s{T}")
    g2_cb(a, G_CB, T)
    srd(a, G_SRDWO, P_WO, 2 << 20)
    srd(a, G_SRDOUT, P_OUT, 8 << 20)
    a(f"s_lshl3_add_u32 s{G_SIG}, s{S_PAR}, s{S_RB}")
    a(f"s_lshl4_add_u32 s{G_SIG}, s{G_SIG}, {CNT_O}")
    a(f"s_lshl_b32 s{G_SIG}, s{G_SIG}, 8")
    a(f"s_lshl4_add_u32 s{G_WAIT}, s{G_GC}, {CNT_O}")
    a(f"s_add_u32 s{G_WAIT}, s{G_WAIT}, s{G_CB}")
    a(f"s_lshl_b32 s{G_WAIT}, s{G_WAIT}, 8")
    a(f"s_lshl2_add_u32 s{T}, s{G_GC}, s{S_WAVE}")
    a(f"s_lshl_b32 s{T + 1}, s{T}, 16")
    a(f"v_lshl_add_u32 v{GV_O}, v0, 4, s{T + 1}")
    a(f"v_add_u32 v{GV_O + 1}, 0x8000, v{GV_O}")
    a(f"s_and_b32 s{T}, s{T}, 31")
    a(f"s_lshl_b32 s{T}, s{T}, 6")
    a(f"s_lshr_b32 s{T + 1}, s{G_GC}, 3")
    a(f"s_add_u32 s{T}, s{T}, s{T + 1}")
    a(f"s_lshl_b32 s{T}, s{T}, 5")
    a(f"s_add_u32 s{T}, s{T}, s{G_CB}")
    a(f"s_add_u32 s{T}, s{T}, 16")
    a(f"s_lshl_b32 s{T}, s{T}, 7")
    if CFG["oblds"]:
        a("v_lshrrev_b32 v1, 3, v0")
        a(f"v_lshl_add_u32 v1, v1, 13, s{T}")
        a("v_and_b32 v2, 7, v0")
        a(f"v_lshl_add_u32 v{GV_OUT}, v2, 4, v1")
    else:
        a("v_and_b32 v1, 15, v0")
        a(f"v_lshl_add_u32 v1, v1, 13, s{T}")
        a("v_bfe_u32 v2, v0, 4, 1")
        a("v_lshl_add_u32 v1, v2, 5, v1")
        a("v_lshrrev_b32 v2, 5, v0")
        a(f"v_lshl_add_u32 v{GV_OUT}, v2, 4, v1")
    wo_voffset(a, GV_WO, G_CB, T, 1)
    a(f"v_add_u32 v{GV_WO2}, {8 * 2048 - 1024}, v{GV_WO}")
    assert CFG["rot2"] in (0, 4)
    a(f"s_lshl_b32 s{G_WOM}, s{S_WAVE}, 11")
    a(f"s_mul_i32 s{G_ROT}, s{G_CB}, {CFG['rot2']}")
    a(f"s_and_b32 s{G_ROT}, s{G_ROT}, 7")
    a(f"s_lshl3_add_u32 s{G_WOS}, s{G_ROT}, s{S_WAVE}")
    a(f"s_lshl_b32 s{G_WOS}, s{G_WOS}, 15")
    a("v_lshrrev_b32 v1, 2, v0")
    a("v_lshlrev_b32 v1, 7, v1")
    a("v_bfe_u32 v2, v0, 3, 2")
    a("v_lshl_add_u32 v1, v2, 5, v1")
    a("v_and_b32 v2, 3, v0")
    a(f"v_lshl_add_u32 v{GV_RD}, v2, 3, v1")


def g2_pre(a):
    if CFG["noswap"]:
        a(f"s_lshl_b32 s{G_T}, s{G_HH}, 11")
        a(f"v_add_u32 v{GV_RD}, s{G_T}, v{GV_RD}")
    for j in range(1 + CFG["noswap"]):
        A = G2_AD2 if j else G2_AD
        for s_, base in enumerate(G2_SETS):
            for cb in range(4):
                if base:
                    a(f"v_add_u32 v{A + 4 * s_ + cb}, {base}, v{A + cb}")
                else:
                    a(f"v_xor_b32 v{A + cb}, {32 * cb + 2048 * j}, v{GV_RD}")
    if CFG["g2tail"]:
        a.extend(ob_addr())
    if CFG["park"]:
        a(f"v_lshl_add_u32 v{G2_PA + 1}, v0, 4, s{G_WOM}")
        a(f"v_add_u32 v{G2_PA}, {H_REG}, v{G2_PA + 1}")
    for i in range(8):
        a(f"s_add_u32 s{64 + i}, s{G_ROT}, {i}")
        a(f"s_and_b32 s{64 + i}, s{64 + i}, 7")
        a(f"s_lshl_b32 s{64 + i}, s{64 + i}, 12")


def g2_main(a, st):
    vm, lg = Q("vmcnt", 63), Q("lgkmcnt", 15)
    WP = CFG["wper"]
    PD, D = CFG["pd"], CFG["depth"]
    NF = PD + CFG["nfx"]
    assert G2_WF + 4 * NF <= G2_AD
    NR = max(D + 1, CFG['d0'])
    assert G2_OR + 8 * NR <= (G2_PK if CFG['park'] and not CFG['parkpre'] else GV_WO2)
    oreg = lambda h, i: G2_OR + 8 * (h % NR) + 4 * i

    def oload(h, i):
        vm.issue(("o", h))
        return f"buffer_load_dwordx4 {vr(oreg(h, i), 4)}, v{GV_O + i}, s[{G_SRDO}:{G_SRDO + 3}], s{64 + (h >> 2)} offen offset:{1024 * (h & 3)} sc1"

    def wread(f, j):
        h, cb = f >> 2, f & 3
        s_ = max(i for i, b in enumerate(G2_SETS) if b <= wo_base(h >> 1))
        off = wo_base(h >> 1) + 4096 * (h & 1) + 2048 * j - G2_SETS[s_]
        assert 0 <= off and off + 4096 <= 65536
        lg.issue(("w", f))
        if CFG["noswap"] and j:
            return f"ds_read_b64_tr_b16 {vr(G2_WF + 4 * (f % NF) + 2, 2)}, v{G2_AD2 + 4 * s_ + cb} offset:{off - 2048}"
        return f"ds_read_b64_tr_b16 {vr(G2_WF + 4 * (f % NF) + 2 * j, 2)}, v{G2_AD + 4 * s_ + cb} offset:{off}"

    nxt = [0]

    def more(limit):
        if nxt[0] < min(64, limit):
            a(oload(nxt[0] >> 1, nxt[0] & 1))
            nxt[0] += 1
    for f in range(max(PD, CFG["d0"])):
        more(2 * CFG["d0"])
        more(2 * CFG["d0"])
        if f < PD:
            if f == 7:
                lg.wait(a, ("w", 0))
            a(wread(f, 0))
            a(wread(f, 1))
    for k in range(CFG["park0"]):
        if k == 0:
            spin_lds(a, GV_FL, F_CD, 4, 1, G_T)
            lg.drained()
            a(f"s_waitcnt vmcnt({nxt[0]})")
        c = 10 + k // 2
        a(f"ds_write_b128 v{G2_PA + (c >= 14)}, {vr(G2_PK + 4 * k, 4)} offset:{wo_base(c) - (H_REG if c < 14 else 0) + 1024 * (k & 1)}")
        lg.issue("pk")
        if k == 11:
            lds_add(a, GV_FL, 2, F_WO2)
            lg.issue("pk")
    tailfill = ob_addr() if CFG["oblds"] else []
    st.stamp(a, "g2iss")
    for f in range(120 if CFG['g2tail'] else 128):
        h, cb = f >> 2, f & 3
        if CFG["wo1a"] < 10:
            if f == 1:
                lds_add(a, GV_FL, 2, F_WO1)
                lg.issue("add")
            if f + PD == 8 * CFG["wo1a"] - 4:
                a(f"ds_read_b32 v1, v{GV_FL} offset:{F_WO1}")
                lg.issue("flag")
            if f + PD == 8 * CFG["wo1a"]:
                lg.wait(a, "flag")
                spin_lds(a, GV_FL, F_WO1, 4, 1, G_T, first=False)
        if CFG["zhold"] is not None and f == 4 * CFG["zhold"] + 1:
            lds_add(a, GV_FL, 2, F_GZ)
            lg.issue("gz")
        if CFG["park"] and not CFG["parkpre"]:
            p0, pst = CFG["parkat"]
            if f == p0 - 4 and not CFG["park0"]:
                a(f"ds_read_b32 v1, v{GV_FL} offset:{F_CD}")
                lg.issue("flag")
            if f == p0 and not CFG["park0"]:
                lg.wait(a, "flag")
                spin_lds(a, GV_FL, F_CD, 4, 1, G_T, first=False)
            k = (f - p0) // pst + CFG['park0']
            if f >= p0 and (f - p0) % pst == 0 and k < 12:
                c = 10 + k // 2
                a(f"ds_write_b128 v{G2_PA + (c >= 14)}, {vr(G2_PK + 4 * k, 4)} offset:{wo_base(c) - (H_REG if c < 14 else 0) + 1024 * (k & 1)}")
                lg.issue("pk")
                if k == 11:
                    assert f + PD < 80 - 4
                    lds_add(a, GV_FL, 2, F_WO2)
                    lg.issue("pk")
        if f + PD == 80 - 4 and not CFG['parkpre']:
            a(f"ds_read_b32 v1, v{GV_FL} offset:{F_WO2}")
            lg.issue("flag")
        if f + PD == 80:
            if not CFG["parkpre"]:
                lg.wait(a, "flag")
                spin_lds(a, GV_FL, F_WO2, 4, 1, G_T, first=False)
            st.stamp(a, "wo2")
        w = []
        n = vm.need(("o", h)) if cb == 0 else None
        if n is not None:
            w.append(f"vmcnt({n})")
        n = lg.need(("w", min(127, f + WP - 1))) if f % WP == 0 else None
        if n is not None:
            w.append(f"lgkmcnt({n})")
        if w:
            a("s_waitcnt " + " ".join(w))
        if cb == 0 and h in (4, 8, 12, 24, 28):
            st.stamp(a, f"h{h}")
        for i in (0, 1):
            ii = i ^ (cb & 1) if CFG["g2serp"] else i
            a(mfma(G2_ACC + 16 * ii + 4 * cb, G2_WF + 4 * (f % NF), oreg(h, ii), "0" if h == 0 else None))
            if f + PD < 128:
                a(wread(f + PD, i))
            else:
                for _ in range(2):
                    if tailfill:
                        a(tailfill.pop(0))
        more(2 * (h + D) + (cb + 1) // 2)
    if CFG["g2tail"]:
        P, A = G2_PK, G2_OA
        mm = lambda i, f: mfma(G2_ACC + 16 * i + 4 * (f & 3), G2_WF + 4 * (f % NF), oreg(f >> 2, i))
        fin = lambda i, cb: cvt2(P + 8 * i + 2 * cb, G2_ACC + 16 * i + 4 * cb) + [f"ds_write_b64 v{A + cb}, {vr(P + 8 * i + 2 * cb, 2)}"]
        rd = lambda i: [f"ds_read_b128 {vr(P + 16 + 8 * i + 4 * k, 4)}, v{A + 4} offset:{1024 * k}" for k in (0, 1)]
        sto = lambda n, c: (f"s_mov_b32 s{G_T}, {8 * 8192 * n}\ns_waitcnt lgkmcnt({c})\n"
                            f"buffer_store_dwordx4 {vr(P + 16 + 4 * n, 4)}, v{GV_OUT}, s[{G_SRDOUT}:{G_SRDOUT + 3}], s{G_T} offen{CFG['ost']}")
        a(f"s_waitcnt vmcnt({vm.need(('o', 30))}) lgkmcnt({lg.need(('w', 123))})")
        a.extend([mm(0, f) for f in range(120, 124)])
        a("s_waitcnt vmcnt(0) lgkmcnt(0)")
        M = [(mm(0, 124 + cb) + ("\ns_nop 0\ns_nop 0" if cb < 3 and CFG.get("tnop") else ""), fin(0, cb) + (rd(0) if cb == 3 else [])) for cb in range(4)]
        for cb in range(4):
            M += [(mm(1, 120 + cb), []), (mm(1, 124 + cb), fin(1, cb) + (rd(1) if cb == 3 else []))]
        lag_weave(a, M, lag=6 if CFG.get("tnop") else 8, per=CFG["g2tail"])
        st.stamp(a, "g2end")
        k = [i for i, x in enumerate(a.ins) if x.op == "ds_write_b64"][-2]
        a.ins[k:k] = [Ins(x) for n, c in ((0, 3), (1, 2)) for x in sto(n, c).split("\n")]
        a(sto(2, 1))
        a(sto(3, 0))
        return
    assert not tailfill
    st.stamp(a, "g2end")
    P = G2_WF
    if CFG["oblds"]:
        for i in (0, 1):
            for cb in range(4):
                a.extend(cvt2(P + 8 * i + 2 * cb, G2_ACC + 16 * i + 4 * cb))
                a(f"ds_write_b64 v{G2_AD + cb}, {vr(P + 8 * i + 2 * cb, 2)}")
            for k in (0, 1):
                a(f"ds_read_b128 {vr(P + 16 + 8 * i + 4 * k, 4)}, v{G2_AD + 4} offset:{1024 * k}")
        for n in range(4):
            a(f"s_mov_b32 s{G_T}, {8 * 8192 * n}")
            a(f"s_waitcnt lgkmcnt({(7, 6, 1, 0)[n]})")
            a(f"buffer_store_dwordx4 {vr(P + 16 + 4 * n, 4)}, v{GV_OUT}, s[{G_SRDOUT}:{G_SRDOUT + 3}], s{G_T} offen{CFG['ost']}")
        return
    a(f"s_mov_b32 s{G_T}, {16 * 8192}")
    for p in (0, 1):
        for i in (0, 1):
            for cb in (2 * p, 2 * p + 1):
                a.extend(cvt2(P + 8 * i + 2 * cb, G2_ACC + 16 * i + 4 * cb))
        for i in (0, 1):
            for j in (0, 1):
                a(f"v_permlane16_swap_b32 v{P + 8 * i + 4 * p + j}, v{P + 8 * i + 4 * p + 2 + j}")
        for i in (0, 1):
            a(f"buffer_store_dwordx4 {vr(P + 8 * i + 4 * p, 4)}, v{GV_OUT}, s[{G_SRDOUT}:{G_SRDOUT + 3}], {f's{G_T}' if i else 0} offen offset:{64 * p}{CFG['ost']}")


def ob_addr():
    A, T = G2_OA if CFG["g2tail"] else G2_AD, G_T
    return [f"s_mul_i32 s{T}, s{G_HH}, {EX[1] - EX[0]}",
            f"s_lshl_b32 s{T + 1}, s{G_HALF}, 11",
            f"s_add_u32 s{T}, s{T}, s{T + 1}",
            f"s_add_u32 s{T}, s{T}, {EX[0]}",
            f"v_lshrrev_b32 v1, 5, v0",
            f"v_xor_b32 v1, v1, v0",
            f"v_and_b32 v1, 7, v1",
            f"v_lshl_add_u32 v1, v1, 4, s{T}",
            f"v_bfe_u32 v2, v0, 4, 1",
            f"v_lshl_add_u32 v1, v2, 3, v1",
            f"v_and_b32 v2, 15, v0",
            f"v_lshl_add_u32 v{A}, v2, 7, v1",
            ] + [f"v_xor_b32 v{A + cb}, {32 * cb}, v{A}" for cb in (1, 2, 3)] + [
            f"v_lshrrev_b32 v1, 3, v0",
            f"v_xor_b32 v1, v1, v0",
            f"v_and_b32 v1, 7, v1",
            f"v_and_b32 v2, 56, v0",
            f"v_add_u32 v1, v1, v2",
            f"v_lshl_add_u32 v{A + 4}, v1, 4, s{T}"]


def g_entry(a, vm, st):
    if CFG["codepf"]:
        a("s_bfe_u32 s34, s2, 0x20003")
        a(f"s_lshl2_add_u32 s34, s34, s{S_WAVE}")
        a("s_lshl_b32 s34, s34, 7")
        a("v_lshl_add_u32 v1, v0, 11, s34")
        a("v_min_u32 v1, L_end-L_entry-8, v1")
        a("s_mov_b64 exec, 0xffff")
        a(f"global_load_dword v{TV - 2}, v1, s[32:33]")
        a("s_mov_b64 exec, -1")
    gpre_addr(a)
    st.stamp(a, "addr")
    a("s_waitcnt lgkmcnt(0)")
    gpre_loads(a, vm)
    st.stamp(a, "kvis")
    if CFG["tb1"]:
        touch_setup(a)
        srd(a, 64, P_X, 4 << 20)
        srd(a, 68, P_W, 6 << 20)
        touch_batch(a, vm, *CFG["tb1"], 64, 68)
    if CFG["bpre"]:
        a("s_barrier")
    a("s_branch L_grole")


def g_role(a, st, vm):
    a(f"s_setprio {CFG['prio_g1']}")
    srd(a, S_CNT, P_WS, NCNT * 256, WS_CNT)
    if not CFG["latesetup"]:
        compute_setup(a)
        attn_setup(a)
        g2_setup(a)
    st.stamp(a, "setup")
    gpre_compute(a, vm, st)
    if CFG["latesetup"]:
        compute_setup(a)
        attn_setup(a)
        g2_setup(a)
    a(f"s_and_b32 s{G_T}, s2, 7")
    a(f"s_xor_b32 s{G_T}, s{G_T}, {CFG['cgx']}")
    a(f"s_lshl_b32 s{G_T}, s{G_T}, 5")
    a(f"s_lshr_b32 s{G_T + 1}, s2, 3")
    a(f"s_add_u32 s{G_T}, s{G_T}, s{G_T + 1}")
    a(f"s_add_u32 s{G_T}, s{G_T}, {CNT_Z}")
    a(f"s_lshl_b32 s{G_T}, s{G_T}, 8")
    a(f"s_cmp_eq_u32 s{G_HALF}, 0")
    a(f"s_cselect_b32 s{G_T}, s{G_T}, s{G_WAIT}")
    a(f"s_cmp_eq_u32 s{G_HH}, 0")
    a("s_cbranch_scc0 L_noclear")
    a("s_mov_b64 exec, 1")
    a(f"buffer_store_dword v{ACC}, off, s[{S_CNT}:{S_CNT + 3}], s{G_T} sc1")
    a("s_mov_b64 exec, -1")
    a.label("L_noclear")
    st.stamp(a, "pre")
    compute_loop(a)
    a(f"s_setprio {CFG['prio_at']}")
    pieces = [(c, g) for c in range(10) for g in (0, 1)]
    if CFG.get("x_nowo1"):
        pieces = []
    pieces = pieces[CFG["cwo1"]:]
    if CFG["rev"]:
        pieces = pieces[:10]
    b = Asm()
    attention(b, st)
    nw, (w0, wstep) = CFG["woat"], CFG["woatp"]
    fill = wo_dma_g(pieces[:nw])
    pieces = pieces[nw:]
    k0 = max(i for i, x in enumerate(b.ins) if x.kind == "label" and x.label.startswith("L_sl_done")) + w0
    k1 = max(i for i, x in enumerate(b.ins) if x.op == "s_cmp_eq_u32")
    if CFG["noswap"]:
        k1 = [i for i, x in enumerate(b.ins) if x.op == "buffer_store_dwordx4"][CFG["wend"]]
    for i, x in enumerate(b.ins):
        if i == k1:
            a.extend(fill)
            fill = []
        a.ins.append(x)
        if i > k0 and (i - k0) % wstep == 0 and fill:
            a(fill.pop(0))
    st.stamp(a, "attn")
    n0 = min(CFG["wo0"], len(pieces))
    a(f"s_setprio {CFG['prio_wo']}")
    a.extend(wo_dma_g(pieces[:n0]))
    g2_pre(a)
    a(f"s_waitcnt vmcnt({n0})")
    a(f"s_setprio {CFG['prio_j']}")
    st.stamp(a, "ostd")

    def between(x):
        if CFG["sigfirst"]:
            spin_lds(x, GV_FL, F_GJOIN, 4, 1, G_T)
        x(f"s_setprio {CFG['prio_wo']}")
        x.extend(wo_dma_g(pieces[n0:]))
        for k in range(12 * CFG["park"]):
            if k == CFG["presample"] and not CFG["parkpre"]:
                skip = uid("ps")
                x(f"s_cmp_eq_u32 s{G_T + 2}, 3")
                x(f"s_cbranch_scc0 {skip}")
                x(f"s_load_dword s{G_T}, s[{S_CNT}:{S_CNT + 1}], s{G_WAIT} glc")
                x.label(skip)
            if k % 2 == 0:
                x(f"s_xor_b32 s{G_WOS + 1}, s{G_WOS}, {(10 + k // 2) * 131072}")
            x(f"buffer_load_dwordx4 {vr(G2_PK + 4 * k, 4)}, v{GV_WO2 if k & 1 else GV_WO}, s[{G_SRDWO}:{G_SRDWO + 3}], s{G_WOS + 1} offen offset:{1024 * (k & 1)}")
        x(f"s_setprio {CFG['prio_g2']}")
        if CFG["parkpre"]:
            spin_lds(x, GV_FL, F_CD, 4, 1, G_T)
            skip = uid("ps")
            x(f"s_cmp_eq_u32 s{G_T + 2}, 3")
            x(f"s_cbranch_scc0 {skip}")
            x(f"s_load_dword s{G_T}, s[{S_CNT}:{S_CNT + 1}], s{G_WAIT} glc")
            x.label(skip)
            for k in range(12):
                c = 10 + k // 2
                x(f"s_waitcnt vmcnt({11 - k})")
                x(f"ds_write_b128 v{G2_PA + (c >= 14)}, {vr(G2_PK + 4 * k, 4)} offset:{wo_base(c) - (H_REG if c < 14 else 0) + 1024 * (k & 1)}")
        if not CFG["pollfirst"]:
            after(x)

    def after(x):
        x(f"s_waitcnt vmcnt({20 - 2 * CFG['wo1a'] + 12 * CFG['park']})")
        lds_add(x, GV_FL, 2, F_GGO)
        st.stamp(x, "wo1")
    join_signal_wait(a, GV_FL, F_GJOIN, F_GGO, G_SIG, G_WAIT, 1, G_T, between, want=24 if CFG['cwo1'] or CFG['rev'] else 20, after=after if CFG["pollfirst"] else None,
                     sampled=CFG["presample"] is not None)
    st.stamp(a, "oflag")
    g2_main(a, st)
    st.stamp(a, "st")
    if st.on:
        a("s_waitcnt vmcnt(0)")
    st.flush(a, S_WG, S_WAVE)
    a("s_endpgm")
    compute_rare(a)


L_SRDX, L_SRDW = 32, 36
L_SOX, L_SOW = 40, 41
L_BX, L_BW = 43, 44
L_EX = 46
L_T = 48
LV_X, LV_H, LV_W = 2, 6, 7
C_W = 70


def loader_setup(a):
    T = L_T
    a(f"s_sub_u32 s{C_W}, s{S_WAVE}, 4")
    a(f"s_lshl_b32 s{L_BX}, s{C_W}, 12")
    a(f"s_lshl_b32 s{L_BW}, s{C_W}, 11")
    a(f"s_add_u32 s{L_BW}, s{L_BW}, {W_OFF}")
    a(f"s_lshl_b32 s{T + 1}, s{C_W}, 4")
    a(f"s_lshl_b64 s[{L_EX}:{L_EX + 1}], 0xffff, s{T + 1}")
    a("v_lshrrev_b32 v13, 3, v0")
    a("v_and_b32 v14, 7, v0")
    a("v_lshrrev_b32 v15, 4, v0")
    a(f"s_lshl2_add_u32 s{T + 2}, s{S_RB}, s{C_W}")
    a(f"s_lshl_b32 s{T + 2}, s{T + 2}, 6")
    a(f"s_add_u32 s{T + 2}, s{T + 2}, s{S_PAR}")
    a(f"s_lshl_b32 s{T + 2}, s{T + 2}, 11")
    a(f"v_lshl_add_u32 v16, v13, 12, s{T + 2}")
    a("v_xor_b32 v17, v14, v15")
    a(f"v_lshl_add_u32 v{LV_X}, v17, 4, v16")
    a(f"v_xor_b32 v{LV_X + 1}, 64, v{LV_X}")
    a(f"v_add_u32 v{LV_X + 1}, {8 * 4096 - 1024}, v{LV_X + 1}")
    a(f"v_add_u32 v{LV_X + 2}, {16 * 4096 - 2048}, v{LV_X}")
    a(f"v_add_u32 v{LV_X + 3}, {16 * 4096 - 2048}, v{LV_X + 1}")
    a(f"s_lshl_b32 s{T + 1}, s{S_RB}, 7")
    a(f"s_sub_u32 s{T + 1}, s{T + 1}, 8")
    a(f"s_max_i32 s{T + 1}, s{T + 1}, 0")
    a(f"s_lshl1_add_u32 s{T + 1}, s{T + 1}, s{S_PAR}")
    a(f"s_lshl_b32 s{T + 1}, s{T + 1}, 11")
    a(f"v_lshl_add_u32 v16, v13, 12, s{T + 1}")
    a("v_lshlrev_b32 v17, 1, v15")
    a(f"v_xor_b32 v18, v14, {'v13' if CFG['smf'] else 'v17'}")
    a(f"v_lshl_add_u32 v{LV_H}, v18, 4, v16")
    a(f"s_mul_i32 s{T + 1}, s{C_W}, {16 * 48}")
    a(f"s_add_u32 s{T + 1}, s{T + 1}, s{S_HP}")
    a(f"s_lshl_b32 s{T + 1}, s{T + 1}, 7")
    a(f"v_mul_u32_u24 v16, 6144, v13")
    a("v_and_b32 v17, 2, v17")
    a("v_xor_b32 v17, v14, v17")
    a("v_lshlrev_b32 v17, 4, v17")
    a(f"v_add3_u32 v{LV_W}, v17, v16, s{T + 1}")
    a(f"v_xor_b32 v{LV_W + 1}, 64, v{LV_W}")
    a(f"v_add_u32 v{LV_W + 1}, {8 * 6144 - 1024}, v{LV_W + 1}")
    for part in (1, 2):
        for kgi in (0, 1):
            a(f"v_add_u32 v{LV_W + 2 * part + kgi}, {2048 * part}, v{LV_W + kgi}")
    if CFG["kx"]:
        a(f"s_add_u32 s{L_XC}, s{S_RB}, s{S_HP}")
        a(f"s_and_b32 s{L_XC}, s{L_XC}, {CFG['kx'][1]}")
        a(f"s_lshl_b32 s{L_XC}, s{L_XC}, 7")
    a.extend(korder(0))
    if CFG["sub"]:
        a(f"s_movk_i32 s{L_BH}, {X_HALO}")
        a(f"s_mov_b32 s{L_XC}, {STAGE}")


L_XC = 42


def korder(t):
    if CFG["kx"] and t >= CFG["kx"][0]:
        return [f"s_xor_b32 s{L_SOX}, s{L_XC}, {128 * t}", f"s_mul_i32 s{L_SOW}, s{L_SOX}, 3072"]
    return [f"s_movk_i32 s{L_SOX}, {128 * t}", f"s_mov_b32 s{L_SOW}, {64 * 6144 * t}"]


def loader_groups(t):
    buf = STAGE * ((-t if CFG['rev'] else t) % 3)
    W = [([] if kgi else [f"s_add_u32 m0, s{L_BW}, {buf + 8192 * part}"],
          [f"buffer_load_dwordx4 v{LV_W + 2 * part + kgi}, s[{L_SRDW}:{L_SRDW + 3}], s{L_SOW} offen offset:{1024 * kgi}{CFG['dmod']} lds"])
         for part in range(3) for kgi in (0, 1)]
    X = [([f"s_add_u32 m0, s{L_BX}, {buf}"] if CFG["ilv"] or not i else [],
          [f"buffer_load_dwordx4 v{LV_X + i}, s[{L_SRDX}:{L_SRDX + 3}], s{L_SOX} offen offset:{1024 * i}{CFG['dmod']} lds"]) for i in range(4)]
    G = [X[0]] + W[:2] + [X[1]] + W[2:4] + [X[2]] + W[4:] + [X[3]] if CFG["ilv"] else W[:2] + X + W[2:]
    G.append(([f"s_mov_b32 m0, {buf + X_HALO}"],
              [f"s_mov_b64 exec, s[{L_EX}:{L_EX + 1}]",
               f"buffer_load_dwordx4 v{LV_H}, s[{L_SRDX}:{L_SRDX + 3}], s{L_SOX} offen lds",
               "s_mov_b64 exec, -1",
               ] + korder(t + 1)))
    return G


L_BH, L_RET = 49, 50


def loader_sub(a):
    a.label("L_stage")
    lx = lambda i: f"buffer_load_dwordx4 v{LV_X + i}, s[{L_SRDX}:{L_SRDX + 3}], s{L_SOX} offen offset:{1024 * i} lds"
    lw = lambda i: f"buffer_load_dwordx4 v{LV_W + i}, s[{L_SRDW}:{L_SRDW + 3}], s{L_SOW} offen offset:{1024 * (i & 1)} lds"
    for part in range(3):
        a(f"s_mov_b32 m0, s{L_BX}")
        if part == 0:
            a(f"s_cmp_ge_u32 s{L_BH}, {2 * STAGE}")
            a(f"s_cselect_b32 s{L_T}, {-2 * STAGE}, s{L_XC}")
        a(lx(part))
        a(f"s_add_u32 m0, s{L_BW}, {8192 * part}")
        a(lw(2 * part))
        a(lw(2 * part + 1))
    a(f"s_mov_b32 m0, s{L_BX}")
    a(f"s_add_u32 s{L_BX}, s{L_BX}, s{L_T}")
    a(lx(3))
    a(f"s_mov_b32 m0, s{L_BH}")
    a(f"s_mov_b64 exec, s[{L_EX}:{L_EX + 1}]")
    a(f"buffer_load_dwordx4 v{LV_H}, s[{L_SRDX}:{L_SRDX + 3}], s{L_SOX} offen lds")
    a("s_mov_b64 exec, -1")
    a(f"s_add_u32 s{L_BW}, s{L_BW}, s{L_T}")
    a(f"s_add_u32 s{L_BH}, s{L_BH}, s{L_T}")
    a(f"s_addk_i32 s{L_SOX}, 128")
    a(f"s_add_u32 s{L_SOW}, s{L_SOW}, {64 * 6144}")
    a(f"s_setpc_b64 s[{L_RET}:{L_RET + 1}]")


C_A, C_B, C_WS = 56, 60, 64
C_CG, C_M, C_CH = 68, 69, 71
C_D, C_SIG, C_T = 72, 73, 74
C_HB, C_UB, C_WOS = 80, 81, 82
C_HO, C_UO, C_CB, C_STG, C_KW = 84, 85, 86, 87, 45
HR = 132
CACC, CA, CBF, QR = 16, 48, 112, 208
CV = 224
AA, AB = CV + 8, CV + 9
DF = CV + 16
ONE = CV + 20


def c_setup(a):
    T = C_T
    a(f"s_and_b32 s{C_SIG}, s2, 7")
    a(f"s_xor_b32 s{C_SIG}, s{C_SIG}, {CFG['cgx']}")
    a(f"s_lshr_b32 s{T}, s2, 7")
    a(f"s_lshl1_add_u32 s{C_CG}, s{C_SIG}, s{T}")
    a(f"s_bfe_u32 s{C_M}, s2, 0x40003")
    a(f"s_lshl4_add_u32 s{C_CH}, s{C_CG}, s{C_M}")
    a(f"s_lshl2_add_u32 s{C_CH}, s{C_CH}, s{C_W}")
    a(f"s_mul_i32 s{C_HB}, s{C_W}, {H_PITCH}")
    a(f"s_add_u32 s{C_HB}, s{C_HB}, {H_REG}")
    a(f"s_mul_i32 s{C_UB}, s{C_W}, {U_PITCH}")
    a(f"s_add_u32 s{C_UB}, s{C_UB}, {U_REG}")
    srd(a, S_CNT, P_WS, NCNT * 256, WS_CNT)
    srd(a, C_WS, P_WS, 1024 * ZP, WS_KV if CFG["zb"] == 2 else WS_Z)
    a(f"s_lshl_b32 s{C_HO}, s{C_CH}, 12")
    a(f"s_mul_i32 s{C_UO}, s{C_CH}, {KVP}")
    a(f"s_add_u32 s{C_UO}, s{C_UO}, {WS_KV}")
    a(f"s_lshr_b32 s{C_D}, s{C_CH}, 1")
    a(f"s_lshl_b32 s{C_D}, s{C_D}, 2")
    a(f"s_load_dword s{C_D}, s[{P_D}:{P_D + 1}], s{C_D}")
    a(f"v_lshlrev_b32 v{CV}, 4, v0")
    for e in range(4):
        a(f"v_mov_b32 v{CV + 4 + e}, 0")
    a(f"v_mov_b32 v{CV + 3}, {FLAGS}")
    a(f"v_mov_b32 v{ONE}, 1")
    a(f"s_bfe_u32 s{C_STG}, s2, {CFG['stagpos'] | (CFG['stagbits'] << 16):#x}")
    a("s_mov_b64 exec, 1")
    a(f"ds_write_b128 v{CV + 3}, {vr(CV + 4, 4)}")
    a(f"ds_write_b128 v{CV + 3}, {vr(CV + 4, 4)} offset:16")
    a(f"ds_write_b128 v{CV + 3}, {vr(CV + 4, 4)} offset:32")
    if CFG["ring"]:
        a(f"ds_write_b128 v{CV + 3}, {vr(CV + 4, 4)} offset:{H_PITCH}")
        a(f"v_mov_b32 v22, {FREEW}")
        a(f"ds_write_b128 v22, {vr(CV + 4, 4)}")
        a(f"ds_write_b128 v22, {vr(CV + 4, 4)} offset:{STAGE}")
        a(f"v_mov_b32 v23, {FREEW + 2 * STAGE}")
        a(f"ds_write_b128 v23, {vr(CV + 4, 4)}")
        a("s_mov_b64 exec, -1")
        a(f"v_mov_b32 v22, {FREEW}")
        a("v_mov_b32 v23, 0")
        a(f"s_andn2_b32 s{L_EX}, s{L_EX}, 1")
        a(f"s_lshl2_add_u32 s{L_XC}, s{C_W}, {FULLW}")
    a("s_mov_b64 exec, -1")


def chan_srd(a, d, ptr, s_off):
    a(f"s_add_u32 s{d}, s{ptr}, s{s_off}")
    a(f"s_addc_u32 s{d + 1}, s{ptr + 1}, 0")
    a(f"s_movk_i32 s{d + 2}, 4096")
    a(f"s_mov_b32 s{d + 3}, 0x20000")


def h_loads(a, vm):
    nt = CFG["hmod"]
    chan_srd(a, C_A, P_H, C_HO)
    a(f"s_add_u32 m0, s{C_HB}, 64")
    for e in range(4):
        a(f"v_mov_b32 v{HR + e}, 0")
    for i in range(4):
        a(f"buffer_load_dwordx4 v{CV}, s[{C_A}:{C_A + 3}], 0 offen offset:{1024 * i}{nt} lds")
    a(f"s_add_u32 m0, s{C_HB}, {H_COPY + 80}")
    a("s_mov_b64 exec, 0x100")
    a(f"buffer_load_dwordx4 {vr(HR, 4)}, off, s[{C_A}:{C_A + 3}], 0{nt}")
    a("s_mov_b64 exec, -1")
    for i in range(4):
        a(f"buffer_load_dwordx4 v{CV}, s[{C_A}:{C_A + 3}], 14 offen offset:{1024 * i}{nt} lds")
    vm.issue("h", 9)


def h_piece(i):
    def f(a, vm):
        nt = CFG["hmod"]
        chan_srd(a, C_A, P_H, C_HO)
        a(f"s_add_u32 m0, s{C_HB}, 64")
        if i == 0:
            for e in range(4):
                a(f"v_mov_b32 v{HR + e}, 0")
        a(f"buffer_load_dwordx4 v{CV}, s[{C_A}:{C_A + 3}], 0 offen offset:{1024 * i}{nt} lds")
        a(f"s_add_u32 m0, s{C_HB}, {H_COPY + 80}")
        if i == 0:
            a("s_mov_b64 exec, 0x100")
            a(f"buffer_load_dwordx4 {vr(HR, 4)}, off, s[{C_A}:{C_A + 3}], 0{nt}")
            a("s_mov_b64 exec, -1")
        a(f"buffer_load_dwordx4 v{CV}, s[{C_A}:{C_A + 3}], 14 offen offset:{1024 * i}{nt} lds")
        vm.issue("h", 2 + (i == 0))
    return f


def h_fill(a):
    a(f"v_cmp_lt_u32 vcc, 3, v0")
    a(f"v_mov_b32 v{HR + 8}, {H_COPY - 64}")
    a(f"v_lshlrev_b32 v{HR + 4}, 16, v{HR}")
    a(f"v_cndmask_b32 v{HR + 8}, 0, v{HR + 8}, vcc")
    for e in range(1, 4):
        a(f"v_alignbit_b32 v{HR + 4 + e}, v{HR + e}, v{HR + e - 1}, 16")
    a(f"v_add3_u32 v{HR + 8}, v{HR + 8}, v{CV}, s{C_HB}")
    a("s_mov_b64 exec, 0x1ff")
    a(f"ds_write_b128 v{HR + 8}, {vr(HR + 4, 4)}")
    a("s_mov_b64 exec, -1")


def u_loads(a, vm):
    chan_srd(a, C_A, P_WS, C_UO)
    for c in (0, 1):
        a(f"s_add_u32 m0, s{C_UB}, {(U_COPY - 4 * CFG['ushift']) * c}")
        for i in range(4):
            a(f"buffer_load_dwordx4 v{CV}, s[{C_A}:{C_A + 3}], {4 * c * (1 - CFG['ushift'])} offen offset:{1024 * i}{CFG['uld']} lds")
    vm.issue("u", 8)


def u_fill(a):
    t = CV + 10
    a(f"v_lshrrev_b32 v{t}, 5, v0")
    a(f"v_mul_u32_u24 v{t}, {U_COPY - 512}, v{t}")
    a(f"v_add3_u32 v{t}, v{t}, v{CV}, s{C_UB}")
    a("s_mov_b32 exec_lo, 0xfffffff")
    a("s_mov_b32 exec_hi, 0xfffffff")
    a(f"ds_write_b128 v{t}, {vr(CV + 4, 4)} offset:4096")
    if CFG["ushift"]:
        a("s_mov_b64 exec, 1")
        a(f"ds_write_b32 v{t}, v{CV + 4} offset:{U_COPY + 4092}")
    a("s_mov_b64 exec, -1")


def q_addr(a):
    T, vd, vt = C_T, CV + 1, CV + 10
    a(f"s_lshr_b32 s{T}, s{C_M}, 2")
    a(f"s_and_b32 s{T + 1}, s{C_M}, 3")
    a(f"s_lshl3_add_u32 s{T}, s{T}, s{C_W if CFG['zb'] else T + 1}")
    a(f"s_lshl3_add_u32 s{T}, s{T}, s{T + 1 if CFG['zb'] else C_W}")
    a(f"s_lshl_b32 s{T}, s{T}, 3")
    a(f"v_bfe_u32 v{vt}, v0, 3, 1")
    a(f"v_lshl_add_u32 v{vd}, v{vt}, 8, s{T}")
    a(f"v_bfe_u32 v{vt}, v0, 4, 1")
    a(f"v_lshl_add_u32 v{vd}, v{vt}, 1, v{vd}")
    a(f"v_lshrrev_b32 v{vt}, 5, v0")
    a(f"v_lshl_add_u32 v{vd}, v{vt}, 5, v{vd}")
    a(f"s_lshl_b32 s{T}, s{C_CG}, 7")
    a(f"v_and_b32 v{vt}, 7, v0")
    a(f"v_lshl_add_u32 v{vt}, v{vt}, 4, s{T}")
    a(f"v_lshl_add_u32 v{vd + 1}, v{vd}, 12, v{vt}")
    a(f"v_lshl_add_u32 v{vd}, v{vd}, 11, v{vt}")


def q_loads(a, vm):
    T = C_T + 1
    srd(a, C_B, P_Q, 4 << 20)
    a(f"s_movk_i32 s{T}, 8192")
    for i, (so, off) in enumerate((("0", 0), ("0", 2048), (f"s{T}", 0), (f"s{T}", 2048))):
        a(f"buffer_load_dwordx4 {vr(QR + 4 * i, 4)}, v{CV + 1}, s[{C_B}:{C_B + 3}], {so} offen offset:{off}{CFG.get('qmod', CFG['nt'])}")
    vm.issue("q", 4)


def q_touch(a, vm):
    T, t = C_T, CV + 10
    srd(a, C_B, P_Q, 4 << 20)
    a(f"s_lshr_b32 s{T}, s2, 3")
    a(f"s_lshl2_add_u32 s{T}, s{T}, s{C_W}")
    a(f"s_lshl_b32 s{T}, s{T}, 7")
    a(f"s_lshr_b32 s{T + 1}, s{C_CG}, 1")
    a(f"s_add_u32 s{T}, s{T}, s{T + 1}")
    a(f"s_lshl_b32 s{T}, s{T}, 8")
    a(f"v_lshrrev_b32 v{t}, 1, v0")
    a(f"v_and_b32 v{t + 1}, 1, v0")
    a(f"v_lshlrev_b32 v{t + 1}, 7, v{t + 1}")
    a(f"v_lshl_add_u32 v{t}, v{t}, 11, v{t + 1}")
    a("s_mov_b32 exec_hi, 0")
    a(f"buffer_load_dword v{TV - 1}, v{t}, s[{C_B}:{C_B + 3}], s{T} offen")
    a("s_mov_b64 exec, -1")
    vm.issue("qt")


def wo_chip_touch(a, vm):
    T, t = C_T, CV + 10
    srd(a, C_B, P_WO, 2 << 20)
    a(f"s_lshl2_add_u32 s{T}, s2, s{C_W}")
    a(f"s_lshl_b32 s{T}, s{T}, 11")
    a(f"v_lshlrev_b32 v{t}, 7, v0")
    a("s_mov_b64 exec, 0xffff")
    a(f"buffer_load_dword v{TV - 1}, v{t}, s[{C_B}:{C_B + 3}], s{T} offen")
    a("s_mov_b64 exec, -1")
    vm.issue("wc")


def wo_touch(a, vm, k=0, n=1, mask=None):
    T, t = C_T, CV + 10
    srd(a, C_B, P_WO, 2 << 20)
    a(f"s_lshr_b32 s{T}, s2, 3")
    a(f"s_lshl2_add_u32 s{T}, s{T}, s{C_W}")
    a(f"s_bfe_u32 s{T + 1}, s2, 0x10002")
    a(f"s_lshl4_add_u32 s{T}, s{T}, s{T + 1}")
    a(f"s_lshl_b32 s{T}, s{T}, 10")
    a(f"v_lshrrev_b32 v{t}, 3, v0")
    a(f"v_and_b32 v{t + 1}, 7, v0")
    a(f"v_lshlrev_b32 v{t + 1}, 7, v{t + 1}")
    a(f"v_lshl_add_u32 v{t}, v{t}, 11, v{t + 1}")
    m = ((1 << (64 // n)) - 1) << (64 // n * k)
    if mask:
        m, n = mask, 2
    if n > 1:
        a(f"s_mov_b32 exec_lo, {m & 0xffffffff:#x}")
        a(f"s_mov_b32 exec_hi, {m >> 32:#x}")
    a(f"buffer_load_dword v{TV - 1}, v{t}, s[{C_B}:{C_B + 3}], s{T} offen{CFG['wtmod']}")
    if n > 1:
        a("s_mov_b64 exec, -1")
    vm.issue("wt")


def conv_reads(s, step):
    L = []
    for j in range(8):
        L.append(f"ds_read_b128 {vr(CBF + 32 * s + 4 * j, 4)}, v{AB} offset:{512 * (7 - j) + 64 * step}")
        for e in (0, 1):
            L.append(f"ds_read_b64 {vr(CA + 32 * s + 4 * j + 2 * e, 2)}, v{AA} offset:{512 * j + 64 * step + 8 * e}")
    return L


def conv_mfmas(s, order=None):
    order = CFG["cord"] if order is None else order
    if order == 0:
        P = [(j, cb - j) for cb in range(8) for j in range(cb + 1)]
    elif order == 1:
        P = [(j, i) for j in range(8) for i in (range(7 - j, -1, -1) if j % 2 == 0 else range(8 - j))]
    else:
        P = [(j, i) for i in range(8) for j in (range(7 - i, -1, -1) if i % 2 == 0 else range(8 - i))]
    return [mfma(CACC + 4 * (i + j), CA + 32 * s + 4 * j, CBF + 32 * s + 4 * i) for j, i in P]


def conv_init(a):
    T, t = C_T, CV + 10
    a(f"v_and_b32 v{t}, 1, v0")
    a(f"v_xor_b32 v{t}, 1, v{t}")
    a(f"v_mul_u32_u24 v{AA}, {H_COPY}, v{t}")
    a(f"v_mul_u32_u24 v{AB}, {U_COPY}, v{t}")
    a(f"v_bfe_u32 v{t}, v0, 1, 3")
    a(f"v_lshl_add_u32 v{AA}, v{t}, 3, v{AA}")
    a(f"v_xor_b32 v{t}, 7, v{t}")
    a(f"v_lshl_add_u32 v{AB}, v{t}, 6, v{AB}")
    a(f"v_lshrrev_b32 v{t}, 4, v0")
    a(f"v_lshl_add_u32 v{AA}, v{t}, 4, v{AA}")
    a(f"v_lshl_add_u32 v{AB}, v{t}, 4, v{AB}")
    a(f"v_add3_u32 v{AA}, v{AA}, s{C_HB}, 8")
    a(f"v_add_u32 v{AB}, s{C_UB}, v{AB}")
    a("s_waitcnt lgkmcnt(0)")
    a(f"s_bitcmp1_b32 s{C_CH}, 0")
    a(f"s_cselect_b32 s{T}, 0, 16")
    a(f"s_lshl_b32 s{C_D}, s{C_D}, s{T}")
    a(f"s_and_b32 s{C_D}, s{C_D}, 0xffff0000")
    a(f"v_and_b32 v{t + 1}, 1, v0")
    a(f"v_lshlrev_b32 v{t + 1}, 4, v{t + 1}")
    a(f"v_lshrrev_b32 v{t + 1}, v{t + 1}, s{C_D}")
    a(f"v_bfe_u32 v{t + 2}, v0, 1, 3")
    a(f"v_lshl_add_u32 v{t + 2}, v{t}, 1, v{t + 2}")
    a(f"v_cmp_eq_u32 vcc, 7, v{t + 2}")
    a(f"v_mov_b32 v{DF + 1}, 0")
    a(f"v_mov_b32 v{DF + 3}, 0")
    a(f"v_cndmask_b32 v{DF}, 0, v{t + 1}, vcc")
    a(f"v_cmp_eq_u32 vcc, 6, v{t + 2}")
    a(f"v_cndmask_b32 v{DF + 2}, 0, v{t + 1}, vcc")


def wo1_by_c(a, vm):
    T, t = C_T, CV + 10
    g2_cb(a, C_CB, T)
    wo_voffset(a, t + 1, C_CB, T, t + 2)
    srd(a, L_SRDX, P_WO, 2 << 20)
    a(f"s_mul_i32 s{T}, s{C_CB}, {CFG['rot2']}")
    a(f"s_and_b32 s{T}, s{T}, 7")
    a(f"s_lshl3_add_u32 s{L_SOX}, s{T}, s{C_W}")
    a(f"s_lshl_b32 s{L_SOX}, s{L_SOX}, 15")
    a(f"s_lshl_b32 s{L_BX}, s{C_W}, 11")
    if CFG["rev"]:
        a.extend(wo_dma(t + 1, L_SRDX, L_BX, L_SOX, [(wo_base(c) + 1024 * g, 64 * c + 8 * g) for c in range(5, 10) for g in (0, 1)]))
        vm.issue("wo1", 10)
        return
    spin_lds(a, CV + 3, F_EX, 4, t, T)
    n = CFG["cwo1"]
    a.extend(wo_dma(t + 1, L_SRDX, L_BX, L_SOX, [(wo_base(c) + 1024 * g, 64 * c + 8 * g) for c in range(10) for g in (0, 1)][:n]))
    vm.issue("wo1", n)


def conv_loop(a, st):
    T = C_T
    if CFG["holdex"]:
        spin_lds(a, CV + 3, F_EX, CFG["holdex"], CV + 10, T)
        a(f"s_setprio {CFG['prio_conv']}")
    a.extend(conv_reads(0, 0))
    a(f"s_setprio {CFG['prio_conv']}")
    if CFG["hold"] is not None:
        spin_lds(a, CV + 3, F_AT, 4, CV + 10, T)
    a(f"s_mov_b32 s{T}, 3")
    a("s_waitcnt lgkmcnt(0)")
    st.stamp(a, "conv")
    for cb in range(8):
        a(mfma(CACC + 4 * cb, DF, CBF + 4 * cb, "0"))
    if CFG["alc"] is not None:
        a.ins[-8:-8] = [Ins(".p2align 6")] + [Ins("s_nop 0")] * CFG["alc"]
    a.label("L_conv")
    a.extend(weave(conv_mfmas(0), conv_reads(1, 1) + ([f"s_cmp_lg_u32 s{T}, {CFG['qat']}"] if CFG["qat"] else [])))
    if CFG["qat"]:
        a("s_cbranch_scc1 L_conv_noq")
        q_loads(a, Q("vmcnt", 63))
        a.label("L_conv_noq")
    if CFG["cwo1"]:
        a(f"s_cmp_lg_u32 s{T}, 3")
        a("s_cbranch_scc1 L_conv_nowo")
        a(f"s_waitcnt vmcnt({4 if CFG['qat'] == 3 else 0})")
        lds_add(a, CV + 3, ONE, F_GGO)
        a.label("L_conv_nowo")
    a("s_waitcnt lgkmcnt(0)")
    a.extend(weave(conv_mfmas(1), conv_reads(0, 2) + [f"v_add_u32 v{AA}, 128, v{AA}", f"v_add_u32 v{AB}, 128, v{AB}",
                                                      f"s_sub_u32 s{T}, s{T}, 1", f"s_cmp_lg_u32 s{T}, 0"]))
    a("s_waitcnt lgkmcnt(0)")
    a("s_cbranch_scc1 L_conv")
    st.stamp(a, "cv6")
    b = Rec()
    t = CV + 10
    b(f"s_mul_i32 s{T}, s{C_CG}, {ZP}")
    b(f"s_and_b32 s{T + 1}, s{C_CH}, 63")
    if CFG["zb"] >= 2:
        b(f"s_mul_i32 s{T}, s{C_CH}, {KVP}")
        b(f"v_mov_b32 v{t}, s{T}")
        b(f"v_mov_b32 v{t + 1}, v{CV}")
    elif CFG["zb"]:
        b(f"s_lshl2_add_u32 s{T}, s{T + 1}, s{T}")
        b(f"s_lshl_b32 s{T}, s{T}, 6")
        b(f"v_and_b32 v{t}, 15, v0")
        b(f"v_lshl_add_u32 v{t}, v{t}, 4, s{T}")
        b(f"v_lshrrev_b32 v{t + 1}, 4, v0")
        b(f"v_mul_u32_u24 v{t + 1}, {4 * ZP}, v{t + 1}")
    else:
        b(f"s_add_u32 s{T}, s{T}, s{T + 1}")
        b(f"s_lshl_b32 s{T}, s{T}, 6")
        b(f"v_and_b32 v{t}, 3, v0")
        b(f"v_lshl_add_u32 v{t}, v{t}, 4, s{T}")
        b(f"v_and_b32 v{t + 1}, 12, v0")
        b(f"v_lshrrev_b32 v{t + 2}, 4, v0")
        b(f"v_add_u32 v{t + 1}, v{t + 1}, v{t + 2}")
        b(f"v_mul_u32_u24 v{t + 1}, {ZP}, v{t + 1}")
    b(f"v_add_u32 v{t}, v{t}, v{t + 1}")
    m6 = conv_mfmas(0, 0)
    k = CFG["zearly"]
    a.extend(weave(m6[:36 - k], conv_reads(1, 1) + b.items, per=2 if k else 1))
    a("s_waitcnt lgkmcnt(0)")
    if CFG["park"]:
        lds_add(a, CV + 3, ONE, F_CD)
    st.stamp(a, "cv7")


def conv_tail(a, st):
    T, t = C_T, CV + 10
    b = Rec()
    if not CFG["park"]:
        g2_cb(b, C_CB, T)
        wo_voffset(b, t + 1, C_CB, T, t + 2)
        srd(b, C_A, P_WO, 2 << 20)
        b(f"s_mul_i32 s{T}, s{C_CB}, {CFG['rot2']}")
        b(f"s_and_b32 s{T}, s{T}, 7")
        b(f"s_lshl1_add_u32 s{C_WOS}, s{T}, s{C_W}")
        b(f"s_lshl_b32 s{C_WOS}, s{C_WOS}, 17")
    b(f"s_lshl4_add_u32 s{C_SIG}, s{C_CG}, {CNT_Z}")
    b(f"s_add_u32 s{C_KW}, s{C_SIG}, s{C_M}")
    b(f"s_lshl_b32 s{C_SIG}, s{C_SIG}, 8")
    b(f"s_lshl_b32 s{C_KW}, s{C_KW}, 8")
    P = CA
    M = [[m, []] for m in conv_mfmas(1, 0)]
    k6 = CFG["zearly"]
    if k6:
        P = 176
        M[36 - k6:36 - k6] = [[m, []] for m in conv_mfmas(0, 0)[36 - k6:]]
    for k, x in enumerate(b.items):
        M[k // 2][0] += "\n" + x
    for cb in range(8):
        last = (cb + 1) * (cb + 2) // 2 - 1
        if last >= 36 - k6:
            last += k6
        M[last][1] += cvt2(P + 2 * cb, CACC + 4 * cb)
        if cb & 1 and not CFG.get("x_nozst"):
            p = cb >> 1
            M[last][1] += [f"s_mov_b32 s{T + 2}, {1024 * p if CFG['zb'] >= 2 else 16 * ZP * p}",
                           f"buffer_store_dwordx4 {vr(P + 4 * p, 4)}, v{t}, s[{C_WS}:{C_WS + 3}], s{T + 2} offen{CFG['zst']}"]
    lag_weave(a, M, lag=8, per=2)
    a(f"s_setprio {CFG['prio_ct']}")
    st.stamp(a, "zst")
    w2 = [(1024 * g, 640 + 8 * g) for g in range(8)]
    if CFG.get("x_nowo2") or CFG["park"]:
        w2 = []
    n2 = CFG["wo2"]
    a.extend(wo_dma(t + 1, C_A, C_HB, C_WOS, w2[:n2]))
    a(f"s_waitcnt vmcnt({n2})")
    st.stamp(a, "zstd")
    QU = CBF

    def between(a):
        if CFG["qtail"] == 1:
            q_loads(a, Q("vmcnt", 63))
            a("s_waitcnt vmcnt(0)")
        for r in range(4 if CFG["qtail"] < 2 else 0):
            for d in range(4):
                unpack(a, QU + 8 * r + 2 * d, QU + 8 * r + 2 * d + 1, QR + 4 * r + d)
        if CFG["wo2nap"]:
            a(f"s_sleep {CFG['wo2nap']}")
        a(f"s_setprio {CFG['prio_w2']}")
        a.extend(wo_dma(t + 1, C_A, C_HB, C_WOS, w2[n2:]))
        if w2:
            a(f"s_cmp_ge_u32 s{C_W}, 2")
            a("s_cbranch_scc1 L_nowo3")
            a.extend(wo_dma(t + 1, C_A, C_UB, C_WOS, [(1024 * g, 896 + 8 * g) for g in range(8)]))
            a.label("L_nowo3")
        a(f"s_setprio {CFG['prio_ct']}")
        a(f"s_mul_i32 s{T + 3}, s{C_W}, {POST_PITCH}")
        a(f"s_add_u32 s{T + 3}, s{T + 3}, {POST_ST}")
        a(f"v_lshrrev_b32 v{t}, 5, v0")
        a(f"v_lshl_add_u32 v{t}, v{t}, 1, v0")
        a(f"v_lshl_add_u32 v{t}, v{t}, 4, s{T + 3}")
        a(f"v_and_b32 v{t + 1}, 7, v0")
        a(f"v_mul_u32_u24 v{t + 1}, 544, v{t + 1}")
        a(f"v_lshrrev_b32 v{t + 2}, 3, v0")
        a(f"v_lshl_add_u32 v{t + 1}, v{t + 2}, 3, v{t + 1}")
        a(f"v_add_u32 v{t + 1}, s{T + 3}, v{t + 1}")
        if CFG["zb"] >= 2:
            a(f"s_mul_i32 s{T + 3}, s{C_CG}, {KVP}")
            a(f"s_and_b32 s{T + 4}, s{C_CH}, 63")
            a(f"s_add_u32 s{T + 3}, s{T + 3}, s{T + 4}")
            a(f"s_lshl_b32 s{T + 3}, s{T + 3}, 6")
            a(f"v_lshrrev_b32 v{t + 2}, 2, v0")
            a(f"v_mul_u32_u24 v{t + 2}, {KVP - 64}, v{t + 2}")
            a(f"v_add_u32 v{CV}, v{CV}, v{t + 2}")
        elif CFG["zb"]:
            a(f"s_lshr_b32 s{T + 3}, s{C_CH}, 2")
            a(f"s_mul_i32 s{T + 3}, s{T + 3}, {4 * ZP // 64}")
            a(f"s_add_u32 s{T + 3}, s{T + 3}, s{C_W}")
            a(f"s_lshl_b32 s{T + 3}, s{T + 3}, 6")
            a(f"v_lshrrev_b32 v{t + 2}, 2, v0")
            a(f"v_mul_u32_u24 v{t + 2}, 192, v{t + 2}")
            a(f"v_add_u32 v{CV}, v{CV}, v{t + 2}")
        else:
            a(f"s_mul_i32 s{T + 3}, s{C_CH}, {ZP}")
        srd(a, C_B, P_OUT, 8 << 20)
        if not CFG["cpollfirst"]:
            after(a)

    def after(a):
        if CFG["park"]:
            return
        a("s_waitcnt vmcnt(0)")
        lds_add(a, CV + 3, ONE, F_WO2)

    join_signal_wait(a, CV + 3, F_CJOIN, F_CGO, C_SIG, C_KW, t + 3, T, between, after=after if CFG["cpollfirst"] else None)
    st.stamp(a, "zflag")
    if CFG.get("x_nopost"):
        return
    if CFG["zhold"] is not None and not CFG["shold"]:
        spin_lds(a, CV + 3, F_GZ, 1, t + 3, T)
    Z = CA
    for i in range(4):
        a(f"buffer_load_dwordx4 {vr(Z + 4 * i, 4)}, v{CV}, s[{C_WS}:{C_WS + 3}], s{T + 3} offen offset:{0 if CFG['zb'] else 1024 * i}{CFG['zld']}")
        if CFG["zb"]:
            a(f"s_add_u32 s{T + 3}, s{T + 3}, {16 * KVP if CFG['zb'] >= 2 else 4096}")
    nq = 4 if CFG["qtail"] == 2 else 0
    if nq:
        q_loads(a, Q("vmcnt", 63))
        srd(a, C_B, P_OUT, 8 << 20)
    for i in range(4):
        a(f"s_waitcnt vmcnt({3 - i + nq})")
        a(f"ds_write_b128 v{t}, {vr(Z + 4 * i, 4)} offset:{1088 * i}")
    st.stamp(a, "zld")
    for j in range(8):
        a(f"ds_read_b64 {vr(Z + 16 + 2 * j, 2)}, v{t + 1} offset:{64 * j}")
    ZU = CACC
    for j in range(8):
        a(f"s_waitcnt lgkmcnt({7 - j})")
        for e in (0, 1):
            unpack(a, ZU + 8 * (2 * e) + j, ZU + 8 * (2 * e + 1) + j, Z + 16 + 2 * j + e)
    for r in range(nq):
        a(f"s_waitcnt vmcnt({3 - r})")
        for d in range(4):
            unpack(a, QU + 8 * r + 2 * d, QU + 8 * r + 2 * d + 1, QR + 4 * r + d)
    for r, ro in enumerate((0, 1, 4, 5)):
        for j in range(8):
            a(f"v_mul_f32 v{ZU + 8 * r + j}, v{ZU + 8 * r + j}, v{QU + 8 * r + j}")
        for d in range(4):
            a(f"v_cvt_pk_bf16_f32 v{Z + 4 * r + d}, v{ZU + 8 * r + 2 * d}, v{ZU + 8 * r + 2 * d + 1}")
        if not CFG["shold"]:
            a(f"s_mov_b32 s{T}, {4096 * ro}")
            a(f"buffer_store_dwordx4 {vr(Z + 4 * r, 4)}, v{CV + 2}, s[{C_B}:{C_B + 3}], s{T} offen{CFG.get('osta', CFG['ost'])}")
    if CFG["shold"]:
        spin_lds(a, CV + 3, F_GZ, CFG["shold"], t + 3, T)
        for r, ro in enumerate((0, 1, 4, 5)):
            a(f"s_mov_b32 s{T}, {4096 * ro}")
            a(f"buffer_store_dwordx4 {vr(Z + 4 * r, 4)}, v{CV + 2}, s[{C_B}:{C_B + 3}], s{T} offen{CFG.get('osta', CFG['ost'])}")


def c_role(a, st):
    K = 1 << CFG["stagbits"]
    vm = MQ(K, C_STG)
    T = C_T
    if CFG["ring"]:
        a("s_add_u32 s94, s32, L_tab-L_entry-4")
        a("s_addc_u32 s95, s33, 0")
    loader_setup(a)
    touch_setup(a)
    a("s_waitcnt lgkmcnt(0)")
    srd(a, L_SRDX, P_X, 4 << 20)
    srd(a, L_SRDW, P_W, 6 << 20)
    a(f"s_setprio {CFG['prio_c1']}")
    st.stamp(a, "karg")
    c_setup(a)
    if CFG["cearly"]:
        q_addr(a)
        conv_init(a)
    if CFG["bpre"]:
        a("s_barrier")
    st.stamp(a, "cgo")

    def sig_kv(k):
        def f(a, vm):
            skip = uid("sig")
            a(f"s_bfe_u32 s{T}, s2, 0x20003")
            a(f"s_lshl2_add_u32 s{T}, s{T}, s{C_W}")
            a(f"s_cmp_lg_u32 s{T}, {4 * k}")
            a(f"s_cbranch_scc1 {skip}")
            srd(a, C_B, P_DBG, 256)
            a(f"s_and_b32 s{T}, s2, 3")
            a(f"s_lshl_b32 s{T}, s{T}, 6")
            a("s_mov_b64 exec, 1")
            a(f"buffer_atomic_add v{ONE}, off, s[{C_B}:{C_B + 3}], s{T} sc1")
            a("s_mov_b64 exec, -1")
            a.label(skip)
        return f

    def pld(a, vm):
        for j in range(4):
            a(f"s_load_dword s{4 + j}, s[{P_DBG}:{P_DBG + 1}], {64 * j}")

    def pchk(a, vm):
        done, loop = uid("pc_done"), uid("pc_loop")
        if not CFG["ring"]:
            a(f"s_cmp_lg_u32 s{C_W}, 0")
            a(f"s_cbranch_scc1 {done}")
        a("s_waitcnt lgkmcnt(0)")
        a("s_min_u32 s4, s4, s5")
        a("s_min_u32 s6, s6, s7")
        a("s_min_u32 s4, s4, s6")
        a("s_cmp_ge_u32 s4, 64")
        a(f"s_cbranch_scc1 {done}")
        srd(a, C_B, P_DBG, 256)
        a(f"v_lshlrev_b32 v20, 6, v0")
        a(f"s_mov_b32 s{T}, {SPIN_MAX}")
        a("s_mov_b64 exec, 0xf")
        a.label(loop)
        a(f"buffer_load_dword v21, v20, s[{C_B}:{C_B + 3}], 0 offen sc1")
        a("s_waitcnt vmcnt(0)")
        a("v_cmp_gt_u32 vcc, 64, v21")
        a(f"s_cbranch_vccz {done}")
        a("s_sleep 4")
        a(f"s_sub_u32 s{T}, s{T}, 1")
        a(f"s_cbranch_scc0 {loop}")
        a.label(done)
        a("s_mov_b64 exec, -1")

    def s15(a, vm):
        vm.wait(a, ("S", 15))
        lds_add(a, CV + 3, ONE, F_S15)

    def only(k, fs):
        def f(a, vm):
            skip = uid("stg")
            a(f"s_cmp_lg_u32 s{C_STG}, {k}")
            a(f"s_cbranch_scc1 {skip}")
            vm.only = k
            for g in fs:
                g(a, vm)
            vm.only = None
            a.label(skip)
        return f

    def krd(a, vm):
        pre_tile(a, T, T + 1, C_W, T + 2)
        kvt_addr(a, 20, C_HB, T, T + 1, T + 2, C_A)
        kvt_read(a, 20, 24)

    def kst(a, vm):
        a("s_waitcnt lgkmcnt(0)")
        kvt_store(a, 20, 24, T, C_A)
        vm.issue("kst", 4)

    W = lambda *tags: (lambda a, vm: vm.wait(a, *tags))
    A = lambda f, *x: (lambda a, vm: f(a, *x))
    items = dict(s15=s15, pld=pld, pchk=pchk, sig0=sig_kv(0), sig1=sig_kv(1), sig2=sig_kv(2), sig3=sig_kv(3),
                 u=u_loads, h=h_loads, h0=h_piece(0), h1=h_piece(1), h2=h_piece(2), h3=h_piece(3), q=q_loads, wt=wo_touch, wo1=wo1_by_c, wc=wo_chip_touch, w3=lambda a, vm: wo_touch(a, vm, mask=0x0808080808080808),
                 wook=lambda a, vm: (vm.wait(a, "wo1"), lds_add(a, CV + 3, ONE, F_GGO)), qt=q_touch, hfill=A(h_fill), ufill=A(u_fill), cinit=A(conv_init), cts=A(ctouch_setup), qa=A(q_addr),
                 wh=W("h"), wu=W("u"), wwt=W("wt"), wq=W("q"), stm=lambda a, vm: st.stamp(a, "x"),
                 w4=lambda a, vm: a("s_waitcnt vmcnt(4)"), w2=lambda a, vm: a("s_waitcnt vmcnt(2)"), krd=krd, kst=kst, wst=W("kst"))

    def get(name):
        if "@" in name:
            n, k = name.split("@")
            return only(int(k), [get(x) for x in n.split("+")])
        if name[:2] == "wt" and "/" in name:
            return lambda a, vm: wo_touch(a, vm, *map(int, name[2:].split("/")))
        if name[:2] == "sq":
            k0, k1 = map(int, name[2:].split("-"))

            def fq(a, vm):
                a(f"v_readfirstlane_b32 s{T}, v{CV + 1}")
                for k in range(k0, k1):
                    a(f"s_load_dwordx2 s[90:91], s[{P_Q}:{P_Q + 1}], s{T} offset:{2048 * (256 * (k >> 4) + 32 * ((k >> 3) & 1) + (k & 7)) + 60}")
            return fq
        if name[:2] == "sw":
            k0, k1 = map(int, name[2:].split("-"))

            def f(a, vm):
                a(f"s_lshl2_add_u32 s{T}, s2, s{C_W}")
                a(f"s_lshl_b32 s{T}, s{T}, 11")
                for k in range(k0, k1):
                    a(f"s_load_dwordx2 s[90:91], s[{P_WO}:{P_WO + 1}], s{T} offset:{128 * k + 60}")
            return f
        if name[:2] in ("sh", "su"):
            k0, k1 = map(int, name[2:].split("-"))
            ptr, so = (P_H, C_HO) if name[1] == "h" else (P_WS, C_UO)
            return lambda a, vm: [a(f"s_load_dwordx2 s[90:91], s[{ptr}:{ptr + 1}], s{so} offset:{128 * k + 60}") for k in range(k0, k1)]
        if name.startswith("ct") and "-" in name:
            s0, s1 = map(int, name[2:].split("-"))
            return lambda a, vm: ctouch(a, vm, s0, s1 - s0, L_SRDX, L_SRDW)
        if name.startswith("tb"):
            return lambda a, vm: touch_batch(a, vm, *map(int, name[2:].split("-")), L_SRDX, L_SRDW)
        return items[name]

    todo = [(("S", t), g) for t in range(NSTAGE) for g in loader_groups(t)]
    pos = [0]

    def issue_to(n):
        while CFG["sub"] and pos[0] < min(n, len(todo)):
            a(f"s_call_b64 s[{L_RET}:{L_RET + 1}], L_stage")
            vm.issue(todo[pos[0]][0], 11)
            pos[0] += 11
        while pos[0] < min(n, len(todo)):
            tag, (p1, p2) = todo[pos[0]]
            a.extend(p1)
            a.extend(p2)
            vm.issue(tag)
            pos[0] += 1
            if CFG["ring"] and pos[0] % 11 in CFG["rsamp"] and tag[1] > 1:
                a("ds_read_b32 v23, v22")
            if CFG["ring"] and pos[0] % 11 == 0 and tag[1] > 0:
                a(f"s_sub_u32 m0, s{L_XC}, {4 * tag[1]}")
                a("s_mov_b64 exec, 1")
                a(f"global_load_lds_dword v{CV + 4}, s[94:95] offset:{4 * tag[1]}")
                a("s_mov_b64 exec, -1")
                vm.issue("full")

    if CFG.get("x_noconv"):
        global conv_mfmas
        conv_mfmas = lambda s_: ["s_nop 0"] * 36
    for t in range(-1, 15 + CFG['rev']):
        if t > 0 and CFG["ring"]:
            done, loop = uid("fr_done"), uid("fr_loop")
            a(f"s_mov_b32 s{T}, {SPIN_MAX * 8}")
            if CFG["rsamp"]:
                a(f"s_branch {loop}c")
            a.label(loop)
            a("ds_read_b32 v23, v22")
            a("s_waitcnt lgkmcnt(0)" if CFG["ring"] == 1 else CFG.get("rnap", "s_sleep 1"))
            a.label(loop + "c")
            a(f"v_readfirstlane_b32 s{T + 1}, v23")
            a(f"s_sub_u32 s{T + 1}, s{T + 1}, {85 * (t - 1)}")
            a(f"s_lshr_b32 s{T + 2}, s{T + 1}, 1")
            a(f"s_or_b32 s{T + 1}, s{T + 1}, s{T + 2}")
            a(f"s_andn2_b32 s{T + 1}, 0x55, s{T + 1}")
            a(f"s_cbranch_scc0 {done}")
            a(f"s_sub_u32 s{T}, s{T}, 1")
            a(f"s_cbranch_scc0 {loop}")
            a.label(done)
            st.stamp(a, f"B{t}")
        elif t >= 0:
            vm.wait(a, ("S", t))
            a("s_barrier")
            st.stamp(a, f"B{t}")
        pre, _, post = CFG["sched"].get(t, "").partition("|")
        for x in pre.split():
            get(x)(a, vm)
        issue_to(11 * (t + 3) - CFG["debt"].get(t, 0))
        for x in post.split():
            get(x)(a, vm)
    st.stamp(a, "uh")
    a(f"s_setprio {CFG['prio_cs']}")
    for x in CFG["late"].split():
        get(x)(a, vm)
    conv_loop(a, st)
    conv_tail(a, st)
    st.stamp(a, "st")
    if st.on:
        a("s_waitcnt vmcnt(0)")
    st.flush(a, S_WG, S_WAVE)
    a("s_endpgm")


def build(stamps=False, verbose=False, probe=None, **cfg):
    CFG.clear()
    CFG.update(BASE)
    CFG.update(cfg)
    reset_uid()
    NAP[0] = CFG['nap']
    a = Asm()
    st = SkewProbe(*probe) if probe else (LightStamps(CFG.get('clk', 's_memrealtime')) if stamps else Stamps(False))
    a("L_entry:")
    a("s_getpc_b64 s[32:33]")
    a("s_cmp_ge_u32 s2, 256")
    a("s_cbranch_scc1 L_end")
    st.start(a)
    load_ptrs(a)
    decode_ids(a)
    a(f"s_cmp_ge_u32 s{S_WAVE}, 4")
    a("s_cbranch_scc1 L_crole")
    gvm = Q("vmcnt", 63)
    st.role(0)
    g_entry(a, gvm, st)
    if CFG["ring"]:
        a.label("L_tab")
        a(".long " + ", ".join(str(i) for i in range(16)))
    if CFG["sub"]:
        loader_sub(a)
    a.label("L_crole")
    st.role(4)
    c_role(a, st)
    a.label("L_grole")
    st.role(0)
    g_role(a, st, gvm)
    a.label("L_end")
    a("s_endpgm")
    body = a.finish(verbose)
    txt = build_file([(NAME + "_kernel", body, 256, 512, LDS_BYTES, 256)])
    if stamps and not probe:
        txt += "".join(f"; stamps{w}: " + " ".join(n) + "\n" for w, n in st.names.items())
    return txt, a.padded


def variants(d, stamps=True):
    for n, cfg in d.items():
        cfg = dict(cfg)
        if "sched" in cfg and not cfg.pop("full", 0):
            cfg["sched"] = {**BASE["sched"], **cfg["sched"]}
        open(f"{DEV}/v_{n}.s", "w").write(build(stamps=stamps, **cfg)[0])
    print(" ".join(f"v_{n}.s" for n in d))


if __name__ == "__main__":
    open(DEV + "/k_st.s", "w").write(build(stamps=True, verbose="-v" in sys.argv)[0])
    s, p = build()
    open(DEV + "/k.s", "w").write(s)
    print("padded", p)
    if "install" in sys.argv:
        open(DEV + f"/../{NAME}.s", "w").write(s)
```

```python
import sys
from common import *
from ksched import *

STAGE = 41984
X_HALO, W_OFF, NSTAGE = 16384, 17408, 16
LDS_BYTES = 163840
EX = (STAGE + 36864, 3 * STAGE + 33792)
H_REG, H_PITCH, H_COPY = 3 * STAGE, 8448, 4224
U_REG, U_PITCH, U_COPY = STAGE, 9216, 4576
FLAGS = H_REG + 8400
F_GJOIN, F_GGO, F_CJOIN, F_WO2, F_CGO, F_EX, F_S15, F_AT, F_WO1, F_CD, F_GZ = 0, 4, 8, 12, 16, 20, 24, 28, 32, 36, 40
FULLW, FREEW = FLAGS + H_PITCH, X_HALO
POST_ST, POST_PITCH = STAGE + 2 * U_PITCH, 4352
WS_O, WS_KV, WS_Z, WS_CNT = 0, 4 << 20, 9 << 20, 14 << 20
KVP = ZP = 4224
CNT_O, CNT_Z, NCNT = 0, 256, 512

BASE = dict(dfirst=1, stat=None, rsamp=(), ring=0, zearly=15, rev=0, stagpos=6, ctn=4, g2tail=2, tnop=1, park0=0, parkpre=0, alc=None, al=15, smf=1, noswap=1, wend=0, shold=0, stb0=1, cearly=0, sub=0, qtail=0, zhold=None, presample=4, park=1, parkat=(4, 2), cord=0, g2serp=0, dmod='', serp=1, kx=None, zb=0, pmap=0, wx3=1, wnt=0, xnt=0, xmod=' nt', wtmod='', cwo1=0, cpollfirst=0, sigfirst=0, wo1a=10, prio_av=2, prio_j=2, tight=1, nap=1, pd=8, nfx=1, wo2=0, wo2nap=0, prio_w2=1, zld=' sc1', uld=' sc1', zst=' sc1', kst=' sc1', zloc=0, pollfirst=1, woat=20, woatp=(40, 2), cgx=2, rep=1, holdex=0, oblds=1, debt={}, pm=4, qat=0, hold=None, latesetup=0, cst=0, ospec=0, ilv=1, wxcd=0, bpre=0, b0early=0, drain=4, rot2=0, wo0=0, depth=6, ushift=1,
            prio_g1=2, prio_c1=0, prio_cs=3, prio_at=2, prio_g2=0, prio_conv=1, prio_ct=1, prio_wo=0, wper=4, d0=6,
            nt=" nt", hmod="", ost=" nt", stagbits=2, codepf=1, tb1=None, late="wu wt wh hfill",
            sched={-1: "tb0-4|qa cinit cts", 0: "|ct4-6@0", 1: "|ct6-8@1", 3: "|ct8-10@2", 4: "|sig0 sh0-4",
                   5: "|ct10-12@3 sig1 sh4-8", 6: "|sig2 sh8-12", 7: "|ct12-14@0 sig3 sh12-16", 8: "|sh16-20",
                   9: "|ct14-16@1 sh20-24", 10: "|sh24-28", 11: "|sh28-32", 13: "pld|q pchk", 14: "s15 u h ufill"})
CFG = dict(BASE)

S_WG, S_WAVE, S_PAR, S_RB, S_HP, S_T0 = 2, 3, 4, 5, 6, 7
S_CNT = 52


def wo_base(c):
    if c < 5:
        return 8192 * c
    if c < 10:
        return 2 * STAGE + 8192 * (c - 5)
    return H_REG + H_PITCH * (c - 10) if c < 14 else U_REG + U_PITCH * (c - 14)


def decode_ids(a):
    a("v_lshrrev_b32 v1, 6, v0")
    a(f"s_and_b32 s{S_PAR}, s2, 1")
    a(f"v_readfirstlane_b32 s{S_WAVE}, v1")
    a("v_and_b32 v0, 63, v0")
    a(f"s_bfe_u32 s{S_RB}, s2, 0x30003")
    a(f"s_bfe_u32 s{S_HP}, s2, 0x20001")
    a(f"s_lshr_b32 s{S_T0}, s2, 6")
    a(f"s_lshl2_add_u32 s{S_HP}, s{S_HP}, s{S_T0}")


def unpack(a, dlo, dhi, src):
    a(f"v_lshlrev_b32 v{dlo}, 16, v{src}")
    a(f"v_and_b32 v{dhi}, 0xffff0000, v{src}")


def cvt2(dst, src):
    return [f"v_cvt_pk_bf16_f32 v{dst}, v{src}, v{src + 1}", f"v_cvt_pk_bf16_f32 v{dst + 1}, v{src + 2}, v{src + 3}"]


def lds_add(a, va, vone, off):
    a("s_mov_b64 exec, 1")
    a(f"ds_add_u32 v{va}, v{vone} offset:{off}")
    a("s_mov_b64 exec, -1")


def join_signal_wait(a, va, f_join, f_go, s_sig, s_wait, vt, st, between=None, want=16, after=None, sampled=False):
    other, done = uid("jo"), uid("jd")
    a(f"v_mov_b32 v{vt + 1}, 1")
    a("s_mov_b64 exec, 1")
    a(f"ds_add_rtn_u32 v{vt}, v{va}, v{vt + 1} offset:{f_join}")
    a("s_waitcnt lgkmcnt(0)")
    a(f"v_readfirstlane_b32 s{st + 2}, v{vt}")
    a(f"s_cmp_eq_u32 s{st + 2}, 3")
    a(f"s_cbranch_scc0 {other}a")
    a("s_mov_b64 exec, 0xffff")
    a(f"v_lshlrev_b32 v{vt}, 8, v0")
    a(f"buffer_atomic_add v{vt + 1}, v{vt}, s[{S_CNT}:{S_CNT + 3}], s{s_sig} offen sc1")
    a.label(other + "a")
    a("s_mov_b64 exec, -1")
    if between:
        between(a)
    a(f"s_cmp_eq_u32 s{st + 2}, 3")
    a(f"s_cbranch_scc0 {other}")
    spin_scalar(a, S_CNT, f"s{s_wait}", 16, st, first=not sampled)
    a(f"v_mov_b32 v{vt}, 16")
    lds_add(a, va, vt, f_go)
    if want == 16 and not after:
        a(f"s_branch {done}")
    a.label(other)
    if after:
        after(a)
    spin_lds(a, va, f_go, want, vt, st)
    a.label(done)


TV = 251
TS = 88


def touch_setup(a, t=90):
    a(f"s_lshr_b32 s{t}, s2, 3")
    a(f"s_and_b32 s{t + 1}, s{S_WAVE}, 3")
    a(f"s_lshl2_add_u32 s{t}, s{t}, s{t + 1}")
    a(f"s_and_b32 s{t + 1}, s2, 6")
    a(f"s_lshl3_add_u32 s{TS}, s{t}, s{t + 1}")
    a(f"s_lshl1_add_u32 s{TS}, s{TS}, s{S_PAR}")
    a(f"s_lshl_b32 s{TS}, s{TS}, 11")
    a(f"s_and_b32 s{TS + 1}, s2, 7")
    a(f"s_and_b32 s{t + 1}, s{t}, 1")
    a(f"s_lshl1_add_u32 s{TS + 1}, s{TS + 1}, s{t + 1}")
    a(f"s_lshr_b32 s{t}, s{t}, 1")
    a(f"s_mul_i32 s{t}, s{t}, 48")
    a(f"s_add_u32 s{TS + 1}, s{TS + 1}, s{t}")
    a(f"s_lshl_b32 s{TS + 1}, s{TS + 1}, 7")
    a(f"v_and_b32 v{TV}, 1, v0")
    a(f"v_lshlrev_b32 v{TV}, 12, v{TV}")
    a(f"v_lshrrev_b32 v{TV + 1}, 1, v0")
    a(f"v_lshl_add_u32 v{TV}, v{TV + 1}, 7, v{TV}")
    a(f"v_lshrrev_b32 v{TV - 1}, 2, v0")
    a(f"v_mul_u32_u24 v{TV - 1}, {64 * 6144}, v{TV - 1}")
    a(f"v_and_b32 v{TV + 1}, 3, v0")
    a(f"v_lshl_add_u32 v{TV + 1}, v{TV + 1}, 11, v{TV - 1}")


def touch_batch(a, vm, s0, s1, sx, sw):
    mx = sum(3 << (2 * i) for i in range(s0, s1))
    mw = sum(7 << (4 * i) for i in range(s0, s1))
    wm = " nt" if s0 < CFG["wnt"] else ""
    a(f"s_mov_b32 exec_lo, {mw & 0xffffffff:#x}")
    a(f"s_mov_b32 exec_hi, {mw >> 32:#x}")
    a(f"buffer_load_dword v{TV - 1}, v{TV + 1}, s[{sw}:{sw + 3}], s{TS + 1} offen{wm}")
    if CFG["wx3"]:
        skip = uid("wx3")
        a.ins.pop()
        a(f"s_bfe_u32 s{S_T0}, s{TS + 1}, 0x30007")
        a(f"s_cmp_lg_u32 s{S_T0}, 1")
        a(f"s_cbranch_scc1 {skip}")
        a(f"buffer_load_dword v{TV - 1}, v{TV + 1}, s[{sw}:{sw + 3}], s{TS + 1} offen offset:256")
        a.label(skip)
        a(f"buffer_load_dword v{TV - 1}, v{TV + 1}, s[{sw}:{sw + 3}], s{TS + 1} offen")
    if CFG["wxcd"]:
        a(f"s_xor_b32 s{TS + 1}, s{TS + 1}, 256")
        a(f"buffer_load_dword v{TV - 1}, v{TV + 1}, s[{sw}:{sw + 3}], s{TS + 1} offen{wm}")
        a(f"s_xor_b32 s{TS + 1}, s{TS + 1}, 256")
    a(f"s_mov_b32 exec_lo, {mx:#x}")
    a("s_mov_b32 exec_hi, 0")
    xx = s0 < CFG["xnt"]
    for k in range(4 if xx else 1):
        a(f"buffer_load_dword v{TV - 1}, v{TV}, s[{sx}:{sx + 3}], s{TS} offen{CFG['xmod'] if xx else ''}")
        if xx:
            a(f"s_xor_b32 s{TS}, s{TS}, {(8192, 16384, 8192, 16384)[k]}")
    a("s_mov_b64 exec, -1")
    vm.issue("tb", 2 + CFG["wxcd"] + 3 * xx)


def ctouch_setup(a):
    b = CFG["stagbits"]
    K, S = 1 << b, 16 >> b
    assert CFG["stagpos"] == 8 - b
    a(f"s_lshr_b32 s{S_T0}, s2, {8 - b}")
    a(f"s_mul_i32 s90, s{S_T0}, {1024 // K * 4096}")
    a(f"s_sub_u32 s{TS}, s{TS}, s90")
    a(f"s_mul_i32 s90, s{S_T0}, {64 // K * 6144}")
    a(f"s_sub_u32 s{TS + 1}, s{TS + 1}, s90")
    a(f"v_lshrrev_b32 v20, {5 - b}, v0")
    a(f"v_mul_u32_u24 v20, {1024 // K * 4096 - S * 128}, v20")
    a(f"v_add_u32 v{TV}, v{TV}, v20")
    a(f"v_lshrrev_b32 v20, {6 - b}, v0")
    a(f"v_mul_u32_u24 v20, {S * 64 * 6144 - 64 // K * 6144}, v20")
    a(f"v_sub_u32 v{TV + 1}, v{TV + 1}, v20")


def ctouch(a, vm, s0, n, sx, sw):
    K, S = 1 << CFG["stagbits"], 16 >> CFG["stagbits"]
    assert n <= S
    mx = sum(((1 << (2 * n)) - 1) << (2 * S * k) for k in range(K))
    mw = sum(7 << (4 * S * k + 4 * i) for k in range(K) for i in range(n))
    skip = uid("wx3")
    a(f"s_add_u32 s{S_T0 - 1}, s{TS + 1}, {64 * 6144 * s0}")
    a(f"s_mov_b32 exec_lo, {mw & 0xffffffff:#x}")
    a(f"s_mov_b32 exec_hi, {mw >> 32:#x}")
    a(f"s_bfe_u32 s{S_T0}, s{TS + 1}, 0x30007")
    a(f"s_cmp_lg_u32 s{S_T0}, 1")
    a(f"s_cbranch_scc1 {skip}")
    a(f"buffer_load_dword v{TV - 1}, v{TV + 1}, s[{sw}:{sw + 3}], s{S_T0 - 1} offen offset:256")
    a.label(skip)
    a(f"buffer_load_dword v{TV - 1}, v{TV + 1}, s[{sw}:{sw + 3}], s{S_T0 - 1} offen")
    a(f"s_mov_b32 exec_lo, {mx:#x}")
    a("s_mov_b32 exec_hi, 0")
    a(f"buffer_load_dword v{TV - 1}, v{TV}, s[{sx}:{sx + 3}], s{TS} offen offset:{128 * s0}")
    a("s_mov_b64 exec, -1")
    vm.issue("tb", 2)


GP_K, GP_V, GP_TU, GP_T, GP_TR, GP_U, GP_A = 108, 136, 152, 4, 36, 184, 230
GP_S1, GP_S2, GP_S3, GP_TG, GP_TN, GP_LB, GP_X = 72, 76, 80, 84, 85, 86, 87


def gpre_addr(a):
    A, T = GP_A, GP_X
    pre_tile(a, GP_TG, GP_TN, S_WAVE, T)
    a(f"s_mul_i32 s{GP_LB}, s{S_WAVE}, {H_PITCH}")
    a(f"s_add_u32 s{GP_LB}, s{GP_LB}, {H_REG}")
    a(f"s_lshl_b32 s{T}, s{GP_TN}, 9")
    a(f"s_add_u32 s{T}, s{T}, s{GP_TG}")
    a(f"s_lshl_b32 s{T}, s{T}, 7")
    a(f"v_and_b32 v{A + 1}, 7, v0")
    a(f"v_lshl_add_u32 v{A + 1}, v{A + 1}, 4, s{T}")
    a(f"v_lshrrev_b32 v{A}, 3, v0")
    a(f"v_lshl_add_u32 v{A}, v{A}, 13, v{A + 1}")
    for i in range(3):
        a(f"v_subrev_u32 v{A + 1 + i}, {2048 * (3 - i)}, v{A}")
    a(f"v_add_u32 v{A + 4}, 4096, v{A}")
    a(f"v_lshlrev_b32 v{A + 5}, 4, v0")
    a(f"s_lshl_b32 s{T}, s{GP_TG}, 9")
    a(f"s_add_u32 m0, s{GP_LB}, 4224")


def gpre_loads(a, vm):
    A, nt = GP_A, CFG["nt"]
    srd(a, GP_S3, P_SH, 8192)
    srd(a, GP_S1, P_K, 4 << 20)
    a("s_mov_b32 exec_hi, 0")
    a(f"buffer_load_dwordx4 v{A + 5}, s[{GP_S3}:{GP_S3 + 3}], s{GP_X} offen lds")
    a("s_mov_b64 exec, -1")
    vm.issue("taps")
    rows = [(A + 1, 0), (A + 2, 0), (A + 3, 0), (A, 0), (A, 2048), (A + 4, 0), (A + 4, 2048)]
    for i, (va, off) in enumerate(rows):
        a(f"buffer_load_dwordx4 {vr(GP_K + 4 * i, 4)}, v{va}, s[{GP_S1}:{GP_S1 + 3}], 0 offen offset:{off}{nt}")
        vm.issue(("k", i))
    srd(a, GP_S2, P_V, 4 << 20)
    for i, (va, off) in enumerate(rows[3:]):
        a(f"buffer_load_dwordx4 {vr(GP_V + 4 * i, 4)}, v{va}, s[{GP_S2}:{GP_S2 + 3}], 0 offen offset:{off}{nt}")
        vm.issue(("v", i))


def gpre_compute(a, vm, st):
    A, T = GP_A, GP_X
    a(f"v_and_b32 v{A + 1}, 7, v0")
    a(f"v_lshl_add_u32 v{A}, v{A + 1}, 6, s{GP_LB}")
    a(f"v_mul_u32_u24 v{A + 1}, 528, v{A + 1}")
    a(f"v_lshrrev_b32 v{A + 2}, 3, v0")
    a(f"v_xor_b32 v{A + 2}, 7, v{A + 2}")
    a(f"v_lshl_add_u32 v{A + 1}, v{A + 2}, 3, v{A + 1}")
    a(f"v_add_u32 v{A + 1}, s{GP_LB}, v{A + 1}")
    if not CFG["cst"]:
        kvt_addr(a, A + 2, GP_LB, GP_TG, GP_TN, T, GP_S3)
    vm.wait(a, "taps")
    for d in range(4):
        a(f"ds_read_b128 {vr(GP_TR + 4 * d, 4)}, v{A} offset:{4224 + 16 * d}")
    for d in range(4):
        a(f"s_waitcnt lgkmcnt({3 - d})")
        for e in (0, 1):
            for h in (0, 1):
                unpack(a, GP_TU + 8 * d + 4 * h + e, GP_TU + 8 * d + 4 * h + 2 + e, GP_TR + 4 * d + 2 * e + h)
    for i in range(0, 16, 2):
        a(f"v_mov_b64 v[{GP_TR + i}:{GP_TR + i + 1}], 0")
    p = lambda r: vr(r, 2)
    for i in range(7):
        vm.wait(a, ("k", i))
        for d in range(4):
            unpack(a, GP_U + 2 * d, GP_U + 2 * d + 1, GP_K + 4 * i + d)
        for r in range(4):
            t = r + 3 - i
            if 0 <= t <= 3:
                for d in range(4):
                    acc = p(GP_T + 8 * d + 2 * r)
                    if t == 3:
                        a(f"v_pk_mul_f32 {acc}, {p(GP_U + 2 * d)}, {p(GP_TU + 8 * d + 2 * t)}")
                    else:
                        a(f"v_pk_fma_f32 {acc}, {p(GP_U + 2 * d)}, {p(GP_TU + 8 * d + 2 * t)}, {acc}")
    st.stamp(a, "kdone")
    for r in range(4):
        vm.wait(a, ("v", r))
        for d in range(4):
            unpack(a, GP_U + 2 * d, GP_U + 2 * d + 1, GP_V + 4 * r + d)
        for d in range(4):
            acc = p(GP_T + 8 * d + 2 * r)
            a(f"v_pk_mul_f32 {acc}, {acc}, {p(GP_U + 2 * d)}")
    R = GP_K
    for j in range(8):
        t = GP_T + 8 * (j >> 1) + (j & 1)
        a(f"v_cvt_pk_bf16_f32 v{R + 2 * j}, v{t + 6}, v{t + 4}")
        a(f"v_cvt_pk_bf16_f32 v{R + 2 * j + 1}, v{t + 2}, v{t}")
        a(f"ds_write_b64 v{A + 1}, {vr(R + 2 * j, 2)} offset:{64 * j}")
    if not CFG["cst"]:
        kvt_read(a, A + 2, A + 4 if CFG["stb0"] else GP_TU)
    for i in range(0, 32, 2):
        a(f"v_mov_b64 v[{GP_T + i}:{GP_T + i + 1}], 0")
    st.stamp(a, "vdone")
    a("s_waitcnt lgkmcnt(0)")
    if not CFG["cst"] and not CFG["stb0"]:
        kvt_store(a, A + 2, GP_TU, T, GP_S3)


def pre_tile(a, tg, tn, w, t):
    pm = CFG["pm"]
    if pm == 4:
        a(f"s_and_b32 s{tg}, s2, 3")
        if CFG["pmap"]:
            a(f"s_lshl_b32 s{tg}, s{tg}, 1")
            a(f"s_lshr_b32 s{tg}, 0x8d, s{tg}")
            a(f"s_and_b32 s{tg}, s{tg}, 3")
        a(f"s_lshl2_add_u32 s{tg}, s{tg}, s{w}")
        a(f"s_lshr_b32 s{tn}, s2, 2")
    else:
        a(f"s_and_b32 s{tg}, s2, 7")
        a(f"s_lshr_b32 s{t}, s{w}, 1")
        a(f"s_lshl1_add_u32 s{tg}, s{tg}, s{t}")
        a(f"s_lshr_b32 s{tn}, s2, 3")
        a(f"s_and_b32 s{t}, s{w}, 1")
        a(f"s_lshl1_add_u32 s{tn}, s{tn}, s{t}")


def kvt_addr(a, A, lb, tg, tn, T, sd):
    a(f"v_lshrrev_b32 v{A}, 5, v0")
    a(f"v_add_u32 v{A}, v0, v{A}")
    a(f"v_lshl_add_u32 v{A}, v{A}, 4, s{lb}")
    a(f"s_mul_i32 s{T}, s{tg}, {KVP}")
    a(f"s_sub_u32 s{T}, s{T}, s{tn}")
    a(f"s_lshl_b32 s{T}, s{T}, 6")
    a(f"s_add_u32 s{T}, s{T}, 4032")
    a(f"v_and_b32 v{A + 1}, 3, v0")
    a(f"v_lshl_add_u32 v{A + 1}, v{A + 1}, 4, s{T}")
    a(f"v_lshrrev_b32 v{A + 2}, 2, v0")
    a(f"v_mul_u32_u24 v{A + 2}, {KVP}, v{A + 2}")
    a(f"v_add_u32 v{A + 1}, v{A + 1}, v{A + 2}")
    srd(a, sd, P_WS, 1024 * KVP, WS_KV)


def kvt_read(a, A, R):
    for i in range(4):
        a(f"ds_read_b128 {vr(R + 4 * i, 4)}, v{A} offset:{1056 * i}")


def kvt_store(a, A, R, T, sd):
    for i in range(4):
        a(f"s_mov_b32 s{T}, {16 * KVP * i}")
        a(f"buffer_store_dwordx4 {vr(R + 4 * i, 4)}, v{A + 1}, s[{sd}:{sd + 3}], s{T} offen{CFG['kst']}")


ACC = 4
accQ = lambda b, d: ACC + 4 * (2 * b + d)
accK = lambda b, d: ACC + 32 + 4 * (2 * b + d)
accV = lambda b, d: ACC + 64 + 4 * (2 * b + d)
ACC_KH, ACC_VH = ACC + 96, ACC + 100
FR = 108


def frX(s, b):
    if CFG["smf"]:
        return FR + 32 if b == 4 else FR + 56 * s + 4 * b
    return FR + 44 * s + 4 * b


def frW(s, part, d):
    if CFG["smf"]:
        if part and not d:
            return FR + 40 + 8 * (part - 1) + 4 * s
        return FR + 56 * s + 16 + 4 * (d if part == 0 else part + 1)
    return FR + 44 * s + 20 + 4 * (2 * part + d)


SIDX = 202
AD = 196
G_HH, G_HALF, G_BUF, G_DELTA, G_CNT, G_T = 32, 33, 34, 35, 36, 37
GV_O, GV_OUT, GV_WO, GV_FL, GV_RD = 224, 226, 227, 228, 229


def compute_setup(a):
    a(f"s_lshr_b32 s{G_HH}, s{S_WAVE}, 1")
    a(f"s_and_b32 s{G_HALF}, s{S_WAVE}, 1")
    a("v_and_b32 v1, 15, v0")
    a("v_lshrrev_b32 v2, 4, v0")
    a("v_lshrrev_b32 v3, 1, v1")
    a("v_xor_b32 v3, v2, v3")
    a("v_lshlrev_b32 v3, 4, v3")
    a(f"v_lshl_add_u32 v3, v1, 7, v3")
    a(f"s_lshl_b32 s{G_T}, s{G_HALF}, 13")
    a(f"v_add_u32 v{AD}, s{G_T}, v3")
    a(f"v_xor_b32 v{AD + 1}, 64, v{AD}")
    if CFG["smf"]:
        a(f"v_and_b32 v{AD + 2}, 7, v1")
        a("v_lshlrev_b32 v3, 1, v2")
        a(f"v_xor_b32 v3, v3, v{AD + 2}")
        a("v_lshlrev_b32 v3, 4, v3")
        a(f"v_lshl_add_u32 v3, v{AD + 2}, 7, v3")
        a(f"v_lshrrev_b32 v{SIDX}, 3, v1")
        a(f"v_lshl_add_u32 v3, v{SIDX}, 2, v3")
        a(f"v_add_u32 v{AD + 2}, {X_HALO}, v3")
        a(f"v_xor_b32 v{AD + 3}, 16, v{AD + 2}")
        a(f"v_mul_u32_u24 v{SIDX}, 0xaaaa, v{SIDX}")
        a(f"v_add_u32 v{SIDX}, 0x4444, v{SIDX}")
    else:
        a("v_and_b32 v3, 6, v1")
        a("v_xor_b32 v3, v2, v3")
        a("v_lshlrev_b32 v3, 4, v3")
        a(f"v_and_b32 v{AD + 2}, 7, v1")
        a(f"v_lshl_add_u32 v3, v{AD + 2}, 7, v3")
        a(f"v_add_u32 v{AD + 2}, {X_HALO}, v3")
        a(f"v_xor_b32 v{AD + 3}, 64, v{AD + 2}")
    a("v_bfe_u32 v3, v0, 2, 2")
    a(f"v_lshl_add_u32 v{AD + 4}, v2, 3, v3")
    a(f"v_lshlrev_b32 v{AD + 4}, 7, v{AD + 4}")
    a("v_bfe_u32 v3, v0, 3, 2")
    a(f"v_xor_b32 v3, s{S_WAVE}, v3")
    a(f"v_lshl_add_u32 v{AD + 4}, v3, 5, v{AD + 4}")
    a("v_and_b32 v3, 3, v0")
    a(f"v_lshl_add_u32 v{AD + 4}, v3, 3, v{AD + 4}")
    a(f"v_add_u32 v{AD + 4}, {W_OFF}, v{AD + 4}")
    a(f"v_xor_b32 v{AD + 5}, 32, v{AD + 4}")
    for i in range(48, 104, 2):
        a(f"v_mov_b64 v[{ACC + i}:{ACC + i + 1}], 0")
    a(f"s_mov_b32 s{G_BUF}, 0")
    a(f"v_mov_b32 v{GV_FL}, {FLAGS}")


def reads(s, ks):
    def rx(b):
        if b == 4:
            return f"ds_read_b128 {vr(frX(s, 4), 4)}, v{AD + 2 + ks}"
        return f"ds_read_b128 {vr(frX(s, b), 4)}, v{AD + ks} offset:{2048 * b}"

    def rw(part, d):
        return [f"ds_read_b64_tr_b16 {vr(frW(s, part, d) + 2 * j, 2)}, v{AD + 4 + d} offset:{8192 * part + 4096 * ks + 512 * j}"
                for j in (0, 1)]
    halo = [rx(4)]
    if CFG["smf"]:
        halo = [f"ds_read2_b32 {vr(frX(s, 4) + 2 * j, 2)}, v{AD + 2 + j} offset1:2" for j in (0, 1)] if ks else []
    return [rx(0)] + rw(0, 0) + [rx(1)] + rw(0, 1) + [rx(2)] + rw(1, 0) + [rx(3)] + rw(1, 1) + halo + rw(2, 0) + rw(2, 1)


mQ = lambda s, b, d: mfma(accQ(b, d), frW(s, 0, d), frX(s, b))
mK = lambda s, b, d: mfma(accK(b, d), frW(s, 1, d), frX(s, b))
mV = lambda s, b, d: mfma(accV(b, d), frX(s, b), frW(s, 2, d))
mKH = lambda s: mfma(ACC_KH, frW(s, 1, 0), frX(s, 4))
mVH = lambda s: mfma(ACC_VH, frX(s, 4), frW(s, 2, 0))


smf = lambda acc, part: f"v_smfmac_f32_16x16x64_bf16 {vr(acc, 4)}, {vr(frX(0, 4), 4)}, {vr(frW(0, part, 0), 8)}, v{SIDX}"


def mfmas(s):
    R = range(4)
    if CFG["smf"]:
        Rr = (3, 2, 1, 0)
        return ([mQ(s, b, 0) for b in R] + [mQ(s, b, 1) for b in Rr] + [mK(s, b, 1) for b in R] + [mK(s, b, 0) for b in Rr] +
                [mV(s, b, 0) for b in R] + [mV(s, b, 1) for b in Rr])
    if CFG["serp"] == 2:
        W4 = [(mQ, 0), (mQ, 1), (mK, 1), (mK, 0)]
        L = [f(s, b, d) for b in (1, 2, 3) for f, d in (W4 if b % 2 == 0 else W4[::-1])]
        L = [f(s, 0, d) for f, d in W4] + L
        return L[:4] + [mKH(s)] + L[4:] + [mV(s, b, d) for b in (3, 2, 1, 0) for d in ((0, 1) if b % 2 else (1, 0))] + [mVH(s)]
    if CFG["serp"]:
        Rr = (3, 2, 1, 0)
        return ([mQ(s, b, 0) for b in R] + [mQ(s, b, 1) for b in Rr] + [mK(s, b, 1) for b in R] + [mK(s, b, 0) for b in Rr] + [mKH(s)] +
                [mVH(s)] + [mV(s, b, 0) for b in R] + [mV(s, b, 1) for b in Rr])
    return ([mQ(s, b, 0) for b in R] + [mQ(s, b, 1) for b in R] + [mK(s, b, 0) for b in R] + [mKH(s)] +
            [mK(s, b, 1) for b in R] + [mV(s, b, 0) for b in R] + [mVH(s)] + [mV(s, b, 1) for b in R])


def compute_loop(a):
    a(f"s_mov_b32 s{G_T}, {STAGE}")
    a(f"s_mov_b32 s{G_CNT}, {1 if CFG['ring'] else NSTAGE - 1}")
    if CFG["ring"]:
        a("v_and_b32 v3, 3, v0")
        a("v_lshlrev_b32 v3, 2, v3")
        a(f"v_add_u32 v3, {FULLW}, v3")
        a(f"s_lshl_b32 s72, s{S_WAVE}, 1")
        a("s_lshl_b32 s72, 1, s72")
        a("s_sub_u32 s72, 64, s72")
        a("s_lshr_b64 s[72:73], -1, s72")
    a("s_barrier")
    a.extend(reads(0, 0))
    if CFG["stat"]:
        a(f"s_bfe_u32 s73, s2, {3 | (CFG['stat'][1] << 16):#x}")
        a(f"s_sub_u32 s73, {NSTAGE - 1 - CFG['stat'][0]}, s73")
        a("s_lshl_b32 s72, 1, s73")
        a(f"s_or_b32 s72, s72, {(1 << 1) | (1 << (NSTAGE - CFG['drain'])):#x}")
    elif CFG["stb0"]:
        kvt_store(a, GP_A + 2, GP_A + 4, GP_X, GP_S3)
    if CFG["al"] is not None:
        a("s_branch L_g1_head")
        a(".p2align 6")
        a.label("L_g1_head")
    a("s_waitcnt lgkmcnt(0)")
    a.label("L_g1_loop")
    m0 = mfmas(0)
    fill = reads(1, 1) + [f"ds_read_b32 v1, v{GV_FL} offset:{F_S15}",
                          f"s_add_u32 s{G_BUF}, s{G_BUF}, {STAGE}",
                          f"s_cmp_eq_u32 s{G_BUF}, {3 * STAGE}",
                          f"s_cselect_b32 s{G_DELTA}, {-2 * STAGE}, s{G_T}",
                          f"s_cselect_b32 s{G_BUF}, 0, s{G_BUF}",
                          f"s_bitcmp1_b32 {(1 << 1) | (1 << (NSTAGE - CFG['drain'])):#x}, s{G_CNT}"]
    if CFG["stat"]:
        fill[-1] = f"s_bitcmp1_b32 s72, s{G_CNT}"
    if CFG["rev"]:
        a.ins[[i for i, x in enumerate(a.ins) if x.text == f"s_mov_b32 s{G_T}, {STAGE}"][-1]] = Ins(f"s_mov_b32 s{G_T}, {-STAGE}")
        fill = reads(1, 1) + [f"s_cmp_eq_u32 s{G_BUF}, 0",
                              f"s_cselect_b32 s{G_DELTA}, {2 * STAGE}, s{G_T}",
                              f"s_add_u32 s{G_BUF}, s{G_BUF}, s{G_DELTA}",
                              f"s_cmp_eq_u32 s{G_CNT}, {NSTAGE - CFG['drain']}"]
    adds = [f"v_add_u32 v{AD + i}, s{G_DELTA}, v{AD + i}" for i in range(6)]
    if CFG["ring"]:
        m1 = mfmas(1)
        fill[-6] = "ds_read_b32 v1, v3"
        fill[-1] = f"s_cmp_eq_u32 s{G_CNT}, {CFG['drain']}"
        a.extend(weave(m0[:16], fill[:16]))
        a.extend(weave(m0[16:23], fill[16:] + adds, per=2))
        a(m0[23])
        a("s_cbranch_scc1 L_g1_drain")
        a.label("L_g1_drained")
        a("s_waitcnt lgkmcnt(0)")
        a(smf(ACC_KH, 1))
        a(f"v_cmp_gt_u32 vcc, s{G_CNT}, v1")
        a("s_mov_b64 exec, s[72:73]")
        a(f"ds_append v2 offset:{FREEW}")
        a("s_mov_b64 exec, -1")
        a(smf(ACC_VH, 2))
        if not CFG.get("nochk"):
            a("s_cbranch_vccnz L_g1_wait")
        a.label("L_g1_ready")
        a.extend(weave(m1[:-1], reads(0, 0) + [f"s_add_u32 s{G_CNT}, s{G_CNT}, 1", f"s_cmp_lg_u32 s{G_CNT}, {NSTAGE}"]))
        a("s_waitcnt lgkmcnt(0)")
        a(m1[-1])
        a("s_cbranch_scc1 L_g1_loop")
        a.extend(weave(mfmas(0), reads(1, 1)))
        a("s_waitcnt lgkmcnt(0)")
        return
    m1 = mfmas(1)
    fill1 = reads(0, 0) + [f"s_sub_u32 s{G_CNT}, s{G_CNT}, 1", f"s_cmp_lg_u32 s{G_CNT}, 0"]
    if CFG["smf"]:
        a.extend(weave(m0[:16], fill[:16]))
        a.extend(weave(m0[16:23], fill[16:] + adds, per=2))
        a(m0[23])
        a("s_waitcnt lgkmcnt(0)")
        if CFG["smf"] == 2:
            a(m1.pop(0))
            m1 = [smf(ACC_KH, 1)] + m1[:2] + [smf(ACC_VH, 2)] + m1[2:]
        elif CFG["smf"] == 3:
            a(smf(ACC_KH, 1))
            m1 = m1[:1] + [smf(ACC_VH, 2)] + m1[1:]
        else:
            a(smf(ACC_KH, 1))
            a(smf(ACC_VH, 2))
        a("s_cbranch_scc1 L_g1_rare")
        a.label("L_g1_bar")
        a("s_barrier")
        a.label("L_g1_nobar")
        a.extend(weave(m1[:-1], fill1))
        a("s_waitcnt lgkmcnt(0)")
        a(m1[-1])
    elif CFG["tight"]:
        k = CFG["tight"]
        a.extend(weave(m0[:18], fill[:18]))
        a.extend(weave(m0[18:24], fill[18:] + adds, per=2))
        a(m0[24])
        a("s_waitcnt lgkmcnt(0)")
        a(m0[25])
        a.extend(m1[:k - 1])
        a("s_cbranch_scc1 L_g1_rare")
        a.label("L_g1_bar")
        a("s_barrier")
        a.label("L_g1_nobar")
        a.extend(weave(m1[k - 1:25], fill1))
        a("s_waitcnt lgkmcnt(0)")
        a(m1[25])
    else:
        a.extend(weave(m0[:23], fill))
        a("s_waitcnt lgkmcnt(0)")
        a.extend(weave(m0[23:], adds, per=2))
        a("s_cbranch_scc1 L_g1_rare")
        a.label("L_g1_bar")
        a("s_barrier")
        a.label("L_g1_nobar")
        a.extend(weave(m1, fill1))
        a("s_waitcnt lgkmcnt(0)")
    a("s_cbranch_scc1 L_g1_loop")
    a.extend(weave(mfmas(0), reads(1, 1)))
    a("s_waitcnt lgkmcnt(0)")


def compute_rare(a):
    if CFG["ring"]:
        a.label("L_g1_drain")
        a("s_waitcnt vmcnt(0)")
        a("s_branch L_g1_drained")
        a.label("L_g1_wait")
        a(f"s_mov_b32 s{G_T + 1}, {SPIN_MAX * 8}")
        a.label("L_g1_spin")
        a("ds_read_b32 v1, v3")
        a("s_waitcnt lgkmcnt(0)")
        a(f"v_cmp_gt_u32 vcc, s{G_CNT}, v1")
        a("s_cbranch_vccz L_g1_ready")
        a(f"s_sub_u32 s{G_T + 1}, s{G_T + 1}, 1")
        a("s_cbranch_scc0 L_g1_spin")
        a("s_branch L_g1_ready")
        return
    a.label("L_g1_rare")
    if CFG["stat"]:
        a(f"s_cmp_lg_u32 s{G_CNT}, s73")
        a("s_cbranch_scc1 L_g1_rare2")
        kvt_store(a, GP_A + 2, GP_A + 4, GP_X, GP_S3)
        a("s_branch L_g1_bar")
        a.label("L_g1_rare2")
    a("s_waitcnt vmcnt(0)")
    if CFG["rev"]:
        a("s_branch L_g1_bar")
        return
    a(f"s_cmp_lg_u32 s{G_CNT}, 1")
    a("s_cbranch_scc1 L_g1_bar")
    spin_lds(a, GV_FL, F_S15, 4, 1, G_T + 1, first=False)
    a("s_branch L_g1_nobar")


QF = FR
KF = FR + 16
HX = FR + 36
VF = 230
MC, MP, MP0 = 204, 208, 212
BC = 216
OA = 218
EXW, EXW3, EXR, EXK = 219, 220, 221, 203
G_SRDO = 40


def attn_setup(a):
    a("v_and_b32 v1, 15, v0")
    a("v_lshrrev_b32 v2, 4, v0")
    a("v_lshlrev_b32 v2, 2, v2")
    a("v_sub_u32 v1, v1, v2")
    a(f"s_mov_b32 s{G_T}, 0xf149f2ca")
    a(f"v_mov_b32 v3, s{G_T}")
    a(f"s_or_b32 s{G_T + 1}, s{S_RB}, s{G_HALF}")
    a(f"s_cmp_eq_u32 s{G_T + 1}, 0")
    a(f"s_cselect_b32 s{G_T + 1}, s{G_T}, 0")
    for i in range(4):
        a(f"v_subrev_u32 v2, {i}, v1")
        a("v_cmp_gt_u32 vcc, 8, v2")
        a("v_cmp_gt_i32 s[64:65], -8, v2")
        a("v_ashrrev_i32 v2, 31, v2")
        a(f"v_cndmask_b32 v{MC + i}, v3, 0, vcc")
        a(f"v_cndmask_b32 v{MP + i}, v3, 0, s[64:65]")
        if i & 1:
            a(f"v_alignbit_b32 v{BC + (i >> 1)}, v2, v{BC + (i >> 1)}, 16")
        else:
            a(f"v_mov_b32 v{BC + (i >> 1)}, v2")
        a(f"v_min_f32 v{MP0 + i}, s{G_T + 1}, v{MP + i}")
    a(f"s_mul_i32 s{G_T}, s{G_HH}, {EX[1] - EX[0]}")
    a(f"s_add_u32 s{G_T}, s{G_T}, {EX[0]}")
    a(f"v_lshl_add_u32 v{EXW3}, v0, 3, s{G_T}")
    a(f"s_lshl_b32 s{G_T + 1}, s{G_HALF}, 9")
    a(f"v_add_u32 v{EXW}, s{G_T + 1}, v{EXW3}")
    if CFG["smf"]:
        a(f"s_add_u32 s{G_T + 1}, s{G_T + 1}, s{G_T}")
        a("v_and_b32 v1, 3, v0")
        a(f"v_lshl_add_u32 v1, v1, 1, s{G_T + 1}")
        a("v_bfe_u32 v2, v0, 2, 2")
        a("v_lshl_add_u32 v1, v2, 7, v1")
        a("v_lshrrev_b32 v2, 4, v0")
        a("v_xor_b32 v2, 2, v2")
        a(f"v_lshl_add_u32 v{EXK}, v2, 5, v1")
    a(f"s_mul_i32 s{G_T + 1}, s{G_HALF}, {2048 + 512}")
    a(f"v_add_u32 v{EXR}, s{G_T + 1}, v{EXW3}")
    a(f"v_xor_b32 v{EXR + 1}, 512, v{EXR}")
    a(f"s_lshl3_add_u32 s{G_T}, s{S_PAR}, s{S_RB}")
    a(f"s_lshl1_add_u32 s{G_T}, s{G_T}, s{G_HALF}")
    a(f"s_lshl_b32 s{G_T}, s{G_T}, 7")
    a(f"s_lshl1_add_u32 s{G_T + 1}, s{S_HP}, s{G_HH}")
    a(f"s_add_u32 s{G_T}, s{G_T}, s{G_T + 1}")
    a(f"s_lshl_b32 s{G_T}, s{G_T}, 10")
    a(f"v_lshl_add_u32 v{OA}, v0, 4, s{G_T}")
    srd(a, G_SRDO, P_WS, 4 << 20, WS_O)


def xreduce(a, op, r):
    a(f"v_permlane32_swap_b32 v{r[2]}, v{r[3]}")
    a(f"v_permlane32_swap_b32 v{r[0]}, v{r[1]}")
    a(f"{op} v{r[2]}, v{r[2]}, v{r[3]}")
    a(f"{op} v{r[0]}, v{r[0]}, v{r[1]}")
    a(f"v_permlane16_swap_b32 v{r[0]}, v{r[2]}")
    a(f"{op} v{r[0]}, v{r[0]}, v{r[2]}")


def xbroadcast(a, r):
    a(f"v_permlane16_swap_b32 v{r[0]}, v{r[2]}")
    a(f"v_mov_b32 v{r[1]}, v{r[0]}")
    a(f"v_mov_b32 v{r[3]}, v{r[2]}")
    a(f"v_permlane32_swap_b32 v{r[0]}, v{r[1]}")
    a(f"v_permlane32_swap_b32 v{r[2]}, v{r[3]}")


def attention(a, st):
    kf = lambda b: KF + 4 * (b + 1)
    vf = lambda d, b: VF + 10 * d + 2 * (b + 1)
    Sc = lambda b: accQ(b, 0)
    Sp = lambda b: accQ(b, 1)
    D = (0, 1)
    pub3 = ([f"s_cmp_eq_u32 s{G_HALF}, 0\ns_cbranch_scc0 L_at_nopub\n" +
             "\n".join(f"ds_write_b64 v{EXW3}, {vr(kf(3) + 2 * d, 2)} offset:{2048 + 512 * d}\n"
                       f"ds_write_b64 v{EXW3}, {vr(vf(d, 3), 2)} offset:{2048 + 1024 + 512 * d}" for d in D) +
             f"\nL_at_nopub:\ns_mov_b64 exec, 1\nds_add_u32 v{GV_FL}, v2 offset:{F_EX}\ns_mov_b64 exec, -1"])
    if CFG["smf"]:
        M = [(smf(ACC_KH, 1), []),
             (smf(ACC_VH, 2), [f"v_permlane32_swap_b32 v{ACC_KH + i}, v{ACC_VH + i}" for i in range(4)] +
              [f"v_add_f32 v{ACC_KH + i}, v{ACC_KH + i}, v{ACC_VH + i}" for i in range(4)] + cvt2(HX, ACC_KH) +
              [f"ds_write_b64 v{EXW}, {vr(HX, 2)} offset:1024"] +
              [f"ds_write_b16{'_d16_hi' if i & 1 else ''} v{EXK}, v{HX + (i >> 1)} offset:{8 * i}" for i in range(4)])]
    else:
        M = [(mKH(1), cvt2(HX, ACC_KH) + [f"ds_write_b64 v{EXW}, {vr(HX, 2)}"]),
             (mVH(1), cvt2(HX + 2, ACC_VH) + [f"ds_write_b64 v{EXW}, {vr(HX + 2, 2)} offset:1024"])]
    M += [(mK(1, 3, d), cvt2(kf(3) + 2 * d, accK(3, d))) for d in D]
    M += [(mV(1, 3, d), cvt2(vf(d, 3), accV(3, d)) + (pub3 if d else [])) for d in D]
    for b in (3, 2, 1, 0):
        M += [(mQ(1, b, d), cvt2(QF + 4 * b + 2 * d, accQ(b, d))) for d in D]
        if b:
            M += [(mK(1, b - 1, d), cvt2(kf(b - 1) + 2 * d, accK(b - 1, d))) for d in D]
    for b in (2, 1, 0):
        M += [(mV(1, b, d), cvt2(vf(d, b), accV(b, d))) for d in D]
    M[-3] = (M[-3][0], [f"ds_read_b32 v1, v{GV_FL} offset:{F_EX}"] + M[-3][1])
    R = [accK(0, 0) + i for i in range(4)]

    def merge(b):
        return ([f"v_max_f32 v{Sc(b) + i}, v{Sc(b) + i}, v{Sp(b) + i}" for i in range(4)] +
                [f"v_max3_f32 v{R[b]}, v{Sc(b)}, v{Sc(b) + 1}, v{Sc(b) + 2}", f"v_max_f32 v{R[b]}, v{R[b]}, v{Sc(b) + 3}"])
    S = []
    for b in (3, 2, 1):
        S += [(mfma(Sc(b), kf(b), QF + 4 * b, MC), []), (mfma(Sp(b), kf(b - 1), QF + 4 * b, MP), [])]
    S += [(mfma(Sc(0), kf(0), QF, MC), [])]
    a("v_mov_b32 v2, 1")
    lag_weave(a, M + S, lag=8, per=2)
    st.stamp(a, "g1end")
    a("s_waitcnt lgkmcnt(0)")
    spin_lds(a, GV_FL, F_EX, 4, 1, G_T, first=False)
    for d in D:
        a(f"ds_read_b64 {vr(kf(-1) + 2 * d, 2)}, v{EXR + d}")
    for d in D:
        a(f"ds_read_b64 {vr(vf(d, -1), 2)}, v{EXR + d} offset:1024")
    a.extend(merge(3) + merge(2))
    a("s_waitcnt lgkmcnt(2)")
    a(mfma(Sp(0), kf(-1), QF, MP0))
    a(f"s_setprio {CFG['prio_av']}")
    a(f"s_mov_b32 s{G_T}, 0x3e8293ee")
    a.extend(merge(1) + merge(0))
    xreduce(a, "v_max_f32", R)
    a(f"v_mul_f32 v{R[2]}, s{G_T}, v{R[0]}")
    a(f"v_mul_f32 v{R[0]}, s{G_T}, v{R[0]}")
    xbroadcast(a, R)
    for b in range(4):
        for i in range(4):
            a(f"v_fma_f32 v{Sc(b) + i}, v{Sc(b) + i}, s{G_T}, -v{R[b]}")
    for b in (3, 2, 1, 0):
        for i in range(4):
            a(f"v_exp_f32 v{Sc(b) + i}, v{Sc(b) + i}")
    for b in (3, 2, 1, 0):
        a(f"v_add_f32 v{R[b]}, v{Sc(b)}, v{Sc(b) + 1}")
        a(f"v_add_f32 v{Sp(b)}, v{Sc(b) + 2}, v{Sc(b) + 3}")
        a(f"v_add_f32 v{R[b]}, v{R[b]}, v{Sp(b)}")
    xreduce(a, "v_add_f32", R)
    a(f"v_rcp_f32 v{R[2]}, v{R[0]}")
    a(f"v_rcp_f32 v{R[0]}, v{R[0]}")
    xbroadcast(a, R)
    a("s_waitcnt lgkmcnt(0)")
    O = lambda b, d: accV(b, d)
    sw = lambda b: [f"v_swap_b32 v{QF + 4 * b + j}, v{QF + 4 * b + 2 + j}" for j in (0, 1)]

    def finish(b):
        for d in D:
            a.extend(cvt2(QF + 4 * b + 2 * d, O(b, d)))
        if not CFG["noswap"]:
            a(f"s_cbranch_scc1 L_at_noswap{b}")
            a.extend(sw(b))
            a.label(f"L_at_noswap{b}")
        a(f"s_mov_b32 s{G_T}, {32768 * b}")
        a(f"buffer_store_dwordx4 {vr(QF + 4 * b, 4)}, v{OA}, s[{G_SRDO}:{G_SRDO + 3}], s{G_T} offen sc1")
    if not CFG["noswap"]:
        a(f"s_cmp_eq_u32 s{G_HALF}, 0")
    for b in range(4):
        for i in range(4):
            a(f"v_mul_f32 v{Sc(b) + i}, v{Sc(b) + i}, v{R[b]}")
        a.extend(cvt2(Sp(b) + 2, Sc(b)))
        for j in (0, 1):
            a(f"v_and_b32 v{Sp(b) + j}, v{BC + j}, v{Sp(b) + 2 + j}")
        for j in (0, 1):
            a(f"v_xor_b32 v{Sp(b) + 2 + j}, v{Sp(b) + j}, v{Sp(b) + 2 + j}")
        if b:
            finish(b - 1)
        if b == CFG["hold"]:
            lds_add(a, GV_FL, 2, F_AT)
        a(f"s_setprio {CFG['prio_at']}")
        for d in D:
            a(mfma(O(b, d), vf(d, b - 1), Sp(b), "0"))
        a(f"s_setprio {CFG['prio_av']}")
    finish(3)


G_SRDWO, G_SRDOUT = 44, 48
G_SIG, G_WAIT, G_GC, G_CB, G_WOM, G_ROT, G_WOS = 56, 57, 58, 59, 60, 61, 62
G2_ACC, G2_WF, G2_AD, G2_OR = 4, 36, 84, 96
G2_SETS = (0, 2 * STAGE, 3 * STAGE)
G2_AD2, G2_OA = 232, 244
G2_PK, G2_PA = 172, 230


def g2_cb(a, s_cb, t):
    a(f"s_bfe_u32 s{s_cb}, s2, 0x10002")
    a(f"s_lshr_b32 s{t}, s2, 5")
    a(f"s_lshl3_add_u32 s{s_cb}, s{s_cb}, s{t}")


def wo_voffset(a, vd, s_cb, st, vt):
    a(f"v_lshrrev_b32 v{vt}, 4, v0")
    a(f"v_lshlrev_b32 v{vt}, 1, v{vt}")
    a(f"v_xor_b32 v{vt}, v0, v{vt}")
    a(f"v_and_b32 v{vt}, 7, v{vt}")
    a(f"s_lshl_b32 s{st}, s{s_cb}, 7")
    a(f"v_lshl_add_u32 v{vt}, v{vt}, 4, s{st}")
    a(f"v_lshrrev_b32 v{vd}, 3, v0")
    a(f"v_lshl_add_u32 v{vd}, v{vd}, 11, v{vt}")


def wo_dma(vo, srd_, s_m, s_so, pieces):
    L = []
    for lo, kr in pieces:
        L += [f"s_add_u32 m0, s{s_m}, {lo}",
              f"s_add_u32 s{s_so + 1}, s{s_so}, {kr * 2048}",
              f"s_and_b32 s{s_so + 1}, s{s_so + 1}, 0x1fffff",
              f"buffer_load_dwordx4 v{vo}, s[{srd_}:{srd_ + 3}], s{s_so + 1} offen lds"]
    return L


GV_WO2 = 223


def wo_dma_g(pieces):
    L = []
    for k, (c, g) in enumerate(pieces):
        if g == 0 or k == 0:
            L += [f"s_add_u32 m0, s{G_WOM}, {wo_base(c)}", f"s_xor_b32 s{G_WOS + 1}, s{G_WOS}, {c * 131072}"]
        L.append(f"buffer_load_dwordx4 v{GV_WO2 if g else GV_WO}, s[{G_SRDWO}:{G_SRDWO + 3}], s{G_WOS + 1} offen offset:{1024 * g} lds")
    return L


def g2_setup(a):
    T = G_T
    a(f"s_and_b32 s{G_GC}, s2, 3")
    a(f"s_bfe_u32 s{T}, s2, 0x20003")
    a(f"s_lshl2_add_u32 s{G_GC}, s{G_GC}, s{T}")
    g2_cb(a, G_CB, T)
    srd(a, G_SRDWO, P_WO, 2 << 20)
    srd(a, G_SRDOUT, P_OUT, 8 << 20)
    a(f"s_lshl3_add_u32 s{G_SIG}, s{S_PAR}, s{S_RB}")
    a(f"s_lshl4_add_u32 s{G_SIG}, s{G_SIG}, {CNT_O}")
    a(f"s_lshl_b32 s{G_SIG}, s{G_SIG}, 8")
    a(f"s_lshl4_add_u32 s{G_WAIT}, s{G_GC}, {CNT_O}")
    a(f"s_add_u32 s{G_WAIT}, s{G_WAIT}, s{G_CB}")
    a(f"s_lshl_b32 s{G_WAIT}, s{G_WAIT}, 8")
    a(f"s_lshl2_add_u32 s{T}, s{G_GC}, s{S_WAVE}")
    a(f"s_lshl_b32 s{T + 1}, s{T}, 16")
    a(f"v_lshl_add_u32 v{GV_O}, v0, 4, s{T + 1}")
    a(f"v_add_u32 v{GV_O + 1}, 0x8000, v{GV_O}")
    a(f"s_and_b32 s{T}, s{T}, 31")
    a(f"s_lshl_b32 s{T}, s{T}, 6")
    a(f"s_lshr_b32 s{T + 1}, s{G_GC}, 3")
    a(f"s_add_u32 s{T}, s{T}, s{T + 1}")
    a(f"s_lshl_b32 s{T}, s{T}, 5")
    a(f"s_add_u32 s{T}, s{T}, s{G_CB}")
    a(f"s_add_u32 s{T}, s{T}, 16")
    a(f"s_lshl_b32 s{T}, s{T}, 7")
    if CFG["oblds"]:
        a("v_lshrrev_b32 v1, 3, v0")
        a(f"v_lshl_add_u32 v1, v1, 13, s{T}")
        a("v_and_b32 v2, 7, v0")
        a(f"v_lshl_add_u32 v{GV_OUT}, v2, 4, v1")
    else:
        a("v_and_b32 v1, 15, v0")
        a(f"v_lshl_add_u32 v1, v1, 13, s{T}")
        a("v_bfe_u32 v2, v0, 4, 1")
        a("v_lshl_add_u32 v1, v2, 5, v1")
        a("v_lshrrev_b32 v2, 5, v0")
        a(f"v_lshl_add_u32 v{GV_OUT}, v2, 4, v1")
    wo_voffset(a, GV_WO, G_CB, T, 1)
    a(f"v_add_u32 v{GV_WO2}, {8 * 2048 - 1024}, v{GV_WO}")
    assert CFG["rot2"] in (0, 4)
    a(f"s_lshl_b32 s{G_WOM}, s{S_WAVE}, 11")
    a(f"s_mul_i32 s{G_ROT}, s{G_CB}, {CFG['rot2']}")
    a(f"s_and_b32 s{G_ROT}, s{G_ROT}, 7")
    a(f"s_lshl3_add_u32 s{G_WOS}, s{G_ROT}, s{S_WAVE}")
    a(f"s_lshl_b32 s{G_WOS}, s{G_WOS}, 15")
    a("v_lshrrev_b32 v1, 2, v0")
    a("v_lshlrev_b32 v1, 7, v1")
    a("v_bfe_u32 v2, v0, 3, 2")
    a("v_lshl_add_u32 v1, v2, 5, v1")
    a("v_and_b32 v2, 3, v0")
    a(f"v_lshl_add_u32 v{GV_RD}, v2, 3, v1")


def g2_pre(a):
    if CFG["noswap"]:
        a(f"s_lshl_b32 s{G_T}, s{G_HH}, 11")
        a(f"v_add_u32 v{GV_RD}, s{G_T}, v{GV_RD}")
    for j in range(1 + CFG["noswap"]):
        A = G2_AD2 if j else G2_AD
        for s_, base in enumerate(G2_SETS):
            for cb in range(4):
                if base:
                    a(f"v_add_u32 v{A + 4 * s_ + cb}, {base}, v{A + cb}")
                else:
                    a(f"v_xor_b32 v{A + cb}, {32 * cb + 2048 * j}, v{GV_RD}")
    if CFG["g2tail"]:
        a.extend(ob_addr())
    if CFG["park"]:
        a(f"v_lshl_add_u32 v{G2_PA + 1}, v0, 4, s{G_WOM}")
        a(f"v_add_u32 v{G2_PA}, {H_REG}, v{G2_PA + 1}")
    for i in range(8):
        a(f"s_add_u32 s{64 + i}, s{G_ROT}, {i}")
        a(f"s_and_b32 s{64 + i}, s{64 + i}, 7")
        a(f"s_lshl_b32 s{64 + i}, s{64 + i}, 12")


def g2_main(a, st):
    vm, lg = Q("vmcnt", 63), Q("lgkmcnt", 15)
    WP = CFG["wper"]
    PD, D = CFG["pd"], CFG["depth"]
    NF = PD + CFG["nfx"]
    assert G2_WF + 4 * NF <= G2_AD
    NR = max(D + 1, CFG['d0'])
    assert G2_OR + 8 * NR <= (G2_PK if CFG['park'] and not CFG['parkpre'] else GV_WO2)
    oreg = lambda h, i: G2_OR + 8 * (h % NR) + 4 * i

    def oload(h, i):
        vm.issue(("o", h))
        return f"buffer_load_dwordx4 {vr(oreg(h, i), 4)}, v{GV_O + i}, s[{G_SRDO}:{G_SRDO + 3}], s{64 + (h >> 2)} offen offset:{1024 * (h & 3)} sc1"

    def wread(f, j):
        h, cb = f >> 2, f & 3
        s_ = max(i for i, b in enumerate(G2_SETS) if b <= wo_base(h >> 1))
        off = wo_base(h >> 1) + 4096 * (h & 1) + 2048 * j - G2_SETS[s_]
        assert 0 <= off and off + 4096 <= 65536
        lg.issue(("w", f))
        if CFG["noswap"] and j:
            return f"ds_read_b64_tr_b16 {vr(G2_WF + 4 * (f % NF) + 2, 2)}, v{G2_AD2 + 4 * s_ + cb} offset:{off - 2048}"
        return f"ds_read_b64_tr_b16 {vr(G2_WF + 4 * (f % NF) + 2 * j, 2)}, v{G2_AD + 4 * s_ + cb} offset:{off}"

    nxt = [0]

    def more(limit):
        if nxt[0] < min(64, limit):
            a(oload(nxt[0] >> 1, nxt[0] & 1))
            nxt[0] += 1
    for f in range(max(PD, CFG["d0"])):
        more(2 * CFG["d0"])
        more(2 * CFG["d0"])
        if f < PD:
            if f == 7:
                lg.wait(a, ("w", 0))
            a(wread(f, 0))
            a(wread(f, 1))
    for k in range(CFG["park0"]):
        if k == 0:
            spin_lds(a, GV_FL, F_CD, 4, 1, G_T)
            lg.drained()
            a(f"s_waitcnt vmcnt({nxt[0]})")
        c = 10 + k // 2
        a(f"ds_write_b128 v{G2_PA + (c >= 14)}, {vr(G2_PK + 4 * k, 4)} offset:{wo_base(c) - (H_REG if c < 14 else 0) + 1024 * (k & 1)}")
        lg.issue("pk")
        if k == 11:
            lds_add(a, GV_FL, 2, F_WO2)
            lg.issue("pk")
    tailfill = ob_addr() if CFG["oblds"] else []
    st.stamp(a, "g2iss")
    for f in range(120 if CFG['g2tail'] else 128):
        h, cb = f >> 2, f & 3
        if CFG["wo1a"] < 10:
            if f == 1:
                lds_add(a, GV_FL, 2, F_WO1)
                lg.issue("add")
            if f + PD == 8 * CFG["wo1a"] - 4:
                a(f"ds_read_b32 v1, v{GV_FL} offset:{F_WO1}")
                lg.issue("flag")
            if f + PD == 8 * CFG["wo1a"]:
                lg.wait(a, "flag")
                spin_lds(a, GV_FL, F_WO1, 4, 1, G_T, first=False)
        if CFG["zhold"] is not None and f == 4 * CFG["zhold"] + 1:
            lds_add(a, GV_FL, 2, F_GZ)
            lg.issue("gz")
        if CFG["park"] and not CFG["parkpre"]:
            p0, pst = CFG["parkat"]
            if f == p0 - 4 and not CFG["park0"]:
                a(f"ds_read_b32 v1, v{GV_FL} offset:{F_CD}")
                lg.issue("flag")
            if f == p0 and not CFG["park0"]:
                lg.wait(a, "flag")
                spin_lds(a, GV_FL, F_CD, 4, 1, G_T, first=False)
            k = (f - p0) // pst + CFG['park0']
            if f >= p0 and (f - p0) % pst == 0 and k < 12:
                c = 10 + k // 2
                a(f"ds_write_b128 v{G2_PA + (c >= 14)}, {vr(G2_PK + 4 * k, 4)} offset:{wo_base(c) - (H_REG if c < 14 else 0) + 1024 * (k & 1)}")
                lg.issue("pk")
                if k == 11:
                    assert f + PD < 80 - 4
                    lds_add(a, GV_FL, 2, F_WO2)
                    lg.issue("pk")
        if f + PD == 80 - 4 and not CFG['parkpre']:
            a(f"ds_read_b32 v1, v{GV_FL} offset:{F_WO2}")
            lg.issue("flag")
        if f + PD == 80:
            if not CFG["parkpre"]:
                lg.wait(a, "flag")
                spin_lds(a, GV_FL, F_WO2, 4, 1, G_T, first=False)
            st.stamp(a, "wo2")
        w = []
        n = vm.need(("o", h)) if cb == 0 else None
        if n is not None:
            w.append(f"vmcnt({n})")
        n = lg.need(("w", min(127, f + WP - 1))) if f % WP == 0 else None
        if n is not None:
            w.append(f"lgkmcnt({n})")
        if w:
            a("s_waitcnt " + " ".join(w))
        if cb == 0 and h in (4, 8, 12, 24, 28):
            st.stamp(a, f"h{h}")
        for i in (0, 1):
            ii = i ^ (cb & 1) if CFG["g2serp"] else i
            a(mfma(G2_ACC + 16 * ii + 4 * cb, G2_WF + 4 * (f % NF), oreg(h, ii), "0" if h == 0 else None))
            if f + PD < 128:
                a(wread(f + PD, i))
            else:
                for _ in range(2):
                    if tailfill:
                        a(tailfill.pop(0))
        more(2 * (h + D) + (cb + 1) // 2)
    if CFG["g2tail"]:
        P, A = G2_PK, G2_OA
        mm = lambda i, f: mfma(G2_ACC + 16 * i + 4 * (f & 3), G2_WF + 4 * (f % NF), oreg(f >> 2, i))
        fin = lambda i, cb: cvt2(P + 8 * i + 2 * cb, G2_ACC + 16 * i + 4 * cb) + [f"ds_write_b64 v{A + cb}, {vr(P + 8 * i + 2 * cb, 2)}"]
        rd = lambda i: [f"ds_read_b128 {vr(P + 16 + 8 * i + 4 * k, 4)}, v{A + 4} offset:{1024 * k}" for k in (0, 1)]
        sto = lambda n, c: (f"s_mov_b32 s{G_T}, {8 * 8192 * n}\ns_waitcnt lgkmcnt({c})\n"
                            f"buffer_store_dwordx4 {vr(P + 16 + 4 * n, 4)}, v{GV_OUT}, s[{G_SRDOUT}:{G_SRDOUT + 3}], s{G_T} offen{CFG['ost']}")
        a(f"s_waitcnt vmcnt({vm.need(('o', 30))}) lgkmcnt({lg.need(('w', 123))})")
        a.extend([mm(0, f) for f in range(120, 124)])
        a("s_waitcnt vmcnt(0) lgkmcnt(0)")
        M = [(mm(0, 124 + cb) + ("\ns_nop 0\ns_nop 0" if cb < 3 and CFG.get("tnop") else ""), fin(0, cb) + (rd(0) if cb == 3 else [])) for cb in range(4)]
        for cb in range(4):
            M += [(mm(1, 120 + cb), []), (mm(1, 124 + cb), fin(1, cb) + (rd(1) if cb == 3 else []))]
        lag_weave(a, M, lag=6 if CFG.get("tnop") else 8, per=CFG["g2tail"])
        st.stamp(a, "g2end")
        k = [i for i, x in enumerate(a.ins) if x.op == "ds_write_b64"][-2]
        a.ins[k:k] = [Ins(x) for n, c in ((0, 3), (1, 2)) for x in sto(n, c).split("\n")]
        a(sto(2, 1))
        a(sto(3, 0))
        return
    assert not tailfill
    st.stamp(a, "g2end")
    P = G2_WF
    if CFG["oblds"]:
        for i in (0, 1):
            for cb in range(4):
                a.extend(cvt2(P + 8 * i + 2 * cb, G2_ACC + 16 * i + 4 * cb))
                a(f"ds_write_b64 v{G2_AD + cb}, {vr(P + 8 * i + 2 * cb, 2)}")
            for k in (0, 1):
                a(f"ds_read_b128 {vr(P + 16 + 8 * i + 4 * k, 4)}, v{G2_AD + 4} offset:{1024 * k}")
        for n in range(4):
            a(f"s_mov_b32 s{G_T}, {8 * 8192 * n}")
            a(f"s_waitcnt lgkmcnt({(7, 6, 1, 0)[n]})")
            a(f"buffer_store_dwordx4 {vr(P + 16 + 4 * n, 4)}, v{GV_OUT}, s[{G_SRDOUT}:{G_SRDOUT + 3}], s{G_T} offen{CFG['ost']}")
        return
    a(f"s_mov_b32 s{G_T}, {16 * 8192}")
    for p in (0, 1):
        for i in (0, 1):
            for cb in (2 * p, 2 * p + 1):
                a.extend(cvt2(P + 8 * i + 2 * cb, G2_ACC + 16 * i + 4 * cb))
        for i in (0, 1):
            for j in (0, 1):
                a(f"v_permlane16_swap_b32 v{P + 8 * i + 4 * p + j}, v{P + 8 * i + 4 * p + 2 + j}")
        for i in (0, 1):
            a(f"buffer_store_dwordx4 {vr(P + 8 * i + 4 * p, 4)}, v{GV_OUT}, s[{G_SRDOUT}:{G_SRDOUT + 3}], {f's{G_T}' if i else 0} offen offset:{64 * p}{CFG['ost']}")


def ob_addr():
    A, T = G2_OA if CFG["g2tail"] else G2_AD, G_T
    return [f"s_mul_i32 s{T}, s{G_HH}, {EX[1] - EX[0]}",
            f"s_lshl_b32 s{T + 1}, s{G_HALF}, 11",
            f"s_add_u32 s{T}, s{T}, s{T + 1}",
            f"s_add_u32 s{T}, s{T}, {EX[0]}",
            f"v_lshrrev_b32 v1, 5, v0",
            f"v_xor_b32 v1, v1, v0",
            f"v_and_b32 v1, 7, v1",
            f"v_lshl_add_u32 v1, v1, 4, s{T}",
            f"v_bfe_u32 v2, v0, 4, 1",
            f"v_lshl_add_u32 v1, v2, 3, v1",
            f"v_and_b32 v2, 15, v0",
            f"v_lshl_add_u32 v{A}, v2, 7, v1",
            ] + [f"v_xor_b32 v{A + cb}, {32 * cb}, v{A}" for cb in (1, 2, 3)] + [
            f"v_lshrrev_b32 v1, 3, v0",
            f"v_xor_b32 v1, v1, v0",
            f"v_and_b32 v1, 7, v1",
            f"v_and_b32 v2, 56, v0",
            f"v_add_u32 v1, v1, v2",
            f"v_lshl_add_u32 v{A + 4}, v1, 4, s{T}"]


def g_entry(a, vm, st):
    if CFG["codepf"]:
        a("s_bfe_u32 s34, s2, 0x20003")
        a(f"s_lshl2_add_u32 s34, s34, s{S_WAVE}")
        a("s_lshl_b32 s34, s34, 7")
        a("v_lshl_add_u32 v1, v0, 11, s34")
        a("v_min_u32 v1, L_end-L_entry-8, v1")
        a("s_mov_b64 exec, 0xffff")
        a(f"global_load_dword v{TV - 2}, v1, s[32:33]")
        a("s_mov_b64 exec, -1")
    gpre_addr(a)
    st.stamp(a, "addr")
    a("s_waitcnt lgkmcnt(0)")
    gpre_loads(a, vm)
    st.stamp(a, "kvis")
    if CFG["tb1"]:
        touch_setup(a)
        srd(a, 64, P_X, 4 << 20)
        srd(a, 68, P_W, 6 << 20)
        touch_batch(a, vm, *CFG["tb1"], 64, 68)
    if CFG["bpre"]:
        a("s_barrier")
    a("s_branch L_grole")


def g_role(a, st, vm):
    a(f"s_setprio {CFG['prio_g1']}")
    srd(a, S_CNT, P_WS, NCNT * 256, WS_CNT)
    if not CFG["latesetup"]:
        compute_setup(a)
        attn_setup(a)
        g2_setup(a)
    st.stamp(a, "setup")
    gpre_compute(a, vm, st)
    if CFG["latesetup"]:
        compute_setup(a)
        attn_setup(a)
        g2_setup(a)
    a(f"s_and_b32 s{G_T}, s2, 7")
    a(f"s_xor_b32 s{G_T}, s{G_T}, {CFG['cgx']}")
    a(f"s_lshl_b32 s{G_T}, s{G_T}, 5")
    a(f"s_lshr_b32 s{G_T + 1}, s2, 3")
    a(f"s_add_u32 s{G_T}, s{G_T}, s{G_T + 1}")
    a(f"s_add_u32 s{G_T}, s{G_T}, {CNT_Z}")
    a(f"s_lshl_b32 s{G_T}, s{G_T}, 8")
    a(f"s_cmp_eq_u32 s{G_HALF}, 0")
    a(f"s_cselect_b32 s{G_T}, s{G_T}, s{G_WAIT}")
    a(f"s_cmp_eq_u32 s{G_HH}, 0")
    a("s_cbranch_scc0 L_noclear")
    a("s_mov_b64 exec, 1")
    a(f"buffer_store_dword v{ACC}, off, s[{S_CNT}:{S_CNT + 3}], s{G_T} sc1")
    a("s_mov_b64 exec, -1")
    a.label("L_noclear")
    st.stamp(a, "pre")
    compute_loop(a)
    a(f"s_setprio {CFG['prio_at']}")
    pieces = [(c, g) for c in range(10) for g in (0, 1)]
    if CFG.get("x_nowo1"):
        pieces = []
    pieces = pieces[CFG["cwo1"]:]
    if CFG["rev"]:
        pieces = pieces[:10]
    b = Asm()
    attention(b, st)
    nw, (w0, wstep) = CFG["woat"], CFG["woatp"]
    fill = wo_dma_g(pieces[:nw])
    pieces = pieces[nw:]
    k0 = max(i for i, x in enumerate(b.ins) if x.kind == "label" and x.label.startswith("L_sl_done")) + w0
    k1 = max(i for i, x in enumerate(b.ins) if x.op == "s_cmp_eq_u32")
    if CFG["noswap"]:
        k1 = [i for i, x in enumerate(b.ins) if x.op == "buffer_store_dwordx4"][CFG["wend"]]
    for i, x in enumerate(b.ins):
        if i == k1:
            a.extend(fill)
            fill = []
        a.ins.append(x)
        if i > k0 and (i - k0) % wstep == 0 and fill:
            a(fill.pop(0))
    st.stamp(a, "attn")
    n0 = min(CFG["wo0"], len(pieces))
    a(f"s_setprio {CFG['prio_wo']}")
    a.extend(wo_dma_g(pieces[:n0]))
    g2_pre(a)
    a(f"s_waitcnt vmcnt({n0})")
    a(f"s_setprio {CFG['prio_j']}")
    st.stamp(a, "ostd")

    def between(x):
        if CFG["sigfirst"]:
            spin_lds(x, GV_FL, F_GJOIN, 4, 1, G_T)
        x(f"s_setprio {CFG['prio_wo']}")
        x.extend(wo_dma_g(pieces[n0:]))
        for k in range(12 * CFG["park"]):
            if k == CFG["presample"] and not CFG["parkpre"]:
                skip = uid("ps")
                x(f"s_cmp_eq_u32 s{G_T + 2}, 3")
                x(f"s_cbranch_scc0 {skip}")
                x(f"s_load_dword s{G_T}, s[{S_CNT}:{S_CNT + 1}], s{G_WAIT} glc")
                x.label(skip)
            if k % 2 == 0:
                x(f"s_xor_b32 s{G_WOS + 1}, s{G_WOS}, {(10 + k // 2) * 131072}")
            x(f"buffer_load_dwordx4 {vr(G2_PK + 4 * k, 4)}, v{GV_WO2 if k & 1 else GV_WO}, s[{G_SRDWO}:{G_SRDWO + 3}], s{G_WOS + 1} offen offset:{1024 * (k & 1)}")
        x(f"s_setprio {CFG['prio_g2']}")
        if CFG["parkpre"]:
            spin_lds(x, GV_FL, F_CD, 4, 1, G_T)
            skip = uid("ps")
            x(f"s_cmp_eq_u32 s{G_T + 2}, 3")
            x(f"s_cbranch_scc0 {skip}")
            x(f"s_load_dword s{G_T}, s[{S_CNT}:{S_CNT + 1}], s{G_WAIT} glc")
            x.label(skip)
            for k in range(12):
                c = 10 + k // 2
                x(f"s_waitcnt vmcnt({11 - k})")
                x(f"ds_write_b128 v{G2_PA + (c >= 14)}, {vr(G2_PK + 4 * k, 4)} offset:{wo_base(c) - (H_REG if c < 14 else 0) + 1024 * (k & 1)}")
        if not CFG["pollfirst"]:
            after(x)

    def after(x):
        x(f"s_waitcnt vmcnt({20 - 2 * CFG['wo1a'] + 12 * CFG['park']})")
        lds_add(x, GV_FL, 2, F_GGO)
        st.stamp(x, "wo1")
    join_signal_wait(a, GV_FL, F_GJOIN, F_GGO, G_SIG, G_WAIT, 1, G_T, between, want=24 if CFG['cwo1'] or CFG['rev'] else 20, after=after if CFG["pollfirst"] else None,
                     sampled=CFG["presample"] is not None)
    st.stamp(a, "oflag")
    g2_main(a, st)
    st.stamp(a, "st")
    if st.on:
        a("s_waitcnt vmcnt(0)")
    st.flush(a, S_WG, S_WAVE)
    a("s_endpgm")
    compute_rare(a)


L_SRDX, L_SRDW = 32, 36
L_SOX, L_SOW = 40, 41
L_BX, L_BW = 43, 44
L_EX = 46
L_T = 48
LV_X, LV_H, LV_W = 2, 6, 7
C_W = 70


def loader_setup(a):
    T = L_T
    a(f"s_sub_u32 s{C_W}, s{S_WAVE}, 4")
    a(f"s_lshl_b32 s{L_BX}, s{C_W}, 12")
    a(f"s_lshl_b32 s{L_BW}, s{C_W}, 11")
    a(f"s_add_u32 s{L_BW}, s{L_BW}, {W_OFF}")
    a(f"s_lshl_b32 s{T + 1}, s{C_W}, 4")
    a(f"s_lshl_b64 s[{L_EX}:{L_EX + 1}], 0xffff, s{T + 1}")
    a("v_lshrrev_b32 v13, 3, v0")
    a("v_and_b32 v14, 7, v0")
    a("v_lshrrev_b32 v15, 4, v0")
    a(f"s_lshl2_add_u32 s{T + 2}, s{S_RB}, s{C_W}")
    a(f"s_lshl_b32 s{T + 2}, s{T + 2}, 6")
    a(f"s_add_u32 s{T + 2}, s{T + 2}, s{S_PAR}")
    a(f"s_lshl_b32 s{T + 2}, s{T + 2}, 11")
    a(f"v_lshl_add_u32 v16, v13, 12, s{T + 2}")
    a("v_xor_b32 v17, v14, v15")
    a(f"v_lshl_add_u32 v{LV_X}, v17, 4, v16")
    a(f"v_xor_b32 v{LV_X + 1}, 64, v{LV_X}")
    a(f"v_add_u32 v{LV_X + 1}, {8 * 4096 - 1024}, v{LV_X + 1}")
    a(f"v_add_u32 v{LV_X + 2}, {16 * 4096 - 2048}, v{LV_X}")
    a(f"v_add_u32 v{LV_X + 3}, {16 * 4096 - 2048}, v{LV_X + 1}")
    a(f"s_lshl_b32 s{T + 1}, s{S_RB}, 7")
    a(f"s_sub_u32 s{T + 1}, s{T + 1}, 8")
    a(f"s_max_i32 s{T + 1}, s{T + 1}, 0")
    a(f"s_lshl1_add_u32 s{T + 1}, s{T + 1}, s{S_PAR}")
    a(f"s_lshl_b32 s{T + 1}, s{T + 1}, 11")
    a(f"v_lshl_add_u32 v16, v13, 12, s{T + 1}")
    a("v_lshlrev_b32 v17, 1, v15")
    a(f"v_xor_b32 v18, v14, {'v13' if CFG['smf'] else 'v17'}")
    a(f"v_lshl_add_u32 v{LV_H}, v18, 4, v16")
    a(f"s_mul_i32 s{T + 1}, s{C_W}, {16 * 48}")
    a(f"s_add_u32 s{T + 1}, s{T + 1}, s{S_HP}")
    a(f"s_lshl_b32 s{T + 1}, s{T + 1}, 7")
    a(f"v_mul_u32_u24 v16, 6144, v13")
    a("v_and_b32 v17, 2, v17")
    a("v_xor_b32 v17, v14, v17")
    a("v_lshlrev_b32 v17, 4, v17")
    a(f"v_add3_u32 v{LV_W}, v17, v16, s{T + 1}")
    a(f"v_xor_b32 v{LV_W + 1}, 64, v{LV_W}")
    a(f"v_add_u32 v{LV_W + 1}, {8 * 6144 - 1024}, v{LV_W + 1}")
    for part in (1, 2):
        for kgi in (0, 1):
            a(f"v_add_u32 v{LV_W + 2 * part + kgi}, {2048 * part}, v{LV_W + kgi}")
    if CFG["kx"]:
        a(f"s_add_u32 s{L_XC}, s{S_RB}, s{S_HP}")
        a(f"s_and_b32 s{L_XC}, s{L_XC}, {CFG['kx'][1]}")
        a(f"s_lshl_b32 s{L_XC}, s{L_XC}, 7")
    a.extend(korder(0))
    if CFG["sub"]:
        a(f"s_movk_i32 s{L_BH}, {X_HALO}")
        a(f"s_mov_b32 s{L_XC}, {STAGE}")


L_XC = 42


def korder(t):
    if CFG["kx"] and t >= CFG["kx"][0]:
        return [f"s_xor_b32 s{L_SOX}, s{L_XC}, {128 * t}", f"s_mul_i32 s{L_SOW}, s{L_SOX}, 3072"]
    return [f"s_movk_i32 s{L_SOX}, {128 * t}", f"s_mov_b32 s{L_SOW}, {64 * 6144 * t}"]


def loader_groups(t):
    buf = STAGE * ((-t if CFG['rev'] else t) % 3)
    W = [([] if kgi else [f"s_add_u32 m0, s{L_BW}, {buf + 8192 * part}"],
          [f"buffer_load_dwordx4 v{LV_W + 2 * part + kgi}, s[{L_SRDW}:{L_SRDW + 3}], s{L_SOW} offen offset:{1024 * kgi}{CFG['dmod']} lds"])
         for part in range(3) for kgi in (0, 1)]
    X = [([f"s_add_u32 m0, s{L_BX}, {buf}"] if CFG["ilv"] or not i else [],
          [f"buffer_load_dwordx4 v{LV_X + i}, s[{L_SRDX}:{L_SRDX + 3}], s{L_SOX} offen offset:{1024 * i}{CFG['dmod']} lds"]) for i in range(4)]
    G = [X[0]] + W[:2] + [X[1]] + W[2:4] + [X[2]] + W[4:] + [X[3]] if CFG["ilv"] else W[:2] + X + W[2:]
    G.append(([f"s_mov_b32 m0, {buf + X_HALO}"],
              [f"s_mov_b64 exec, s[{L_EX}:{L_EX + 1}]",
               f"buffer_load_dwordx4 v{LV_H}, s[{L_SRDX}:{L_SRDX + 3}], s{L_SOX} offen lds",
               "s_mov_b64 exec, -1",
               ] + korder(t + 1)))
    return G


L_BH, L_RET = 49, 50


def loader_sub(a):
    a.label("L_stage")
    lx = lambda i: f"buffer_load_dwordx4 v{LV_X + i}, s[{L_SRDX}:{L_SRDX + 3}], s{L_SOX} offen offset:{1024 * i} lds"
    lw = lambda i: f"buffer_load_dwordx4 v{LV_W + i}, s[{L_SRDW}:{L_SRDW + 3}], s{L_SOW} offen offset:{1024 * (i & 1)} lds"
    for part in range(3):
        a(f"s_mov_b32 m0, s{L_BX}")
        if part == 0:
            a(f"s_cmp_ge_u32 s{L_BH}, {2 * STAGE}")
            a(f"s_cselect_b32 s{L_T}, {-2 * STAGE}, s{L_XC}")
        a(lx(part))
        a(f"s_add_u32 m0, s{L_BW}, {8192 * part}")
        a(lw(2 * part))
        a(lw(2 * part + 1))
    a(f"s_mov_b32 m0, s{L_BX}")
    a(f"s_add_u32 s{L_BX}, s{L_BX}, s{L_T}")
    a(lx(3))
    a(f"s_mov_b32 m0, s{L_BH}")
    a(f"s_mov_b64 exec, s[{L_EX}:{L_EX + 1}]")
    a(f"buffer_load_dwordx4 v{LV_H}, s[{L_SRDX}:{L_SRDX + 3}], s{L_SOX} offen lds")
    a("s_mov_b64 exec, -1")
    a(f"s_add_u32 s{L_BW}, s{L_BW}, s{L_T}")
    a(f"s_add_u32 s{L_BH}, s{L_BH}, s{L_T}")
    a(f"s_addk_i32 s{L_SOX}, 128")
    a(f"s_add_u32 s{L_SOW}, s{L_SOW}, {64 * 6144}")
    a(f"s_setpc_b64 s[{L_RET}:{L_RET + 1}]")


C_A, C_B, C_WS = 56, 60, 64
C_CG, C_M, C_CH = 68, 69, 71
C_D, C_SIG, C_T = 72, 73, 74
C_HB, C_UB, C_WOS = 80, 81, 82
C_HO, C_UO, C_CB, C_STG, C_KW = 84, 85, 86, 87, 45
HR = 180
CACC, CA, CBF, QR = 16, 48, 112, 208
CV = 224
AA, AB = CV + 8, CV + 9
DF = CV + 16
ONE = CV + 20


def c_setup(a):
    T = C_T
    a(f"s_and_b32 s{C_SIG}, s2, 7")
    a(f"s_xor_b32 s{C_SIG}, s{C_SIG}, {CFG['cgx']}")
    a(f"s_lshr_b32 s{T}, s2, 7")
    a(f"s_lshl1_add_u32 s{C_CG}, s{C_SIG}, s{T}")
    a(f"s_bfe_u32 s{C_M}, s2, 0x40003")
    a(f"s_lshl4_add_u32 s{C_CH}, s{C_CG}, s{C_M}")
    a(f"s_lshl2_add_u32 s{C_CH}, s{C_CH}, s{C_W}")
    a(f"s_mul_i32 s{C_HB}, s{C_W}, {H_PITCH}")
    a(f"s_add_u32 s{C_HB}, s{C_HB}, {H_REG}")
    a(f"s_mul_i32 s{C_UB}, s{C_W}, {U_PITCH}")
    a(f"s_add_u32 s{C_UB}, s{C_UB}, {U_REG}")
    srd(a, S_CNT, P_WS, NCNT * 256, WS_CNT)
    srd(a, C_WS, P_WS, 1024 * ZP, WS_KV if CFG["zb"] == 2 else WS_Z)
    a(f"s_lshl_b32 s{C_HO}, s{C_CH}, 12")
    a(f"s_mul_i32 s{C_UO}, s{C_CH}, {KVP}")
    a(f"s_add_u32 s{C_UO}, s{C_UO}, {WS_KV}")
    a(f"s_lshr_b32 s{C_D}, s{C_CH}, 1")
    a(f"s_lshl_b32 s{C_D}, s{C_D}, 2")
    a(f"s_load_dword s{C_D}, s[{P_D}:{P_D + 1}], s{C_D}")
    a(f"v_lshlrev_b32 v{CV}, 4, v0")
    for e in range(4):
        a(f"v_mov_b32 v{CV + 4 + e}, 0")
    a(f"v_mov_b32 v{CV + 3}, {FLAGS}")
    a(f"v_mov_b32 v{ONE}, 1")
    a(f"s_bfe_u32 s{C_STG}, s2, {CFG['stagpos'] | (CFG['stagbits'] << 16):#x}")
    a("s_mov_b64 exec, 1")
    a(f"ds_write_b128 v{CV + 3}, {vr(CV + 4, 4)}")
    a(f"ds_write_b128 v{CV + 3}, {vr(CV + 4, 4)} offset:16")
    a(f"ds_write_b128 v{CV + 3}, {vr(CV + 4, 4)} offset:32")
    if CFG["ring"]:
        a(f"ds_write_b128 v{CV + 3}, {vr(CV + 4, 4)} offset:{H_PITCH}")
        a(f"v_mov_b32 v22, {FREEW}")
        a(f"ds_write_b128 v22, {vr(CV + 4, 4)}")
        a(f"ds_write_b128 v22, {vr(CV + 4, 4)} offset:{STAGE}")
        a(f"v_mov_b32 v23, {FREEW + 2 * STAGE}")
        a(f"ds_write_b128 v23, {vr(CV + 4, 4)}")
        a("s_mov_b64 exec, -1")
        a(f"v_mov_b32 v22, {FREEW}")
        a("v_mov_b32 v23, 0")
        a(f"s_andn2_b32 s{L_EX}, s{L_EX}, 1")
        a(f"s_lshl2_add_u32 s{L_XC}, s{C_W}, {FULLW}")
    a("s_mov_b64 exec, -1")


def chan_srd(a, d, ptr, s_off):
    a(f"s_add_u32 s{d}, s{ptr}, s{s_off}")
    a(f"s_addc_u32 s{d + 1}, s{ptr + 1}, 0")
    a(f"s_movk_i32 s{d + 2}, 4096")
    a(f"s_mov_b32 s{d + 3}, 0x20000")


def h_loads(a, vm):
    nt = CFG["hmod"]
    chan_srd(a, C_A, P_H, C_HO)
    a(f"s_add_u32 m0, s{C_HB}, 64")
    for e in range(4):
        a(f"v_mov_b32 v{HR + e}, 0")
    for i in range(4):
        a(f"buffer_load_dwordx4 v{CV}, s[{C_A}:{C_A + 3}], 0 offen offset:{1024 * i}{nt} lds")
    a(f"s_add_u32 m0, s{C_HB}, {H_COPY + 80}")
    a("s_mov_b64 exec, 0x100")
    a(f"buffer_load_dwordx4 {vr(HR, 4)}, off, s[{C_A}:{C_A + 3}], 0{nt}")
    a("s_mov_b64 exec, -1")
    for i in range(4):
        a(f"buffer_load_dwordx4 v{CV}, s[{C_A}:{C_A + 3}], 14 offen offset:{1024 * i}{nt} lds")
    vm.issue("h", 9)


def h_piece(i):
    def f(a, vm):
        nt = CFG["hmod"]
        chan_srd(a, C_A, P_H, C_HO)
        a(f"s_add_u32 m0, s{C_HB}, 64")
        if i == 0:
            for e in range(4):
                a(f"v_mov_b32 v{HR + e}, 0")
        a(f"buffer_load_dwordx4 v{CV}, s[{C_A}:{C_A + 3}], 0 offen offset:{1024 * i}{nt} lds")
        a(f"s_add_u32 m0, s{C_HB}, {H_COPY + 80}")
        if i == 0:
            a("s_mov_b64 exec, 0x100")
            a(f"buffer_load_dwordx4 {vr(HR, 4)}, off, s[{C_A}:{C_A + 3}], 0{nt}")
            a("s_mov_b64 exec, -1")
        a(f"buffer_load_dwordx4 v{CV}, s[{C_A}:{C_A + 3}], 14 offen offset:{1024 * i}{nt} lds")
        vm.issue("h", 2 + (i == 0))
    return f


def h_fill(a):
    a(f"v_cmp_lt_u32 vcc, 3, v0")
    a(f"v_mov_b32 v{HR + 8}, {H_COPY - 64}")
    a(f"v_lshlrev_b32 v{HR + 4}, 16, v{HR}")
    a(f"v_cndmask_b32 v{HR + 8}, 0, v{HR + 8}, vcc")
    for e in range(1, 4):
        a(f"v_alignbit_b32 v{HR + 4 + e}, v{HR + e}, v{HR + e - 1}, 16")
    a(f"v_add3_u32 v{HR + 8}, v{HR + 8}, v{CV}, s{C_HB}")
    a("s_mov_b64 exec, 0x1ff")
    a(f"ds_write_b128 v{HR + 8}, {vr(HR + 4, 4)}")
    a("s_mov_b64 exec, -1")


def u_loads(a, vm):
    chan_srd(a, C_A, P_WS, C_UO)
    for c in (0, 1):
        a(f"s_add_u32 m0, s{C_UB}, {(U_COPY - 4 * CFG['ushift']) * c}")
        for i in range(4):
            a(f"buffer_load_dwordx4 v{CV}, s[{C_A}:{C_A + 3}], {4 * c * (1 - CFG['ushift'])} offen offset:{1024 * i}{CFG['uld']} lds")
    vm.issue("u", 8)


def u_fill(a):
    t = CV + 10
    a(f"v_lshrrev_b32 v{t}, 5, v0")
    a(f"v_mul_u32_u24 v{t}, {U_COPY - 512}, v{t}")
    a(f"v_add3_u32 v{t}, v{t}, v{CV}, s{C_UB}")
    a("s_mov_b32 exec_lo, 0xfffffff")
    a("s_mov_b32 exec_hi, 0xfffffff")
    a(f"ds_write_b128 v{t}, {vr(CV + 4, 4)} offset:4096")
    if CFG["ushift"]:
        a("s_mov_b64 exec, 1")
        a(f"ds_write_b32 v{t}, v{CV + 4} offset:{U_COPY + 4092}")
    a("s_mov_b64 exec, -1")


def q_addr(a):
    T, vd, vt = C_T, CV + 1, CV + 10
    a(f"s_lshr_b32 s{T}, s{C_M}, 2")
    a(f"s_and_b32 s{T + 1}, s{C_M}, 3")
    a(f"s_lshl3_add_u32 s{T}, s{T}, s{C_W if CFG['zb'] else T + 1}")
    a(f"s_lshl3_add_u32 s{T}, s{T}, s{T + 1 if CFG['zb'] else C_W}")
    a(f"s_lshl_b32 s{T}, s{T}, 3")
    a(f"v_bfe_u32 v{vt}, v0, 3, 1")
    a(f"v_lshl_add_u32 v{vd}, v{vt}, 8, s{T}")
    a(f"v_bfe_u32 v{vt}, v0, 4, 1")
    a(f"v_lshl_add_u32 v{vd}, v{vt}, 1, v{vd}")
    a(f"v_lshrrev_b32 v{vt}, 5, v0")
    a(f"v_lshl_add_u32 v{vd}, v{vt}, 5, v{vd}")
    a(f"s_lshl_b32 s{T}, s{C_CG}, 7")
    a(f"v_and_b32 v{vt}, 7, v0")
    a(f"v_lshl_add_u32 v{vt}, v{vt}, 4, s{T}")
    a(f"v_lshl_add_u32 v{vd + 1}, v{vd}, 12, v{vt}")
    a(f"v_lshl_add_u32 v{vd}, v{vd}, 11, v{vt}")


def q_loads(a, vm):
    T = C_T + 1
    srd(a, C_B, P_Q, 4 << 20)
    a(f"s_movk_i32 s{T}, 8192")
    for i, (so, off) in enumerate((("0", 0), ("0", 2048), (f"s{T}", 0), (f"s{T}", 2048))):
        a(f"buffer_load_dwordx4 {vr(QR + 4 * i, 4)}, v{CV + 1}, s[{C_B}:{C_B + 3}], {so} offen offset:{off}{CFG.get('qmod', CFG['nt'])}")
    vm.issue("q", 4)


def q_touch(a, vm):
    T, t = C_T, CV + 10
    srd(a, C_B, P_Q, 4 << 20)
    a(f"s_lshr_b32 s{T}, s2, 3")
    a(f"s_lshl2_add_u32 s{T}, s{T}, s{C_W}")
    a(f"s_lshl_b32 s{T}, s{T}, 7")
    a(f"s_lshr_b32 s{T + 1}, s{C_CG}, 1")
    a(f"s_add_u32 s{T}, s{T}, s{T + 1}")
    a(f"s_lshl_b32 s{T}, s{T}, 8")
    a(f"v_lshrrev_b32 v{t}, 1, v0")
    a(f"v_and_b32 v{t + 1}, 1, v0")
    a(f"v_lshlrev_b32 v{t + 1}, 7, v{t + 1}")
    a(f"v_lshl_add_u32 v{t}, v{t}, 11, v{t + 1}")
    a("s_mov_b32 exec_hi, 0")
    a(f"buffer_load_dword v{TV - 1}, v{t}, s[{C_B}:{C_B + 3}], s{T} offen")
    a("s_mov_b64 exec, -1")
    vm.issue("qt")


def wo_chip_touch(a, vm):
    T, t = C_T, CV + 10
    srd(a, C_B, P_WO, 2 << 20)
    a(f"s_lshl2_add_u32 s{T}, s2, s{C_W}")
    a(f"s_lshl_b32 s{T}, s{T}, 11")
    a(f"v_lshlrev_b32 v{t}, 7, v0")
    a("s_mov_b64 exec, 0xffff")
    a(f"buffer_load_dword v{TV - 1}, v{t}, s[{C_B}:{C_B + 3}], s{T} offen")
    a("s_mov_b64 exec, -1")
    vm.issue("wc")


def wo_touch(a, vm, k=0, n=1, mask=None):
    T, t = C_T, CV + 10
    srd(a, C_B, P_WO, 2 << 20)
    a(f"s_lshr_b32 s{T}, s2, 3")
    a(f"s_lshl2_add_u32 s{T}, s{T}, s{C_W}")
    a(f"s_bfe_u32 s{T + 1}, s2, 0x10002")
    a(f"s_lshl4_add_u32 s{T}, s{T}, s{T + 1}")
    a(f"s_lshl_b32 s{T}, s{T}, 10")
    a(f"v_lshrrev_b32 v{t}, 3, v0")
    a(f"v_and_b32 v{t + 1}, 7, v0")
    a(f"v_lshlrev_b32 v{t + 1}, 7, v{t + 1}")
    a(f"v_lshl_add_u32 v{t}, v{t}, 11, v{t + 1}")
    m = ((1 << (64 // n)) - 1) << (64 // n * k)
    if mask:
        m, n = mask, 2
    if n > 1:
        a(f"s_mov_b32 exec_lo, {m & 0xffffffff:#x}")
        a(f"s_mov_b32 exec_hi, {m >> 32:#x}")
    a(f"buffer_load_dword v{TV - 1}, v{t}, s[{C_B}:{C_B + 3}], s{T} offen{CFG['wtmod']}")
    if n > 1:
        a("s_mov_b64 exec, -1")
    vm.issue("wt")


def conv_reads(s, step):
    L = []
    for j in range(8):
        L.append(f"ds_read_b128 {vr(CBF + 32 * s + 4 * j, 4)}, v{AB} offset:{512 * (7 - j) + 64 * step}")
        for e in (0, 1):
            L.append(f"ds_read_b64 {vr(CA + 32 * s + 4 * j + 2 * e, 2)}, v{AA} offset:{512 * j + 64 * step + 8 * e}")
    return L


def conv_mfmas(s, order=None):
    order = CFG["cord"] if order is None else order
    if order == 0:
        P = [(j, cb - j) for cb in range(8) for j in range(cb + 1)]
    elif order == 1:
        P = [(j, i) for j in range(8) for i in (range(7 - j, -1, -1) if j % 2 == 0 else range(8 - j))]
    else:
        P = [(j, i) for i in range(8) for j in (range(7 - i, -1, -1) if i % 2 == 0 else range(8 - i))]
    return [mfma(CACC + 4 * (i + j), CA + 32 * s + 4 * j, CBF + 32 * s + 4 * i) for j, i in P]


def conv_init(a):
    T, t = C_T, CV + 10
    a(f"v_and_b32 v{t}, 1, v0")
    a(f"v_xor_b32 v{t}, 1, v{t}")
    a(f"v_mul_u32_u24 v{AA}, {H_COPY}, v{t}")
    a(f"v_mul_u32_u24 v{AB}, {U_COPY}, v{t}")
    a(f"v_bfe_u32 v{t}, v0, 1, 3")
    a(f"v_lshl_add_u32 v{AA}, v{t}, 3, v{AA}")
    a(f"v_xor_b32 v{t}, 7, v{t}")
    a(f"v_lshl_add_u32 v{AB}, v{t}, 6, v{AB}")
    a(f"v_lshrrev_b32 v{t}, 4, v0")
    a(f"v_lshl_add_u32 v{AA}, v{t}, 4, v{AA}")
    a(f"v_lshl_add_u32 v{AB}, v{t}, 4, v{AB}")
    a(f"v_add3_u32 v{AA}, v{AA}, s{C_HB}, 8")
    a(f"v_add_u32 v{AB}, s{C_UB}, v{AB}")
    a("s_waitcnt lgkmcnt(0)")
    a(f"s_bitcmp1_b32 s{C_CH}, 0")
    a(f"s_cselect_b32 s{T}, 0, 16")
    a(f"s_lshl_b32 s{C_D}, s{C_D}, s{T}")
    a(f"s_and_b32 s{C_D}, s{C_D}, 0xffff0000")
    a(f"v_and_b32 v{t + 1}, 1, v0")
    a(f"v_lshlrev_b32 v{t + 1}, 4, v{t + 1}")
    a(f"v_lshrrev_b32 v{t + 1}, v{t + 1}, s{C_D}")
    a(f"v_bfe_u32 v{t + 2}, v0, 1, 3")
    a(f"v_lshl_add_u32 v{t + 2}, v{t}, 1, v{t + 2}")
    a(f"v_cmp_eq_u32 vcc, 7, v{t + 2}")
    a(f"v_mov_b32 v{DF + 1}, 0")
    a(f"v_mov_b32 v{DF + 3}, 0")
    a(f"v_cndmask_b32 v{DF}, 0, v{t + 1}, vcc")
    a(f"v_cmp_eq_u32 vcc, 6, v{t + 2}")
    a(f"v_cndmask_b32 v{DF + 2}, 0, v{t + 1}, vcc")


def wo1_by_c(a, vm):
    T, t = C_T, CV + 10
    g2_cb(a, C_CB, T)
    wo_voffset(a, t + 1, C_CB, T, t + 2)
    srd(a, L_SRDX, P_WO, 2 << 20)
    a(f"s_mul_i32 s{T}, s{C_CB}, {CFG['rot2']}")
    a(f"s_and_b32 s{T}, s{T}, 7")
    a(f"s_lshl3_add_u32 s{L_SOX}, s{T}, s{C_W}")
    a(f"s_lshl_b32 s{L_SOX}, s{L_SOX}, 15")
    a(f"s_lshl_b32 s{L_BX}, s{C_W}, 11")
    if CFG["rev"]:
        a.extend(wo_dma(t + 1, L_SRDX, L_BX, L_SOX, [(wo_base(c) + 1024 * g, 64 * c + 8 * g) for c in range(5, 10) for g in (0, 1)]))
        vm.issue("wo1", 10)
        return
    spin_lds(a, CV + 3, F_EX, 4, t, T)
    n = CFG["cwo1"]
    a.extend(wo_dma(t + 1, L_SRDX, L_BX, L_SOX, [(wo_base(c) + 1024 * g, 64 * c + 8 * g) for c in range(10) for g in (0, 1)][:n]))
    vm.issue("wo1", n)


def conv_loop(a, st):
    T = C_T
    if CFG["holdex"]:
        spin_lds(a, CV + 3, F_EX, CFG["holdex"], CV + 10, T)
        a(f"s_setprio {CFG['prio_conv']}")
    R0 = conv_reads(0, 0)
    if CFG["dfirst"]:
        R0 = [x for x in R0 if "b128" in x] * (CFG["dfirst"] == 1) + [x for x in R0 if "b128" not in x]
    a.extend(R0)
    a(f"s_setprio {CFG['prio_conv']}")
    if CFG["hold"] is not None:
        spin_lds(a, CV + 3, F_AT, 4, CV + 10, T)
    a(f"s_mov_b32 s{T}, 3")
    a(f"s_waitcnt lgkmcnt({15 if CFG['dfirst'] else 0})")
    st.stamp(a, "conv")
    for cb in range(8):
        a(mfma(CACC + 4 * cb, DF, CBF + 4 * cb, "0"))
    if CFG["dfirst"]:
        a("s_waitcnt lgkmcnt(0)")
    if CFG["alc"] is not None:
        a.ins[-8:-8] = [Ins(".p2align 6")] + [Ins("s_nop 0")] * CFG["alc"]
    a.label("L_conv")
    a.extend(weave(conv_mfmas(0), conv_reads(1, 1) + ([f"s_cmp_lg_u32 s{T}, {CFG['qat']}"] if CFG["qat"] else [])))
    if CFG["qat"]:
        a("s_cbranch_scc1 L_conv_noq")
        q_loads(a, Q("vmcnt", 63))
        a.label("L_conv_noq")
    if CFG["cwo1"]:
        a(f"s_cmp_lg_u32 s{T}, 3")
        a("s_cbranch_scc1 L_conv_nowo")
        a(f"s_waitcnt vmcnt({4 if CFG['qat'] == 3 else 0})")
        lds_add(a, CV + 3, ONE, F_GGO)
        a.label("L_conv_nowo")
    a("s_waitcnt lgkmcnt(0)")
    a.extend(weave(conv_mfmas(1), conv_reads(0, 2) + [f"v_add_u32 v{AA}, 128, v{AA}", f"v_add_u32 v{AB}, 128, v{AB}",
                                                      f"s_sub_u32 s{T}, s{T}, 1", f"s_cmp_lg_u32 s{T}, 0"]))
    a("s_waitcnt lgkmcnt(0)")
    a("s_cbranch_scc1 L_conv")
    st.stamp(a, "cv6")
    b = Rec()
    t = CV + 10
    b(f"s_mul_i32 s{T}, s{C_CG}, {ZP}")
    b(f"s_and_b32 s{T + 1}, s{C_CH}, 63")
    if CFG["zb"] >= 2:
        b(f"s_mul_i32 s{T}, s{C_CH}, {KVP}")
        b(f"v_mov_b32 v{t}, s{T}")
        b(f"v_mov_b32 v{t + 1}, v{CV}")
    elif CFG["zb"]:
        b(f"s_lshl2_add_u32 s{T}, s{T + 1}, s{T}")
        b(f"s_lshl_b32 s{T}, s{T}, 6")
        b(f"v_and_b32 v{t}, 15, v0")
        b(f"v_lshl_add_u32 v{t}, v{t}, 4, s{T}")
        b(f"v_lshrrev_b32 v{t + 1}, 4, v0")
        b(f"v_mul_u32_u24 v{t + 1}, {4 * ZP}, v{t + 1}")
    else:
        b(f"s_add_u32 s{T}, s{T}, s{T + 1}")
        b(f"s_lshl_b32 s{T}, s{T}, 6")
        b(f"v_and_b32 v{t}, 3, v0")
        b(f"v_lshl_add_u32 v{t}, v{t}, 4, s{T}")
        b(f"v_and_b32 v{t + 1}, 12, v0")
        b(f"v_lshrrev_b32 v{t + 2}, 4, v0")
        b(f"v_add_u32 v{t + 1}, v{t + 1}, v{t + 2}")
        b(f"v_mul_u32_u24 v{t + 1}, {ZP}, v{t + 1}")
    b(f"v_add_u32 v{t}, v{t}, v{t + 1}")
    m6 = conv_mfmas(0, 0)
    k = CFG["zearly"]
    a.extend(weave(m6[:36 - k], conv_reads(1, 1) + b.items, per=2 if k else 1))
    a("s_waitcnt lgkmcnt(0)")
    if CFG["park"]:
        lds_add(a, CV + 3, ONE, F_CD)
    st.stamp(a, "cv7")


def conv_tail(a, st):
    T, t = C_T, CV + 10
    b = Rec()
    if not CFG["park"]:
        g2_cb(b, C_CB, T)
        wo_voffset(b, t + 1, C_CB, T, t + 2)
        srd(b, C_A, P_WO, 2 << 20)
        b(f"s_mul_i32 s{T}, s{C_CB}, {CFG['rot2']}")
        b(f"s_and_b32 s{T}, s{T}, 7")
        b(f"s_lshl1_add_u32 s{C_WOS}, s{T}, s{C_W}")
        b(f"s_lshl_b32 s{C_WOS}, s{C_WOS}, 17")
    b(f"s_lshl4_add_u32 s{C_SIG}, s{C_CG}, {CNT_Z}")
    b(f"s_add_u32 s{C_KW}, s{C_SIG}, s{C_M}")
    b(f"s_lshl_b32 s{C_SIG}, s{C_SIG}, 8")
    b(f"s_lshl_b32 s{C_KW}, s{C_KW}, 8")
    P = CA
    M = [[m, []] for m in conv_mfmas(1, 0)]
    k6 = CFG["zearly"]
    if k6:
        P = 176
        M[36 - k6:36 - k6] = [[m, []] for m in conv_mfmas(0, 0)[36 - k6:]]
    for k, x in enumerate(b.items):
        M[k // 2][0] += "\n" + x
    for cb in range(8):
        last = (cb + 1) * (cb + 2) // 2 - 1
        if last >= 36 - k6:
            last += k6
        M[last][1] += cvt2(P + 2 * cb, CACC + 4 * cb)
        if cb & 1 and not CFG.get("x_nozst"):
            p = cb >> 1
            M[last][1] += [f"s_mov_b32 s{T + 2}, {1024 * p if CFG['zb'] >= 2 else 16 * ZP * p}",
                           f"buffer_store_dwordx4 {vr(P + 4 * p, 4)}, v{t}, s[{C_WS}:{C_WS + 3}], s{T + 2} offen{CFG['zst']}"]
    lag_weave(a, M, lag=8, per=2)
    a(f"s_setprio {CFG['prio_ct']}")
    st.stamp(a, "zst")
    w2 = [(1024 * g, 640 + 8 * g) for g in range(8)]
    if CFG.get("x_nowo2") or CFG["park"]:
        w2 = []
    n2 = CFG["wo2"]
    a.extend(wo_dma(t + 1, C_A, C_HB, C_WOS, w2[:n2]))
    a(f"s_waitcnt vmcnt({n2})")
    st.stamp(a, "zstd")
    QU = CBF

    def between(a):
        if CFG["qtail"] == 1:
            q_loads(a, Q("vmcnt", 63))
            a("s_waitcnt vmcnt(0)")
        for r in range(4 if CFG["qtail"] < 2 else 0):
            for d in range(4):
                unpack(a, QU + 8 * r + 2 * d, QU + 8 * r + 2 * d + 1, QR + 4 * r + d)
        if CFG["wo2nap"]:
            a(f"s_sleep {CFG['wo2nap']}")
        a(f"s_setprio {CFG['prio_w2']}")
        a.extend(wo_dma(t + 1, C_A, C_HB, C_WOS, w2[n2:]))
        if w2:
            a(f"s_cmp_ge_u32 s{C_W}, 2")
            a("s_cbranch_scc1 L_nowo3")
            a.extend(wo_dma(t + 1, C_A, C_UB, C_WOS, [(1024 * g, 896 + 8 * g) for g in range(8)]))
            a.label("L_nowo3")
        a(f"s_setprio {CFG['prio_ct']}")
        a(f"s_mul_i32 s{T + 3}, s{C_W}, {POST_PITCH}")
        a(f"s_add_u32 s{T + 3}, s{T + 3}, {POST_ST}")
        a(f"v_lshrrev_b32 v{t}, 5, v0")
        a(f"v_lshl_add_u32 v{t}, v{t}, 1, v0")
        a(f"v_lshl_add_u32 v{t}, v{t}, 4, s{T + 3}")
        a(f"v_and_b32 v{t + 1}, 7, v0")
        a(f"v_mul_u32_u24 v{t + 1}, 544, v{t + 1}")
        a(f"v_lshrrev_b32 v{t + 2}, 3, v0")
        a(f"v_lshl_add_u32 v{t + 1}, v{t + 2}, 3, v{t + 1}")
        a(f"v_add_u32 v{t + 1}, s{T + 3}, v{t + 1}")
        if CFG["zb"] >= 2:
            a(f"s_mul_i32 s{T + 3}, s{C_CG}, {KVP}")
            a(f"s_and_b32 s{T + 4}, s{C_CH}, 63")
            a(f"s_add_u32 s{T + 3}, s{T + 3}, s{T + 4}")
            a(f"s_lshl_b32 s{T + 3}, s{T + 3}, 6")
            a(f"v_lshrrev_b32 v{t + 2}, 2, v0")
            a(f"v_mul_u32_u24 v{t + 2}, {KVP - 64}, v{t + 2}")
            a(f"v_add_u32 v{CV}, v{CV}, v{t + 2}")
        elif CFG["zb"]:
            a(f"s_lshr_b32 s{T + 3}, s{C_CH}, 2")
            a(f"s_mul_i32 s{T + 3}, s{T + 3}, {4 * ZP // 64}")
            a(f"s_add_u32 s{T + 3}, s{T + 3}, s{C_W}")
            a(f"s_lshl_b32 s{T + 3}, s{T + 3}, 6")
            a(f"v_lshrrev_b32 v{t + 2}, 2, v0")
            a(f"v_mul_u32_u24 v{t + 2}, 192, v{t + 2}")
            a(f"v_add_u32 v{CV}, v{CV}, v{t + 2}")
        else:
            a(f"s_mul_i32 s{T + 3}, s{C_CH}, {ZP}")
        srd(a, C_B, P_OUT, 8 << 20)
        if not CFG["cpollfirst"]:
            after(a)

    def after(a):
        if CFG["park"]:
            return
        a("s_waitcnt vmcnt(0)")
        lds_add(a, CV + 3, ONE, F_WO2)

    join_signal_wait(a, CV + 3, F_CJOIN, F_CGO, C_SIG, C_KW, t + 3, T, between, after=after if CFG["cpollfirst"] else None)
    st.stamp(a, "zflag")
    if CFG.get("x_nopost"):
        return
    if CFG["zhold"] is not None and not CFG["shold"]:
        spin_lds(a, CV + 3, F_GZ, 1, t + 3, T)
    Z = CA
    for i in range(4):
        a(f"buffer_load_dwordx4 {vr(Z + 4 * i, 4)}, v{CV}, s[{C_WS}:{C_WS + 3}], s{T + 3} offen offset:{0 if CFG['zb'] else 1024 * i}{CFG['zld']}")
        if CFG["zb"]:
            a(f"s_add_u32 s{T + 3}, s{T + 3}, {16 * KVP if CFG['zb'] >= 2 else 4096}")
    nq = 4 if CFG["qtail"] == 2 else 0
    if nq:
        q_loads(a, Q("vmcnt", 63))
        srd(a, C_B, P_OUT, 8 << 20)
    for i in range(4):
        a(f"s_waitcnt vmcnt({3 - i + nq})")
        a(f"ds_write_b128 v{t}, {vr(Z + 4 * i, 4)} offset:{1088 * i}")
    st.stamp(a, "zld")
    for j in range(8):
        a(f"ds_read_b64 {vr(Z + 16 + 2 * j, 2)}, v{t + 1} offset:{64 * j}")
    ZU = CACC
    for j in range(8):
        a(f"s_waitcnt lgkmcnt({7 - j})")
        for e in (0, 1):
            unpack(a, ZU + 8 * (2 * e) + j, ZU + 8 * (2 * e + 1) + j, Z + 16 + 2 * j + e)
    for r in range(nq):
        a(f"s_waitcnt vmcnt({3 - r})")
        for d in range(4):
            unpack(a, QU + 8 * r + 2 * d, QU + 8 * r + 2 * d + 1, QR + 4 * r + d)
    for r, ro in enumerate((0, 1, 4, 5)):
        for j in range(8):
            a(f"v_mul_f32 v{ZU + 8 * r + j}, v{ZU + 8 * r + j}, v{QU + 8 * r + j}")
        for d in range(4):
            a(f"v_cvt_pk_bf16_f32 v{Z + 4 * r + d}, v{ZU + 8 * r + 2 * d}, v{ZU + 8 * r + 2 * d + 1}")
        if not CFG["shold"]:
            a(f"s_mov_b32 s{T}, {4096 * ro}")
            a(f"buffer_store_dwordx4 {vr(Z + 4 * r, 4)}, v{CV + 2}, s[{C_B}:{C_B + 3}], s{T} offen{CFG.get('osta', CFG['ost'])}")
    if CFG["shold"]:
        spin_lds(a, CV + 3, F_GZ, CFG["shold"], t + 3, T)
        for r, ro in enumerate((0, 1, 4, 5)):
            a(f"s_mov_b32 s{T}, {4096 * ro}")
            a(f"buffer_store_dwordx4 {vr(Z + 4 * r, 4)}, v{CV + 2}, s[{C_B}:{C_B + 3}], s{T} offen{CFG.get('osta', CFG['ost'])}")


def c_role(a, st):
    K = 1 << CFG["stagbits"]
    vm = MQ(K, C_STG)
    T = C_T
    if CFG["ring"]:
        a("s_add_u32 s94, s32, L_tab-L_entry-4")
        a("s_addc_u32 s95, s33, 0")
    loader_setup(a)
    touch_setup(a)
    a("s_waitcnt lgkmcnt(0)")
    srd(a, L_SRDX, P_X, 4 << 20)
    srd(a, L_SRDW, P_W, 6 << 20)
    a(f"s_setprio {CFG['prio_c1']}")
    st.stamp(a, "karg")
    c_setup(a)
    if CFG["cearly"]:
        q_addr(a)
        conv_init(a)
    if CFG["bpre"]:
        a("s_barrier")
    st.stamp(a, "cgo")

    def sig_kv(k):
        def f(a, vm):
            skip = uid("sig")
            a(f"s_bfe_u32 s{T}, s2, 0x20003")
            a(f"s_lshl2_add_u32 s{T}, s{T}, s{C_W}")
            a(f"s_cmp_lg_u32 s{T}, {4 * k}")
            a(f"s_cbranch_scc1 {skip}")
            srd(a, C_B, P_DBG, 256)
            a(f"s_and_b32 s{T}, s2, 3")
            a(f"s_lshl_b32 s{T}, s{T}, 6")
            a("s_mov_b64 exec, 1")
            a(f"buffer_atomic_add v{ONE}, off, s[{C_B}:{C_B + 3}], s{T} sc1")
            a("s_mov_b64 exec, -1")
            a.label(skip)
        return f

    def pld(a, vm):
        for j in range(4):
            a(f"s_load_dword s{4 + j}, s[{P_DBG}:{P_DBG + 1}], {64 * j}")

    def pchk(a, vm):
        done, loop = uid("pc_done"), uid("pc_loop")
        if not CFG["ring"]:
            a(f"s_cmp_lg_u32 s{C_W}, 0")
            a(f"s_cbranch_scc1 {done}")
        a("s_waitcnt lgkmcnt(0)")
        a("s_min_u32 s4, s4, s5")
        a("s_min_u32 s6, s6, s7")
        a("s_min_u32 s4, s4, s6")
        a("s_cmp_ge_u32 s4, 64")
        a(f"s_cbranch_scc1 {done}")
        srd(a, C_B, P_DBG, 256)
        a(f"v_lshlrev_b32 v20, 6, v0")
        a(f"s_mov_b32 s{T}, {SPIN_MAX}")
        a("s_mov_b64 exec, 0xf")
        a.label(loop)
        a(f"buffer_load_dword v21, v20, s[{C_B}:{C_B + 3}], 0 offen sc1")
        a("s_waitcnt vmcnt(0)")
        a("v_cmp_gt_u32 vcc, 64, v21")
        a(f"s_cbranch_vccz {done}")
        a("s_sleep 4")
        a(f"s_sub_u32 s{T}, s{T}, 1")
        a(f"s_cbranch_scc0 {loop}")
        a.label(done)
        a("s_mov_b64 exec, -1")

    def s15(a, vm):
        vm.wait(a, ("S", 15))
        lds_add(a, CV + 3, ONE, F_S15)

    def only(k, fs):
        def f(a, vm):
            skip = uid("stg")
            a(f"s_cmp_lg_u32 s{C_STG}, {k}")
            a(f"s_cbranch_scc1 {skip}")
            vm.only = k
            for g in fs:
                g(a, vm)
            vm.only = None
            a.label(skip)
        return f

    def krd(a, vm):
        pre_tile(a, T, T + 1, C_W, T + 2)
        kvt_addr(a, 20, C_HB, T, T + 1, T + 2, C_A)
        kvt_read(a, 20, 24)

    def kst(a, vm):
        a("s_waitcnt lgkmcnt(0)")
        kvt_store(a, 20, 24, T, C_A)
        vm.issue("kst", 4)

    W = lambda *tags: (lambda a, vm: vm.wait(a, *tags))
    A = lambda f, *x: (lambda a, vm: f(a, *x))
    items = dict(s15=s15, pld=pld, pchk=pchk, sig0=sig_kv(0), sig1=sig_kv(1), sig2=sig_kv(2), sig3=sig_kv(3),
                 u=u_loads, h=h_loads, h0=h_piece(0), h1=h_piece(1), h2=h_piece(2), h3=h_piece(3), q=q_loads, wt=wo_touch, wo1=wo1_by_c, wc=wo_chip_touch, w3=lambda a, vm: wo_touch(a, vm, mask=0x0808080808080808),
                 wook=lambda a, vm: (vm.wait(a, "wo1"), lds_add(a, CV + 3, ONE, F_GGO)), qt=q_touch, hfill=A(h_fill), ufill=A(u_fill), cinit=A(conv_init), brd=lambda a, vm: a.extend([x for x in conv_reads(0, 0) if 'b128' in x]), cts=A(ctouch_setup), qa=A(q_addr),
                 wh=W("h"), wu=W("u"), wwt=W("wt"), wq=W("q"), stm=lambda a, vm: st.stamp(a, "x"),
                 w4=lambda a, vm: a("s_waitcnt vmcnt(4)"), w2=lambda a, vm: a("s_waitcnt vmcnt(2)"), krd=krd, kst=kst, wst=W("kst"))

    def get(name):
        if "@" in name:
            n, k = name.split("@")
            return only(int(k), [get(x) for x in n.split("+")])
        if name[:2] == "wt" and "/" in name:
            return lambda a, vm: wo_touch(a, vm, *map(int, name[2:].split("/")))
        if name[:2] == "sq":
            k0, k1 = map(int, name[2:].split("-"))

            def fq(a, vm):
                a(f"v_readfirstlane_b32 s{T}, v{CV + 1}")
                for k in range(k0, k1):
                    a(f"s_load_dwordx2 s[90:91], s[{P_Q}:{P_Q + 1}], s{T} offset:{2048 * (256 * (k >> 4) + 32 * ((k >> 3) & 1) + (k & 7)) + 60}")
            return fq
        if name[:2] == "sw":
            k0, k1 = map(int, name[2:].split("-"))

            def f(a, vm):
                a(f"s_lshl2_add_u32 s{T}, s2, s{C_W}")
                a(f"s_lshl_b32 s{T}, s{T}, 11")
                for k in range(k0, k1):
                    a(f"s_load_dwordx2 s[90:91], s[{P_WO}:{P_WO + 1}], s{T} offset:{128 * k + 60}")
            return f
        if name[:2] in ("sh", "su"):
            k0, k1 = map(int, name[2:].split("-"))
            ptr, so = (P_H, C_HO) if name[1] == "h" else (P_WS, C_UO)
            return lambda a, vm: [a(f"s_load_dwordx2 s[90:91], s[{ptr}:{ptr + 1}], s{so} offset:{128 * k + 60}") for k in range(k0, k1)]
        if name.startswith("ct") and "-" in name:
            s0, s1 = map(int, name[2:].split("-"))
            return lambda a, vm: ctouch(a, vm, s0, s1 - s0, L_SRDX, L_SRDW)
        if name.startswith("tb"):
            return lambda a, vm: touch_batch(a, vm, *map(int, name[2:].split("-")), L_SRDX, L_SRDW)
        return items[name]

    todo = [(("S", t), g) for t in range(NSTAGE) for g in loader_groups(t)]
    pos = [0]

    def issue_to(n):
        while CFG["sub"] and pos[0] < min(n, len(todo)):
            a(f"s_call_b64 s[{L_RET}:{L_RET + 1}], L_stage")
            vm.issue(todo[pos[0]][0], 11)
            pos[0] += 11
        while pos[0] < min(n, len(todo)):
            tag, (p1, p2) = todo[pos[0]]
            a.extend(p1)
            a.extend(p2)
            vm.issue(tag)
            pos[0] += 1
            if CFG["ring"] and pos[0] % 11 in CFG["rsamp"] and tag[1] > 1:
                a("ds_read_b32 v23, v22")
            if CFG["ring"] and pos[0] % 11 == 0 and tag[1] > 0:
                a(f"s_sub_u32 m0, s{L_XC}, {4 * tag[1]}")
                a("s_mov_b64 exec, 1")
                a(f"global_load_lds_dword v{CV + 4}, s[94:95] offset:{4 * tag[1]}")
                a("s_mov_b64 exec, -1")
                vm.issue("full")

    if CFG.get("x_noconv"):
        global conv_mfmas
        conv_mfmas = lambda s_: ["s_nop 0"] * 36
    for t in range(-1, 15 + CFG['rev']):
        if t > 0 and CFG["ring"]:
            done, loop = uid("fr_done"), uid("fr_loop")
            a(f"s_mov_b32 s{T}, {SPIN_MAX * 8}")
            if CFG["rsamp"]:
                a(f"s_branch {loop}c")
            a.label(loop)
            a("ds_read_b32 v23, v22")
            a("s_waitcnt lgkmcnt(0)" if CFG["ring"] == 1 else CFG.get("rnap", "s_sleep 1"))
            a.label(loop + "c")
            a(f"v_readfirstlane_b32 s{T + 1}, v23")
            a(f"s_sub_u32 s{T + 1}, s{T + 1}, {85 * (t - 1)}")
            a(f"s_lshr_b32 s{T + 2}, s{T + 1}, 1")
            a(f"s_or_b32 s{T + 1}, s{T + 1}, s{T + 2}")
            a(f"s_andn2_b32 s{T + 1}, 0x55, s{T + 1}")
            a(f"s_cbranch_scc0 {done}")
            a(f"s_sub_u32 s{T}, s{T}, 1")
            a(f"s_cbranch_scc0 {loop}")
            a.label(done)
            st.stamp(a, f"B{t}")
        elif t >= 0:
            vm.wait(a, ("S", t))
            a("s_barrier")
            st.stamp(a, f"B{t}")
        pre, _, post = CFG["sched"].get(t, "").partition("|")
        for x in pre.split():
            get(x)(a, vm)
        issue_to(11 * (t + 3) - CFG["debt"].get(t, 0))
        for x in post.split():
            get(x)(a, vm)
    st.stamp(a, "uh")
    a(f"s_setprio {CFG['prio_cs']}")
    for x in CFG["late"].split():
        get(x)(a, vm)
    conv_loop(a, st)
    conv_tail(a, st)
    st.stamp(a, "st")
    if st.on:
        a("s_waitcnt vmcnt(0)")
    st.flush(a, S_WG, S_WAVE)
    a("s_endpgm")


def build(stamps=False, verbose=False, probe=None, **cfg):
    CFG.clear()
    CFG.update(BASE)
    CFG.update(cfg)
    reset_uid()
    NAP[0] = CFG['nap']
    a = Asm()
    st = SkewProbe(*probe) if probe else (LightStamps(CFG.get('clk', 's_memrealtime')) if stamps else Stamps(False))
    a("L_entry:")
    a("s_getpc_b64 s[32:33]")
    a("s_cmp_ge_u32 s2, 256")
    a("s_cbranch_scc1 L_end")
    st.start(a)
    load_ptrs(a)
    decode_ids(a)
    a(f"s_cmp_ge_u32 s{S_WAVE}, 4")
    a("s_cbranch_scc1 L_crole")
    gvm = Q("vmcnt", 63)
    st.role(0)
    g_entry(a, gvm, st)
    if CFG["ring"]:
        a.label("L_tab")
        a(".long " + ", ".join(str(i) for i in range(16)))
    if CFG["sub"]:
        loader_sub(a)
    a.label("L_crole")
    st.role(4)
    c_role(a, st)
    a.label("L_grole")
    st.role(0)
    g_role(a, st, gvm)
    a.label("L_end")
    a("s_endpgm")
    body = a.finish(verbose)
    txt = build_file([(NAME + "_kernel", body, 256, 512, LDS_BYTES, 256)])
    if stamps and not probe:
        txt += "".join(f"; stamps{w}: " + " ".join(n) + "\n" for w, n in st.names.items())
    return txt, a.padded


def variants(d, stamps=True):
    for n, cfg in d.items():
        cfg = dict(cfg)
        if "sched" in cfg and not cfg.pop("full", 0):
            cfg["sched"] = {**BASE["sched"], **cfg["sched"]}
        open(f"{DEV}/v_{n}.s", "w").write(build(stamps=stamps, **cfg)[0])
    print(" ".join(f"v_{n}.s" for n in d))


if __name__ == "__main__":
    open(DEV + "/k_st.s", "w").write(build(stamps=True, verbose="-v" in sys.argv)[0])
    s, p = build()
    open(DEV + "/k.s", "w").write(s)
    print("padded", p)
    if "install" in sys.argv:
        open(DEV + f"/../{NAME}.s", "w").write(s)
```

```python
def T(first, ev):
    d = {-1: f"tb0-{first}|qa cinit"}
    base = {4: "sig0 sh0-4", 5: "sig1 sh4-8", 6: "sig2 sh8-12", 7: "sig3 sh12-16", 8: "sh16-20", 9: "sh20-24", 10: "sh24-28", 11: "sh28-32"}
    last_tb = max([t for t, x in ev.items() if x.startswith("tb")], default=-1)
    for t in range(0, 12):
        d[t] = "|" + ev.get(t, "") + (" cts " if t == last_tb else " ") + base.get(t, "")
    if last_tb < 0:
        d[-1] += " cts"
    return dict(sched=d)
```

```python
from asmlib import *
import os
DEV = os.path.join(os.path.dirname(os.path.abspath(__file__)), "..", "dev")

NAME = "concat_heads__ssm_conv_h3__sliding_local_dilated__prompt"

HEADER = """; Kernarg layout for this problem (96 bytes, ptrs only, base s[0:1]):
"""

P_Q, P_K, P_V, P_SH, P_H, P_D, P_X, P_W, P_WO, P_OUT, P_DBG, P_WS = [8 + 2 * i for i in range(12)]

WS_O = 0
WS_KV = 4 << 20
WS_Z = 8 << 20
WS_CNT = 12 << 20
WS_STAMP = 128 << 20

MFMA = "v_mfma_f32_16x16x32_bf16"


def mfma(d, a, b, c=None):
    cs = vr(d, 4) if c is None else (c if isinstance(c, str) else vr(c, 4))
    return f"{MFMA} {vr(d, 4)}, {vr(a, 4)}, {vr(b, 4)}, {cs}"


def load_ptrs(a):
    a("s_load_dwordx16 s[8:23], s[0:1], 0")
    a("s_load_dwordx8 s[24:31], s[0:1], 64")


def srd(a, d, ptr, nbytes, off=0):
    if off:
        a(f"s_add_u32 s{d}, s{ptr}, {off:#x}")
        a(f"s_addc_u32 s{d + 1}, s{ptr + 1}, 0")
    else:
        a(f"s_mov_b32 s{d}, s{ptr}")
        a(f"s_mov_b32 s{d + 1}, s{ptr + 1}")
    a(f"s_mov_b32 s{d + 2}, {nbytes:#x}")
    a(f"s_mov_b32 s{d + 3}, 0x20000")


class Stamps:
    def __init__(self, on):
        self.on = on

    def role(self, first_wave):
        pass

    def start(self, a):
        if self.on:
            a("s_mov_b32 s100, 0")
            a("v_mov_b32 v254, 0")
            a("v_mov_b32 v255, 0")
            self.stamp(a)

    def stamp(self, a, i=None):
        if self.on:
            a("s_memtime s[96:97]")
            a("s_memrealtime s[98:99]")
            a("s_waitcnt lgkmcnt(0)")
            a("s_mov_b32 s101, m0")
            a("s_mov_b32 m0, s100")
            a("v_writelane_b32 v254, s96, m0")
            a("v_writelane_b32 v255, s98, m0")
            a("s_mov_b32 m0, s101")
            a("s_cselect_b32 s101, 1, 0")
            a("s_add_u32 s100, s100, 1")
            a("s_cmp_lg_u32 s101, 0")

    def flush(self, a, s_wg, s_wave, vt=253):
        if not self.on:
            return
        self.stamp(a)
        a("s_mov_b64 exec, -1")
        srd(a, 92, P_WS, 256 * 8 * 512, WS_STAMP)
        a(f"s_lshl_b32 s100, s{s_wg}, 3")
        a(f"s_add_u32 s100, s100, s{s_wave}")
        a("s_lshl_b32 s100, s100, 9")
        a(f"v_mbcnt_lo_u32_b32 v253, -1, 0")
        a(f"v_mbcnt_hi_u32_b32 v253, -1, v253")
        a(f"v_lshlrev_b32 v253, 2, v253")
        a(f"buffer_store_dword v254, v253, s[92:95], s100 offen")
        a(f"buffer_store_dword v255, v253, s[92:95], s100 offen offset:256")


def kernel_begin(name):
    return f""".text
.globl {name}
.p2align 8
.type {name},@function
{name}:
"""


def kernel_desc(name, vgpr=256, sgpr=102):
    return f""".section .rodata,"a"
.p2align 6
.amdhsa_kernel {name}
  .amdhsa_next_free_vgpr {vgpr}
  .amdhsa_next_free_sgpr {sgpr}
  .amdhsa_accum_offset {min(256, (vgpr + 3) // 4 * 4)}
  .amdhsa_group_segment_fixed_size 0
  .amdhsa_kernarg_size 96
  .amdhsa_user_sgpr_count 2
  .amdhsa_user_sgpr_kernarg_segment_ptr 1
  .amdhsa_system_sgpr_workgroup_id_x 1
  .amdhsa_float_denorm_mode_32 3
.end_amdhsa_kernel
"""


def build_file(kernels):
    s = HEADER
    if len(kernels) == 1 and kernels[0][0] == NAME + "_kernel":
        n, _, g, b, l, _ = kernels[0]
        s += f"; @launch grid=({g},1,1) block=({b},1,1) lds={l}\n"
    else:
        for n, _, g, b, l, _ in kernels:
            s += f"; @launch kernel={n} grid=({g},1,1) block=({b},1,1) lds={l}\n"
    s += '.amdgcn_target "amdgcn-amd-amdhsa--gfx950"\n'
    for n, body, *_ in kernels:
        s += kernel_begin(n) + body
    for n, _, g, b, l, v in kernels:
        s += kernel_desc(n, v)
    return s


class Probe:
    on = False

    def __init__(self, wave, idx, wg=37, idx0=0):
        self.wave, self.idx, self.wg, self.n, self.idx0 = wave, idx, wg, 0, idx0

    def start(self, a):
        a("s_memrealtime s[96:97]")
        a("s_waitcnt lgkmcnt(0)")
        a("s_mov_b32 s98, s96")
        a("s_mov_b32 s92, s96")

    def role(self, first_wave):
        self.n = 0
        self.active = first_wave <= self.wave < first_wave + 4

    def stamp(self, a, i=None):
        self.n += 1
        if self.active and self.n == self.idx:
            a("s_memrealtime s[98:99]")
            a("s_waitcnt lgkmcnt(0)")
        if self.active and self.n == self.idx0:
            a("s_memrealtime s[92:93]")
            a("s_waitcnt lgkmcnt(0)")

    def flush(self, a, s_wg, s_wave, vt=253):
        if not self.active:
            return
        a("s_waitcnt vmcnt(0)")
        self.stamp(a)
        if self.wg < 256:
            a(f"s_cmp_lg_u32 s{s_wg}, {self.wg}")
            a("s_cbranch_scc1 L_probe_done")
        a(f"s_cmp_lg_u32 s{s_wave}, {self.wave}")
        a("s_cbranch_scc1 L_probe_done")
        a("s_sub_u32 s98, s98, s92")
        a("s_mul_i32 s98, s98, 10")
        a("s_add_u32 s98, s98, 10000")
        a("L_probe_loop:")
        a("s_memrealtime s[94:95]")
        a("s_waitcnt lgkmcnt(0)")
        a("s_sub_u32 s94, s94, s96")
        a("s_cmp_lt_u32 s94, s98")
        a("s_cbranch_scc1 L_probe_loop")
        a("L_probe_done:")


class LightStamps:
    on = True

    def __init__(self, op="s_memrealtime"):
        self.names = {}
        self.op = op

    def start(self, a):
        a("v_mov_b32 v255, 0")
        a(f"{self.op} s[98:99]")

    def role(self, first_wave):
        self.cur = self.names.setdefault(first_wave, ["start"])
        self.n = len(self.cur) - 1

    def stamp(self, a, name=None):
        a(f"v_writelane_b32 v255, s98, {self.n}")
        a(f"{self.op} s[98:99]")
        self.n += 1
        self.cur.append(str(name if name is not None else self.n))

    def flush(self, a, s_wg, s_wave, vt=253):
        a("s_waitcnt lgkmcnt(0)")
        self.stamp(a, "end")
        a("s_waitcnt lgkmcnt(0)")
        a(f"v_writelane_b32 v255, s98, {self.n}")
        a("s_mov_b64 exec, -1")
        srd(a, 92, P_WS, 256 * 8 * 512, WS_STAMP)
        a(f"s_lshl_b32 s100, s{s_wg}, 3")
        a(f"s_add_u32 s100, s100, s{s_wave}")
        a("s_lshl_b32 s100, s100, 9")
        a(f"v_mbcnt_lo_u32_b32 v253, -1, 0")
        a(f"v_mbcnt_hi_u32_b32 v253, -1, v253")
        a(f"v_lshlrev_b32 v253, 2, v253")
        a(f"buffer_store_dword v255, v253, s[92:95], s100 offen")
        a(f"buffer_store_dword v255, v253, s[92:95], s100 offen offset:256")


class SkewProbe:
    on = False

    def __init__(self, name0, name1):
        self.n0, self.n1 = name0, name1

    def start(self, a):
        a("s_memrealtime s[96:97]")
        a("s_waitcnt lgkmcnt(0)")
        a("s_mov_b32 s98, s96")
        a("s_mov_b32 s92, s96")

    def role(self, first_wave):
        self.active = first_wave == 0

    def stamp(self, a, name=None):
        if self.active and name == self.n1:
            a("s_memrealtime s[98:99]")
            a("s_waitcnt lgkmcnt(0)")
        if self.active and name == self.n0:
            a("s_memrealtime s[92:93]")
            a("s_waitcnt lgkmcnt(0)")

    def flush(self, a, s_wg, s_wave, vt=253):
        if not self.active:
            return
        a("s_waitcnt vmcnt(0)")
        self.stamp(a, "end")
        a(f"s_cmp_lg_u32 s{s_wave}, 0")
        a("s_cbranch_scc1 L_probe_done")
        srd(a, 64, P_DBG, 256)
        a("s_not_b32 s92, s92")
        a("v_mov_b32 v1, s98")
        a("v_mov_b32 v2, s92")
        a("s_mov_b64 exec, 1")
        a("buffer_atomic_umax v1, off, s[64:67], 0 offset:128 sc1")
        a("buffer_atomic_umax v2, off, s[64:67], 0 offset:132 sc1")
        a(f"s_cmp_lg_u32 s{s_wg}, 37")
        a("s_cbranch_scc1 L_probe_done")
        a("s_mov_b32 s98, 8000")
        a("s_mov_b32 s93, 0")
        a("L_probe_loop:")
        a("s_memrealtime s[94:95]")
        a("s_waitcnt lgkmcnt(0)")
        a("s_sub_u32 s94, s94, s96")
        a("s_cmp_lt_u32 s94, s98")
        a("s_cbranch_scc1 L_probe_loop")
        a("s_cmp_lg_u32 s93, 0")
        a("s_cbranch_scc1 L_probe_done")
        a("s_mov_b32 s93, 1")
        a("buffer_load_dwordx2 v[2:3], off, s[64:67], 0 offset:128 sc1")
        a("s_waitcnt vmcnt(0)")
        a("v_add_u32 v2, v2, v3")
        a("v_readfirstlane_b32 s98, v2")
        a("s_add_u32 s98, s98, 1")
        a("s_min_u32 s98, s98, 20000")
        a("s_mul_i32 s98, s98, 10")
        a("s_add_u32 s98, s98, 10000")
        a("s_branch L_probe_loop")
        a("L_probe_done:")


class Jitter:
    on = False

    def __init__(self, seed, nap):
        self.seed, self.nap, self.k = seed, nap, 0
        self.names = {}

    def start(self, a):
        a("v_readfirstlane_b32 s96, v0")
        a("s_lshr_b32 s96, s96, 6")
        a("s_lshl3_add_u32 s96, s2, s96")
        a(f"s_add_u32 s96, s96, {self.seed}")

    def role(self, first_wave):
        pass

    def stamp(self, a, name=None):
        self.k += 1
        a("s_cselect_b32 s97, 1, 0")
        a("s_mul_i32 s96, s96, 0x9e3779b1")
        a(f"s_add_u32 s96, s96, {12345 + self.k}")
        a("s_lshr_b32 s98, s96, 30")
        a("s_cmp_lg_u32 s98, 0")
        a(f"s_cbranch_scc1 L_jit_{self.k}")
        a(f"s_sleep {self.nap}")
        a(f"L_jit_{self.k}:")
        a("s_cmp_lg_u32 s97, 0")

    def flush(self, a, s_wg, s_wave, vt=253):
        pass
```

```python
import sys
from common import *
from ksched import *

STAGE = 41984
X_HALO, W_OFF, NSTAGE = 16384, 17408, 16
LDS_BYTES = 163840
EX = (STAGE + 36864, 3 * STAGE + 33792)
H_REG, H_PITCH, H_COPY = 3 * STAGE, 8448, 4224
U_REG, U_PITCH, U_COPY = STAGE, 9216, 4576
FLAGS = H_REG + 8400
F_GJOIN, F_GGO, F_CJOIN, F_WO2, F_CGO, F_EX, F_S15, F_AT, F_WO1, F_CD, F_GZ = 0, 4, 8, 12, 16, 20, 24, 28, 32, 36, 40
FULLW, FREEW = FLAGS + H_PITCH, X_HALO
POST_ST, POST_PITCH = STAGE + 2 * U_PITCH, 4352
WS_O, WS_KV, WS_Z, WS_CNT = 0, 4 << 20, 9 << 20, 14 << 20
KVP = ZP = 4224
CNT_O, CNT_Z, NCNT = 0, 256, 512

BASE = dict(ptouch=0, sc3=0, near=2, dfirst=1, stat=None, rsamp=(), ring=0, zearly=15, rev=0, stagpos=6, ctn=4, g2tail=2, tnop=1, park0=0, parkpre=0, alc=None, al=15, smf=1, noswap=1, wend=0, shold=0, stb0=1, cearly=0, sub=0, qtail=0, zhold=None, presample=4, park=1, parkat=(4, 2), cord=0, g2serp=0, dmod='', serp=1, kx=None, zb=0, pmap=0, wx3=1, wnt=0, xnt=0, xmod=' nt', wtmod='', cwo1=0, cpollfirst=0, sigfirst=0, wo1a=10, prio_av=2, prio_j=2, tight=1, nap=1, pd=8, nfx=1, wo2=0, wo2nap=0, prio_w2=1, zld=' sc1', uld=' sc1', zst=' sc1', kst=' sc1', zloc=0, pollfirst=1, woat=20, woatp=(40, 2), cgx=2, rep=1, holdex=0, oblds=1, debt={}, pm=4, qat=0, hold=None, latesetup=0, cst=0, ospec=0, ilv=1, wxcd=0, bpre=0, b0early=0, drain=4, rot2=0, wo0=0, depth=6, ushift=1,
            prio_g1=2, prio_c1=0, prio_cs=3, prio_at=2, prio_g2=0, prio_conv=1, prio_ct=1, prio_wo=0, wper=4, d0=6,
            nt=" nt", hmod="", ost=" nt", stagbits=2, codepf=1, tb1=None, late="wu wt wh hfill",
            sched={-1: "tb0-4|qa cinit cts", 0: "|ct4-6@0", 1: "|ct6-8@1 sh0-3", 2: "|sh3-6", 3: "|ct8-10@2 sh6-9",
                   4: "|sig0 sh9-12", 5: "|ct10-12@3 sig1 sh12-15", 6: "|sig2 sh15-18", 7: "|ct12-14@0 sig3 sh18-21",
                   8: "|sh21-24", 9: "|ct14-16@1 sh24-27", 10: "|sh27-30", 11: "|sh30-32", 13: "pld|q pchk",
                   14: "s15 u h ufill"})
CFG = dict(BASE)

S_WG, S_WAVE, S_PAR, S_RB, S_HP, S_T0 = 2, 3, 4, 5, 6, 7
S_CNT = 52


def wo_base(c):
    if c < 5:
        return 8192 * c
    if c < 10:
        return 2 * STAGE + 8192 * (c - 5)
    return H_REG + H_PITCH * (c - 10) if c < 14 else U_REG + U_PITCH * (c - 14)


def decode_ids(a):
    a("v_lshrrev_b32 v1, 6, v0")
    a(f"s_and_b32 s{S_PAR}, s2, 1")
    a(f"v_readfirstlane_b32 s{S_WAVE}, v1")
    a("v_and_b32 v0, 63, v0")
    a(f"s_bfe_u32 s{S_RB}, s2, 0x30003")
    a(f"s_bfe_u32 s{S_HP}, s2, 0x20001")
    a(f"s_lshr_b32 s{S_T0}, s2, 6")
    a(f"s_lshl2_add_u32 s{S_HP}, s{S_HP}, s{S_T0}")


def unpack(a, dlo, dhi, src):
    a(f"v_lshlrev_b32 v{dlo}, 16, v{src}")
    a(f"v_and_b32 v{dhi}, 0xffff0000, v{src}")


def cvt2(dst, src):
    return [f"v_cvt_pk_bf16_f32 v{dst}, v{src}, v{src + 1}", f"v_cvt_pk_bf16_f32 v{dst + 1}, v{src + 2}, v{src + 3}"]


def lds_add(a, va, vone, off):
    a("s_mov_b64 exec, 1")
    a(f"ds_add_u32 v{va}, v{vone} offset:{off}")
    a("s_mov_b64 exec, -1")


def join_signal_wait(a, va, f_join, f_go, s_sig, s_wait, vt, st, between=None, want=16, after=None, sampled=False):
    other, done = uid("jo"), uid("jd")
    a(f"v_mov_b32 v{vt + 1}, 1")
    a("s_mov_b64 exec, 1")
    a(f"ds_add_rtn_u32 v{vt}, v{va}, v{vt + 1} offset:{f_join}")
    a("s_waitcnt lgkmcnt(0)")
    a(f"v_readfirstlane_b32 s{st + 2}, v{vt}")
    a(f"s_cmp_eq_u32 s{st + 2}, 3")
    a(f"s_cbranch_scc0 {other}a")
    a("s_mov_b64 exec, 0xffff")
    a(f"v_lshlrev_b32 v{vt}, 8, v0")
    a(f"buffer_atomic_add v{vt + 1}, v{vt}, s[{S_CNT}:{S_CNT + 3}], s{s_sig} offen sc1")
    a.label(other + "a")
    a("s_mov_b64 exec, -1")
    if between:
        between(a)
    a(f"s_cmp_eq_u32 s{st + 2}, 3")
    a(f"s_cbranch_scc0 {other}")
    spin_scalar(a, S_CNT, f"s{s_wait}", 16, st, first=not sampled)
    a(f"v_mov_b32 v{vt}, 16")
    lds_add(a, va, vt, f_go)
    if want == 16 and not after:
        a(f"s_branch {done}")
    a.label(other)
    if after:
        after(a)
    spin_lds(a, va, f_go, want, vt, st)
    a.label(done)


TV = 251
TS = 88


def touch_setup(a, t=90):
    a(f"s_lshr_b32 s{t}, s2, 3")
    a(f"s_and_b32 s{t + 1}, s{S_WAVE}, 3")
    a(f"s_lshl2_add_u32 s{t}, s{t}, s{t + 1}")
    a(f"s_and_b32 s{t + 1}, s2, 6")
    a(f"s_lshl3_add_u32 s{TS}, s{t}, s{t + 1}")
    a(f"s_lshl1_add_u32 s{TS}, s{TS}, s{S_PAR}")
    a(f"s_lshl_b32 s{TS}, s{TS}, 11")
    a(f"s_and_b32 s{TS + 1}, s2, 7")
    a(f"s_and_b32 s{t + 1}, s{t}, 1")
    a(f"s_lshl1_add_u32 s{TS + 1}, s{TS + 1}, s{t + 1}")
    a(f"s_lshr_b32 s{t}, s{t}, 1")
    a(f"s_mul_i32 s{t}, s{t}, 48")
    a(f"s_add_u32 s{TS + 1}, s{TS + 1}, s{t}")
    a(f"s_lshl_b32 s{TS + 1}, s{TS + 1}, 7")
    a(f"v_and_b32 v{TV}, 1, v0")
    a(f"v_lshlrev_b32 v{TV}, 12, v{TV}")
    a(f"v_lshrrev_b32 v{TV + 1}, 1, v0")
    a(f"v_lshl_add_u32 v{TV}, v{TV + 1}, 7, v{TV}")
    a(f"v_lshrrev_b32 v{TV - 1}, 2, v0")
    a(f"v_mul_u32_u24 v{TV - 1}, {64 * 6144}, v{TV - 1}")
    a(f"v_and_b32 v{TV + 1}, 3, v0")
    a(f"v_lshl_add_u32 v{TV + 1}, v{TV + 1}, 11, v{TV - 1}")


def touch_batch(a, vm, s0, s1, sx, sw):
    mx = sum(3 << (2 * i) for i in range(s0, s1))
    mw = sum(7 << (4 * i) for i in range(s0, s1))
    wm = " nt" if s0 < CFG["wnt"] else ""
    a(f"s_mov_b32 exec_lo, {mw & 0xffffffff:#x}")
    a(f"s_mov_b32 exec_hi, {mw >> 32:#x}")
    a(f"buffer_load_dword v{TV - 1}, v{TV + 1}, s[{sw}:{sw + 3}], s{TS + 1} offen{wm}")
    if CFG["wx3"]:
        skip = uid("wx3")
        a.ins.pop()
        a(f"s_bfe_u32 s{S_T0}, s{TS + 1}, 0x30007")
        a(f"s_cmp_lg_u32 s{S_T0}, 1")
        a(f"s_cbranch_scc1 {skip}")
        a(f"buffer_load_dword v{TV - 1}, v{TV + 1}, s[{sw}:{sw + 3}], s{TS + 1} offen offset:256")
        a.label(skip)
        a(f"buffer_load_dword v{TV - 1}, v{TV + 1}, s[{sw}:{sw + 3}], s{TS + 1} offen")
    if CFG["wxcd"]:
        a(f"s_xor_b32 s{TS + 1}, s{TS + 1}, 256")
        a(f"buffer_load_dword v{TV - 1}, v{TV + 1}, s[{sw}:{sw + 3}], s{TS + 1} offen{wm}")
        a(f"s_xor_b32 s{TS + 1}, s{TS + 1}, 256")
    a(f"s_mov_b32 exec_lo, {mx:#x}")
    a("s_mov_b32 exec_hi, 0")
    xx = s0 < CFG["xnt"]
    for k in range(4 if xx else 1):
        a(f"buffer_load_dword v{TV - 1}, v{TV}, s[{sx}:{sx + 3}], s{TS} offen{CFG['xmod'] if xx else ''}")
        if xx:
            a(f"s_xor_b32 s{TS}, s{TS}, {(8192, 16384, 8192, 16384)[k]}")
    a("s_mov_b64 exec, -1")
    vm.issue("tb", 2 + CFG["wxcd"] + 3 * xx)


def ctouch_setup(a):
    b = CFG["stagbits"]
    K, S = 1 << b, 16 >> b
    assert CFG["stagpos"] == 8 - b
    if CFG["sc3"]:
        a(f"s_or_b32 s48, s{TS + 1}, 384")
        a("s_and_b32 s49, s2, 2")
        a(f"s_and_b32 s{S_T0}, s{S_WAVE}, 1")
        a(f"s_add_u32 s49, s49, s{S_T0}")
        a(f"s_bfe_u32 s{S_T0}, s{TS + 1}, 0x30007")
        a(f"s_cmp_eq_u32 s{S_T0}, 3")
        a(f"s_cselect_b32 s{S_T0}, 128, 0")
        a(f"s_sub_u32 s{TS + 1}, s{TS + 1}, s{S_T0}")
    a(f"s_lshr_b32 s{S_T0}, s2, {8 - b}")
    a(f"s_mul_i32 s90, s{S_T0}, {1024 // K * 4096}")
    a(f"s_sub_u32 s{TS}, s{TS}, s90")
    a(f"s_mul_i32 s90, s{S_T0}, {64 // K * 6144}")
    a(f"s_sub_u32 s{TS + 1}, s{TS + 1}, s90")
    a(f"v_lshrrev_b32 v20, {5 - b}, v0")
    a(f"v_mul_u32_u24 v20, {1024 // K * 4096 - S * 128}, v20")
    a(f"v_add_u32 v{TV}, v{TV}, v20")
    a(f"v_lshrrev_b32 v20, {6 - b}, v0")
    a(f"v_mul_u32_u24 v20, {S * 64 * 6144 - 64 // K * 6144}, v20")
    a(f"v_sub_u32 v{TV + 1}, v{TV + 1}, v20")


def ctouch(a, vm, s0, n, sx, sw):
    K, S = 1 << CFG["stagbits"], 16 >> CFG["stagbits"]
    assert n <= S
    mx = sum(((1 << (2 * n)) - 1) << (2 * S * k) for k in range(K))
    mw = sum(7 << (4 * S * k + 4 * i) for k in range(K) for i in range(n))
    skip = uid("wx3")
    a(f"s_add_u32 s{S_T0 - 1}, s{TS + 1}, {64 * 6144 * s0}")
    a(f"s_mov_b32 exec_lo, {mw & 0xffffffff:#x}")
    a(f"s_mov_b32 exec_hi, {mw >> 32:#x}")
    if not CFG["sc3"]:
        a(f"s_bfe_u32 s{S_T0}, s{TS + 1}, 0x30007")
        a(f"s_cmp_lg_u32 s{S_T0}, 1")
        a(f"s_cbranch_scc1 {skip}")
        a(f"buffer_load_dword v{TV - 1}, v{TV + 1}, s[{sw}:{sw + 3}], s{S_T0 - 1} offen offset:256")
        a.label(skip)
    a(f"buffer_load_dword v{TV - 1}, v{TV + 1}, s[{sw}:{sw + 3}], s{S_T0 - 1} offen")
    a(f"s_mov_b32 exec_lo, {mx:#x}")
    a("s_mov_b32 exec_hi, 0")
    a(f"buffer_load_dword v{TV - 1}, v{TV}, s[{sx}:{sx + 3}], s{TS} offen offset:{128 * s0}")
    a("s_mov_b64 exec, -1")
    vm.issue("tb", 2)


GP_K, GP_V, GP_TU, GP_T, GP_TR, GP_U, GP_A = 108, 136, 152, 4, 36, 184, 230
GP_S1, GP_S2, GP_S3, GP_TG, GP_TN, GP_LB, GP_X = 72, 76, 80, 84, 85, 86, 87


def gpre_addr(a):
    A, T = GP_A, GP_X
    pre_tile(a, GP_TG, GP_TN, S_WAVE, T)
    a(f"s_mul_i32 s{GP_LB}, s{S_WAVE}, {H_PITCH}")
    a(f"s_add_u32 s{GP_LB}, s{GP_LB}, {H_REG}")
    a(f"s_lshl_b32 s{T}, s{GP_TN}, 9")
    a(f"s_add_u32 s{T}, s{T}, s{GP_TG}")
    a(f"s_lshl_b32 s{T}, s{T}, 7")
    a(f"v_and_b32 v{A + 1}, 7, v0")
    a(f"v_lshl_add_u32 v{A + 1}, v{A + 1}, 4, s{T}")
    a(f"v_lshrrev_b32 v{A}, 3, v0")
    a(f"v_lshl_add_u32 v{A}, v{A}, 13, v{A + 1}")
    for i in range(3):
        a(f"v_subrev_u32 v{A + 1 + i}, {2048 * (3 - i)}, v{A}")
    a(f"v_add_u32 v{A + 4}, 4096, v{A}")
    a(f"v_lshlrev_b32 v{A + 5}, 4, v0")
    a(f"s_lshl_b32 s{T}, s{GP_TG}, 9")
    a(f"s_add_u32 m0, s{GP_LB}, 4224")


def gpre_loads(a, vm):
    A, nt = GP_A, CFG["nt"]
    srd(a, GP_S3, P_SH, 8192)
    srd(a, GP_S1, P_K, 4 << 20)
    a("s_mov_b32 exec_hi, 0")
    a(f"buffer_load_dwordx4 v{A + 5}, s[{GP_S3}:{GP_S3 + 3}], s{GP_X} offen lds")
    a("s_mov_b64 exec, -1")
    vm.issue("taps")
    rows = [(A + 1, 0), (A + 2, 0), (A + 3, 0), (A, 0), (A, 2048), (A + 4, 0), (A + 4, 2048)]
    for i, (va, off) in enumerate(rows):
        a(f"buffer_load_dwordx4 {vr(GP_K + 4 * i, 4)}, v{va}, s[{GP_S1}:{GP_S1 + 3}], 0 offen offset:{off}{nt}")
        vm.issue(("k", i))
    srd(a, GP_S2, P_V, 4 << 20)
    for i, (va, off) in enumerate(rows[3:]):
        a(f"buffer_load_dwordx4 {vr(GP_V + 4 * i, 4)}, v{va}, s[{GP_S2}:{GP_S2 + 3}], 0 offen offset:{off}{nt}")
        vm.issue(("v", i))


def gpre_compute(a, vm, st):
    A, T = GP_A, GP_X
    a(f"v_and_b32 v{A + 1}, 7, v0")
    a(f"v_lshl_add_u32 v{A}, v{A + 1}, 6, s{GP_LB}")
    a(f"v_mul_u32_u24 v{A + 1}, 528, v{A + 1}")
    a(f"v_lshrrev_b32 v{A + 2}, 3, v0")
    a(f"v_xor_b32 v{A + 2}, 7, v{A + 2}")
    a(f"v_lshl_add_u32 v{A + 1}, v{A + 2}, 3, v{A + 1}")
    a(f"v_add_u32 v{A + 1}, s{GP_LB}, v{A + 1}")
    if not CFG["cst"]:
        kvt_addr(a, A + 2, GP_LB, GP_TG, GP_TN, T, GP_S3)
    vm.wait(a, "taps")
    for d in range(4):
        a(f"ds_read_b128 {vr(GP_TR + 4 * d, 4)}, v{A} offset:{4224 + 16 * d}")
    for d in range(4):
        a(f"s_waitcnt lgkmcnt({3 - d})")
        for e in (0, 1):
            for h in (0, 1):
                unpack(a, GP_TU + 8 * d + 4 * h + e, GP_TU + 8 * d + 4 * h + 2 + e, GP_TR + 4 * d + 2 * e + h)
    for i in range(0, 16, 2):
        a(f"v_mov_b64 v[{GP_TR + i}:{GP_TR + i + 1}], 0")
    p = lambda r: vr(r, 2)
    for i in range(7):
        vm.wait(a, ("k", i))
        for d in range(4):
            unpack(a, GP_U + 2 * d, GP_U + 2 * d + 1, GP_K + 4 * i + d)
        for r in range(4):
            t = r + 3 - i
            if 0 <= t <= 3:
                for d in range(4):
                    acc = p(GP_T + 8 * d + 2 * r)
                    if t == 3:
                        a(f"v_pk_mul_f32 {acc}, {p(GP_U + 2 * d)}, {p(GP_TU + 8 * d + 2 * t)}")
                    else:
                        a(f"v_pk_fma_f32 {acc}, {p(GP_U + 2 * d)}, {p(GP_TU + 8 * d + 2 * t)}, {acc}")
    st.stamp(a, "kdone")
    for r in range(4):
        vm.wait(a, ("v", r))
        for d in range(4):
            unpack(a, GP_U + 2 * d, GP_U + 2 * d + 1, GP_V + 4 * r + d)
        for d in range(4):
            acc = p(GP_T + 8 * d + 2 * r)
            a(f"v_pk_mul_f32 {acc}, {acc}, {p(GP_U + 2 * d)}")
    R = GP_K
    for j in range(8):
        t = GP_T + 8 * (j >> 1) + (j & 1)
        a(f"v_cvt_pk_bf16_f32 v{R + 2 * j}, v{t + 6}, v{t + 4}")
        a(f"v_cvt_pk_bf16_f32 v{R + 2 * j + 1}, v{t + 2}, v{t}")
        a(f"ds_write_b64 v{A + 1}, {vr(R + 2 * j, 2)} offset:{64 * j}")
    if not CFG["cst"]:
        kvt_read(a, A + 2, A + 4 if CFG["stb0"] else GP_TU)
    for i in range(0, 32, 2):
        a(f"v_mov_b64 v[{GP_T + i}:{GP_T + i + 1}], 0")
    st.stamp(a, "vdone")
    a("s_waitcnt lgkmcnt(0)")
    if not CFG["cst"] and not CFG["stb0"]:
        kvt_store(a, A + 2, GP_TU, T, GP_S3)


def pre_tile(a, tg, tn, w, t):
    pm = CFG["pm"]
    if pm == 4:
        a(f"s_and_b32 s{tg}, s2, 3")
        if CFG["pmap"]:
            a(f"s_lshl_b32 s{tg}, s{tg}, 1")
            a(f"s_lshr_b32 s{tg}, 0x8d, s{tg}")
            a(f"s_and_b32 s{tg}, s{tg}, 3")
        a(f"s_lshl2_add_u32 s{tg}, s{tg}, s{w}")
        a(f"s_lshr_b32 s{tn}, s2, 2")
    else:
        a(f"s_and_b32 s{tg}, s2, 7")
        a(f"s_lshr_b32 s{t}, s{w}, 1")
        a(f"s_lshl1_add_u32 s{tg}, s{tg}, s{t}")
        a(f"s_lshr_b32 s{tn}, s2, 3")
        a(f"s_and_b32 s{t}, s{w}, 1")
        a(f"s_lshl1_add_u32 s{tn}, s{tn}, s{t}")


def kvt_addr(a, A, lb, tg, tn, T, sd):
    a(f"v_lshrrev_b32 v{A}, 5, v0")
    a(f"v_add_u32 v{A}, v0, v{A}")
    a(f"v_lshl_add_u32 v{A}, v{A}, 4, s{lb}")
    a(f"s_mul_i32 s{T}, s{tg}, {KVP}")
    a(f"s_sub_u32 s{T}, s{T}, s{tn}")
    a(f"s_lshl_b32 s{T}, s{T}, 6")
    a(f"s_add_u32 s{T}, s{T}, 4032")
    a(f"v_and_b32 v{A + 1}, 3, v0")
    a(f"v_lshl_add_u32 v{A + 1}, v{A + 1}, 4, s{T}")
    a(f"v_lshrrev_b32 v{A + 2}, 2, v0")
    a(f"v_mul_u32_u24 v{A + 2}, {KVP}, v{A + 2}")
    a(f"v_add_u32 v{A + 1}, v{A + 1}, v{A + 2}")
    srd(a, sd, P_WS, 1024 * KVP, WS_KV)


def kvt_read(a, A, R):
    for i in range(4):
        a(f"ds_read_b128 {vr(R + 4 * i, 4)}, v{A} offset:{1056 * i}")


def kvt_store(a, A, R, T, sd):
    for i in range(4):
        a(f"s_mov_b32 s{T}, {16 * KVP * i}")
        a(f"buffer_store_dwordx4 {vr(R + 4 * i, 4)}, v{A + 1}, s[{sd}:{sd + 3}], s{T} offen{CFG['kst']}")


ACC = 4
accQ = lambda b, d: ACC + 4 * (2 * b + d)
accK = lambda b, d: ACC + 32 + 4 * (2 * b + d)
accV = lambda b, d: ACC + 64 + 4 * (2 * b + d)
ACC_KH, ACC_VH = ACC + 96, ACC + 100
FR = 108


def frX(s, b):
    if CFG["smf"]:
        return FR + 32 if b == 4 else FR + 56 * s + 4 * b
    return FR + 44 * s + 4 * b


def frW(s, part, d):
    if CFG["smf"]:
        if part and not d:
            return FR + 40 + 8 * (part - 1) + 4 * s
        return FR + 56 * s + 16 + 4 * (d if part == 0 else part + 1)
    return FR + 44 * s + 20 + 4 * (2 * part + d)


SIDX = 202
AD = 196
G_HH, G_HALF, G_BUF, G_DELTA, G_CNT, G_T = 32, 33, 34, 35, 36, 37
GV_O, GV_OUT, GV_WO, GV_FL, GV_RD = 224, 226, 227, 228, 229


def compute_setup(a):
    a(f"s_lshr_b32 s{G_HH}, s{S_WAVE}, 1")
    a(f"s_and_b32 s{G_HALF}, s{S_WAVE}, 1")
    a("v_and_b32 v1, 15, v0")
    a("v_lshrrev_b32 v2, 4, v0")
    a("v_lshrrev_b32 v3, 1, v1")
    a("v_xor_b32 v3, v2, v3")
    a("v_lshlrev_b32 v3, 4, v3")
    a(f"v_lshl_add_u32 v3, v1, 7, v3")
    a(f"s_lshl_b32 s{G_T}, s{G_HALF}, 13")
    a(f"v_add_u32 v{AD}, s{G_T}, v3")
    a(f"v_xor_b32 v{AD + 1}, 64, v{AD}")
    if CFG["smf"]:
        a(f"v_and_b32 v{AD + 2}, 7, v1")
        a("v_lshlrev_b32 v3, 1, v2")
        a(f"v_xor_b32 v3, v3, v{AD + 2}")
        a("v_lshlrev_b32 v3, 4, v3")
        a(f"v_lshl_add_u32 v3, v{AD + 2}, 7, v3")
        a(f"v_lshrrev_b32 v{SIDX}, 3, v1")
        a(f"v_lshl_add_u32 v3, v{SIDX}, 2, v3")
        a(f"v_add_u32 v{AD + 2}, {X_HALO}, v3")
        a(f"v_xor_b32 v{AD + 3}, 16, v{AD + 2}")
        a(f"v_mul_u32_u24 v{SIDX}, 0xaaaa, v{SIDX}")
        a(f"v_add_u32 v{SIDX}, 0x4444, v{SIDX}")
    else:
        a("v_and_b32 v3, 6, v1")
        a("v_xor_b32 v3, v2, v3")
        a("v_lshlrev_b32 v3, 4, v3")
        a(f"v_and_b32 v{AD + 2}, 7, v1")
        a(f"v_lshl_add_u32 v3, v{AD + 2}, 7, v3")
        a(f"v_add_u32 v{AD + 2}, {X_HALO}, v3")
        a(f"v_xor_b32 v{AD + 3}, 64, v{AD + 2}")
    a("v_bfe_u32 v3, v0, 2, 2")
    a(f"v_lshl_add_u32 v{AD + 4}, v2, 3, v3")
    a(f"v_lshlrev_b32 v{AD + 4}, 7, v{AD + 4}")
    a("v_bfe_u32 v3, v0, 3, 2")
    a(f"v_xor_b32 v3, s{S_WAVE}, v3")
    a(f"v_lshl_add_u32 v{AD + 4}, v3, 5, v{AD + 4}")
    a("v_and_b32 v3, 3, v0")
    a(f"v_lshl_add_u32 v{AD + 4}, v3, 3, v{AD + 4}")
    a(f"v_add_u32 v{AD + 4}, {W_OFF}, v{AD + 4}")
    a(f"v_xor_b32 v{AD + 5}, 32, v{AD + 4}")
    for i in range(48, 104, 2):
        a(f"v_mov_b64 v[{ACC + i}:{ACC + i + 1}], 0")
    a(f"s_mov_b32 s{G_BUF}, 0")
    a(f"v_mov_b32 v{GV_FL}, {FLAGS}")


def reads(s, ks):
    def rx(b):
        if b == 4:
            return f"ds_read_b128 {vr(frX(s, 4), 4)}, v{AD + 2 + ks}"
        return f"ds_read_b128 {vr(frX(s, b), 4)}, v{AD + ks} offset:{2048 * b}"

    def rw(part, d):
        return [f"ds_read_b64_tr_b16 {vr(frW(s, part, d) + 2 * j, 2)}, v{AD + 4 + d} offset:{8192 * part + 4096 * ks + 512 * j}"
                for j in (0, 1)]
    halo = [rx(4)]
    if CFG["smf"]:
        halo = [f"ds_read2_b32 {vr(frX(s, 4) + 2 * j, 2)}, v{AD + 2 + j} offset1:2" for j in (0, 1)] if ks else []
    return [rx(0)] + rw(0, 0) + [rx(1)] + rw(0, 1) + [rx(2)] + rw(1, 0) + [rx(3)] + rw(1, 1) + halo + rw(2, 0) + rw(2, 1)


mQ = lambda s, b, d: mfma(accQ(b, d), frW(s, 0, d), frX(s, b))
mK = lambda s, b, d: mfma(accK(b, d), frW(s, 1, d), frX(s, b))
mV = lambda s, b, d: mfma(accV(b, d), frX(s, b), frW(s, 2, d))
mKH = lambda s: mfma(ACC_KH, frW(s, 1, 0), frX(s, 4))
mVH = lambda s: mfma(ACC_VH, frX(s, 4), frW(s, 2, 0))


smf = lambda acc, part: f"v_smfmac_f32_16x16x64_bf16 {vr(acc, 4)}, {vr(frX(0, 4), 4)}, {vr(frW(0, part, 0), 8)}, v{SIDX}"


def mfmas(s):
    R = range(4)
    if CFG["smf"]:
        Rr = (3, 2, 1, 0)
        return ([mQ(s, b, 0) for b in R] + [mQ(s, b, 1) for b in Rr] + [mK(s, b, 1) for b in R] + [mK(s, b, 0) for b in Rr] +
                [mV(s, b, 0) for b in R] + [mV(s, b, 1) for b in Rr])
    if CFG["serp"] == 2:
        W4 = [(mQ, 0), (mQ, 1), (mK, 1), (mK, 0)]
        L = [f(s, b, d) for b in (1, 2, 3) for f, d in (W4 if b % 2 == 0 else W4[::-1])]
        L = [f(s, 0, d) for f, d in W4] + L
        return L[:4] + [mKH(s)] + L[4:] + [mV(s, b, d) for b in (3, 2, 1, 0) for d in ((0, 1) if b % 2 else (1, 0))] + [mVH(s)]
    if CFG["serp"]:
        Rr = (3, 2, 1, 0)
        return ([mQ(s, b, 0) for b in R] + [mQ(s, b, 1) for b in Rr] + [mK(s, b, 1) for b in R] + [mK(s, b, 0) for b in Rr] + [mKH(s)] +
                [mVH(s)] + [mV(s, b, 0) for b in R] + [mV(s, b, 1) for b in Rr])
    return ([mQ(s, b, 0) for b in R] + [mQ(s, b, 1) for b in R] + [mK(s, b, 0) for b in R] + [mKH(s)] +
            [mK(s, b, 1) for b in R] + [mV(s, b, 0) for b in R] + [mVH(s)] + [mV(s, b, 1) for b in R])


def compute_loop(a):
    a(f"s_mov_b32 s{G_T}, {STAGE}")
    a(f"s_mov_b32 s{G_CNT}, {1 if CFG['ring'] else NSTAGE - 1}")
    if CFG["ring"]:
        a("v_and_b32 v3, 3, v0")
        a("v_lshlrev_b32 v3, 2, v3")
        a(f"v_add_u32 v3, {FULLW}, v3")
        a(f"s_lshl_b32 s72, s{S_WAVE}, 1")
        a("s_lshl_b32 s72, 1, s72")
        a("s_sub_u32 s72, 64, s72")
        a("s_lshr_b64 s[72:73], -1, s72")
    a("s_barrier")
    a.extend(reads(0, 0))
    if CFG["stat"]:
        a(f"s_bfe_u32 s73, s2, {3 | (CFG['stat'][1] << 16):#x}")
        a(f"s_sub_u32 s73, {NSTAGE - 1 - CFG['stat'][0]}, s73")
        a("s_lshl_b32 s72, 1, s73")
        a(f"s_or_b32 s72, s72, {(1 << 1) | (1 << (NSTAGE - CFG['drain'])):#x}")
    elif CFG["stb0"]:
        kvt_store(a, GP_A + 2, GP_A + 4, GP_X, GP_S3)
    if CFG["al"] is not None:
        a("s_branch L_g1_head")
        if CFG["near"]:
            compute_rare(a)
        a(".p2align 6")
        a.label("L_g1_head")
    a("s_waitcnt lgkmcnt(0)")
    a.label("L_g1_loop")
    m0 = mfmas(0)
    fill = reads(1, 1) + [f"ds_read_b32 v1, v{GV_FL} offset:{F_S15}",
                          f"s_add_u32 s{G_BUF}, s{G_BUF}, {STAGE}",
                          f"s_cmp_eq_u32 s{G_BUF}, {3 * STAGE}",
                          f"s_cselect_b32 s{G_DELTA}, {-2 * STAGE}, s{G_T}",
                          f"s_cselect_b32 s{G_BUF}, 0, s{G_BUF}",
                          f"s_bitcmp1_b32 {(1 << 1) | (1 << (NSTAGE - CFG['drain'])):#x}, s{G_CNT}"]
    if CFG["near"] == 2:
        fill[-1] = f"s_cmp_eq_u32 s{G_CNT}, 1"
    if CFG["stat"]:
        fill[-1] = f"s_bitcmp1_b32 s72, s{G_CNT}"
    if CFG["rev"]:
        a.ins[[i for i, x in enumerate(a.ins) if x.text == f"s_mov_b32 s{G_T}, {STAGE}"][-1]] = Ins(f"s_mov_b32 s{G_T}, {-STAGE}")
        fill = reads(1, 1) + [f"s_cmp_eq_u32 s{G_BUF}, 0",
                              f"s_cselect_b32 s{G_DELTA}, {2 * STAGE}, s{G_T}",
                              f"s_add_u32 s{G_BUF}, s{G_BUF}, s{G_DELTA}",
                              f"s_cmp_eq_u32 s{G_CNT}, {NSTAGE - CFG['drain']}"]
    adds = [f"v_add_u32 v{AD + i}, s{G_DELTA}, v{AD + i}" for i in range(6)]
    if CFG["ring"]:
        m1 = mfmas(1)
        fill[-6] = "ds_read_b32 v1, v3"
        fill[-1] = f"s_cmp_eq_u32 s{G_CNT}, {CFG['drain']}"
        a.extend(weave(m0[:16], fill[:16]))
        a.extend(weave(m0[16:23], fill[16:] + adds, per=2))
        a(m0[23])
        a("s_cbranch_scc1 L_g1_drain")
        a.label("L_g1_drained")
        a("s_waitcnt lgkmcnt(0)")
        a(smf(ACC_KH, 1))
        a(f"v_cmp_gt_u32 vcc, s{G_CNT}, v1")
        a("s_mov_b64 exec, s[72:73]")
        a(f"ds_append v2 offset:{FREEW}")
        a("s_mov_b64 exec, -1")
        a(smf(ACC_VH, 2))
        if not CFG.get("nochk"):
            a("s_cbranch_vccnz L_g1_wait")
        a.label("L_g1_ready")
        a.extend(weave(m1[:-1], reads(0, 0) + [f"s_add_u32 s{G_CNT}, s{G_CNT}, 1", f"s_cmp_lg_u32 s{G_CNT}, {NSTAGE}"]))
        a("s_waitcnt lgkmcnt(0)")
        a(m1[-1])
        a("s_cbranch_scc1 L_g1_loop")
        a.extend(weave(mfmas(0), reads(1, 1)))
        a("s_waitcnt lgkmcnt(0)")
        return
    m1 = mfmas(1)
    fill1 = reads(0, 0) + [f"s_sub_u32 s{G_CNT}, s{G_CNT}, 1", f"s_cmp_lg_u32 s{G_CNT}, 0"]
    if CFG["smf"]:
        a.extend(weave(m0[:16], fill[:16]))
        a.extend(weave(m0[16:23], fill[16:] + adds, per=2))
        a(m0[23])
        a("s_waitcnt lgkmcnt(0)")
        if CFG["smf"] == 2:
            a(m1.pop(0))
            m1 = [smf(ACC_KH, 1)] + m1[:2] + [smf(ACC_VH, 2)] + m1[2:]
        elif CFG["smf"] == 3:
            a(smf(ACC_KH, 1))
            m1 = m1[:1] + [smf(ACC_VH, 2)] + m1[1:]
        else:
            a(smf(ACC_KH, 1))
            a(smf(ACC_VH, 2))
        a("s_cbranch_scc1 L_g1_rare")
        a.label("L_g1_bar")
        a("s_barrier")
        a.label("L_g1_nobar")
        a.extend(weave(m1[:-1], fill1))
        a("s_waitcnt vmcnt(0) lgkmcnt(0)" if CFG["near"] == 2 else "s_waitcnt lgkmcnt(0)")
        a(m1[-1])
    elif CFG["tight"]:
        k = CFG["tight"]
        a.extend(weave(m0[:18], fill[:18]))
        a.extend(weave(m0[18:24], fill[18:] + adds, per=2))
        a(m0[24])
        a("s_waitcnt lgkmcnt(0)")
        a(m0[25])
        a.extend(m1[:k - 1])
        a("s_cbranch_scc1 L_g1_rare")
        a.label("L_g1_bar")
        a("s_barrier")
        a.label("L_g1_nobar")
        a.extend(weave(m1[k - 1:25], fill1))
        a("s_waitcnt lgkmcnt(0)")
        a(m1[25])
    else:
        a.extend(weave(m0[:23], fill))
        a("s_waitcnt lgkmcnt(0)")
        a.extend(weave(m0[23:], adds, per=2))
        a("s_cbranch_scc1 L_g1_rare")
        a.label("L_g1_bar")
        a("s_barrier")
        a.label("L_g1_nobar")
        a.extend(weave(m1, fill1))
        a("s_waitcnt lgkmcnt(0)")
    a("s_cbranch_scc1 L_g1_loop")
    a.extend(weave(mfmas(0), reads(1, 1)))
    a("s_waitcnt lgkmcnt(0)")


def compute_rare(a):
    if CFG["ring"]:
        a.label("L_g1_drain")
        a("s_waitcnt vmcnt(0)")
        a("s_branch L_g1_drained")
        a.label("L_g1_wait")
        a(f"s_mov_b32 s{G_T + 1}, {SPIN_MAX * 8}")
        a.label("L_g1_spin")
        a("ds_read_b32 v1, v3")
        a("s_waitcnt lgkmcnt(0)")
        a(f"v_cmp_gt_u32 vcc, s{G_CNT}, v1")
        a("s_cbranch_vccz L_g1_ready")
        a(f"s_sub_u32 s{G_T + 1}, s{G_T + 1}, 1")
        a("s_cbranch_scc0 L_g1_spin")
        a("s_branch L_g1_ready")
        return
    a.label("L_g1_rare")
    if CFG["stat"]:
        a(f"s_cmp_lg_u32 s{G_CNT}, s73")
        a("s_cbranch_scc1 L_g1_rare2")
        kvt_store(a, GP_A + 2, GP_A + 4, GP_X, GP_S3)
        a("s_branch L_g1_bar")
        a.label("L_g1_rare2")
    if CFG["near"] != 2:
        a("s_waitcnt vmcnt(0)")
        if CFG["rev"]:
            a("s_branch L_g1_bar")
            return
        a(f"s_cmp_lg_u32 s{G_CNT}, 1")
        a("s_cbranch_scc1 L_g1_bar")
    spin_lds(a, GV_FL, F_S15, 4, 1, G_T + 1, first=False)
    a("s_branch L_g1_nobar")


QF = FR
KF = FR + 16
HX = FR + 36
VF = 230
MC, MP, MP0 = 204, 208, 212
BC = 216
OA = 218
EXW, EXW3, EXR, EXK = 219, 220, 221, 203
G_SRDO = 40


def attn_setup(a):
    a("v_and_b32 v1, 15, v0")
    a("v_lshrrev_b32 v2, 4, v0")
    a("v_lshlrev_b32 v2, 2, v2")
    a("v_sub_u32 v1, v1, v2")
    a(f"s_mov_b32 s{G_T}, 0xf149f2ca")
    a(f"v_mov_b32 v3, s{G_T}")
    a(f"s_or_b32 s{G_T + 1}, s{S_RB}, s{G_HALF}")
    a(f"s_cmp_eq_u32 s{G_T + 1}, 0")
    a(f"s_cselect_b32 s{G_T + 1}, s{G_T}, 0")
    for i in range(4):
        a(f"v_subrev_u32 v2, {i}, v1")
        a("v_cmp_gt_u32 vcc, 8, v2")
        a("v_cmp_gt_i32 s[64:65], -8, v2")
        a("v_ashrrev_i32 v2, 31, v2")
        a(f"v_cndmask_b32 v{MC + i}, v3, 0, vcc")
        a(f"v_cndmask_b32 v{MP + i}, v3, 0, s[64:65]")
        if i & 1:
            a(f"v_alignbit_b32 v{BC + (i >> 1)}, v2, v{BC + (i >> 1)}, 16")
        else:
            a(f"v_mov_b32 v{BC + (i >> 1)}, v2")
        a(f"v_min_f32 v{MP0 + i}, s{G_T + 1}, v{MP + i}")
    a(f"s_mul_i32 s{G_T}, s{G_HH}, {EX[1] - EX[0]}")
    a(f"s_add_u32 s{G_T}, s{G_T}, {EX[0]}")
    a(f"v_lshl_add_u32 v{EXW3}, v0, 3, s{G_T}")
    a(f"s_lshl_b32 s{G_T + 1}, s{G_HALF}, 9")
    a(f"v_add_u32 v{EXW}, s{G_T + 1}, v{EXW3}")
    if CFG["smf"]:
        a(f"s_add_u32 s{G_T + 1}, s{G_T + 1}, s{G_T}")
        a("v_and_b32 v1, 3, v0")
        a(f"v_lshl_add_u32 v1, v1, 1, s{G_T + 1}")
        a("v_bfe_u32 v2, v0, 2, 2")
        a("v_lshl_add_u32 v1, v2, 7, v1")
        a("v_lshrrev_b32 v2, 4, v0")
        a("v_xor_b32 v2, 2, v2")
        a(f"v_lshl_add_u32 v{EXK}, v2, 5, v1")
    a(f"s_mul_i32 s{G_T + 1}, s{G_HALF}, {2048 + 512}")
    a(f"v_add_u32 v{EXR}, s{G_T + 1}, v{EXW3}")
    a(f"v_xor_b32 v{EXR + 1}, 512, v{EXR}")
    a(f"s_lshl3_add_u32 s{G_T}, s{S_PAR}, s{S_RB}")
    a(f"s_lshl1_add_u32 s{G_T}, s{G_T}, s{G_HALF}")
    a(f"s_lshl_b32 s{G_T}, s{G_T}, 7")
    a(f"s_lshl1_add_u32 s{G_T + 1}, s{S_HP}, s{G_HH}")
    a(f"s_add_u32 s{G_T}, s{G_T}, s{G_T + 1}")
    a(f"s_lshl_b32 s{G_T}, s{G_T}, 10")
    a(f"v_lshl_add_u32 v{OA}, v0, 4, s{G_T}")
    srd(a, G_SRDO, P_WS, 4 << 20, WS_O)


def xreduce(a, op, r):
    a(f"v_permlane32_swap_b32 v{r[2]}, v{r[3]}")
    a(f"v_permlane32_swap_b32 v{r[0]}, v{r[1]}")
    a(f"{op} v{r[2]}, v{r[2]}, v{r[3]}")
    a(f"{op} v{r[0]}, v{r[0]}, v{r[1]}")
    a(f"v_permlane16_swap_b32 v{r[0]}, v{r[2]}")
    a(f"{op} v{r[0]}, v{r[0]}, v{r[2]}")


def xbroadcast(a, r):
    a(f"v_permlane16_swap_b32 v{r[0]}, v{r[2]}")
    a(f"v_mov_b32 v{r[1]}, v{r[0]}")
    a(f"v_mov_b32 v{r[3]}, v{r[2]}")
    a(f"v_permlane32_swap_b32 v{r[0]}, v{r[1]}")
    a(f"v_permlane32_swap_b32 v{r[2]}, v{r[3]}")


def attention(a, st):
    kf = lambda b: KF + 4 * (b + 1)
    vf = lambda d, b: VF + 10 * d + 2 * (b + 1)
    Sc = lambda b: accQ(b, 0)
    Sp = lambda b: accQ(b, 1)
    D = (0, 1)
    pub3 = ([f"s_cmp_eq_u32 s{G_HALF}, 0\ns_cbranch_scc0 L_at_nopub\n" +
             "\n".join(f"ds_write_b64 v{EXW3}, {vr(kf(3) + 2 * d, 2)} offset:{2048 + 512 * d}\n"
                       f"ds_write_b64 v{EXW3}, {vr(vf(d, 3), 2)} offset:{2048 + 1024 + 512 * d}" for d in D) +
             f"\nL_at_nopub:\ns_mov_b64 exec, 1\nds_add_u32 v{GV_FL}, v2 offset:{F_EX}\ns_mov_b64 exec, -1"])
    if CFG["smf"]:
        M = [(smf(ACC_KH, 1), []),
             (smf(ACC_VH, 2), [f"v_permlane32_swap_b32 v{ACC_KH + i}, v{ACC_VH + i}" for i in range(4)] +
              [f"v_add_f32 v{ACC_KH + i}, v{ACC_KH + i}, v{ACC_VH + i}" for i in range(4)] + cvt2(HX, ACC_KH) +
              [f"ds_write_b64 v{EXW}, {vr(HX, 2)} offset:1024"] +
              [f"ds_write_b16{'_d16_hi' if i & 1 else ''} v{EXK}, v{HX + (i >> 1)} offset:{8 * i}" for i in range(4)])]
    else:
        M = [(mKH(1), cvt2(HX, ACC_KH) + [f"ds_write_b64 v{EXW}, {vr(HX, 2)}"]),
             (mVH(1), cvt2(HX + 2, ACC_VH) + [f"ds_write_b64 v{EXW}, {vr(HX + 2, 2)} offset:1024"])]
    M += [(mK(1, 3, d), cvt2(kf(3) + 2 * d, accK(3, d))) for d in D]
    M += [(mV(1, 3, d), cvt2(vf(d, 3), accV(3, d)) + (pub3 if d else [])) for d in D]
    for b in (3, 2, 1, 0):
        M += [(mQ(1, b, d), cvt2(QF + 4 * b + 2 * d, accQ(b, d))) for d in D]
        if b:
            M += [(mK(1, b - 1, d), cvt2(kf(b - 1) + 2 * d, accK(b - 1, d))) for d in D]
    for b in (2, 1, 0):
        M += [(mV(1, b, d), cvt2(vf(d, b), accV(b, d))) for d in D]
    M[-3] = (M[-3][0], [f"ds_read_b32 v1, v{GV_FL} offset:{F_EX}"] + M[-3][1])
    R = [accK(0, 0) + i for i in range(4)]

    def merge(b):
        return ([f"v_max_f32 v{Sc(b) + i}, v{Sc(b) + i}, v{Sp(b) + i}" for i in range(4)] +
                [f"v_max3_f32 v{R[b]}, v{Sc(b)}, v{Sc(b) + 1}, v{Sc(b) + 2}", f"v_max_f32 v{R[b]}, v{R[b]}, v{Sc(b) + 3}"])
    S = []
    for b in (3, 2, 1):
        S += [(mfma(Sc(b), kf(b), QF + 4 * b, MC), []), (mfma(Sp(b), kf(b - 1), QF + 4 * b, MP), [])]
    S += [(mfma(Sc(0), kf(0), QF, MC), [])]
    a("v_mov_b32 v2, 1")
    lag_weave(a, M + S, lag=8, per=2)
    st.stamp(a, "g1end")
    a("s_waitcnt lgkmcnt(0)")
    spin_lds(a, GV_FL, F_EX, 4, 1, G_T, first=False)
    for d in D:
        a(f"ds_read_b64 {vr(kf(-1) + 2 * d, 2)}, v{EXR + d}")
    for d in D:
        a(f"ds_read_b64 {vr(vf(d, -1), 2)}, v{EXR + d} offset:1024")
    a.extend(merge(3) + merge(2))
    a("s_waitcnt lgkmcnt(2)")
    a(mfma(Sp(0), kf(-1), QF, MP0))
    a(f"s_setprio {CFG['prio_av']}")
    a(f"s_mov_b32 s{G_T}, 0x3e8293ee")
    a.extend(merge(1) + merge(0))
    xreduce(a, "v_max_f32", R)
    a(f"v_mul_f32 v{R[2]}, s{G_T}, v{R[0]}")
    a(f"v_mul_f32 v{R[0]}, s{G_T}, v{R[0]}")
    xbroadcast(a, R)
    for b in range(4):
        for i in range(4):
            a(f"v_fma_f32 v{Sc(b) + i}, v{Sc(b) + i}, s{G_T}, -v{R[b]}")
    for b in (3, 2, 1, 0):
        for i in range(4):
            a(f"v_exp_f32 v{Sc(b) + i}, v{Sc(b) + i}")
    for b in (3, 2, 1, 0):
        a(f"v_add_f32 v{R[b]}, v{Sc(b)}, v{Sc(b) + 1}")
        a(f"v_add_f32 v{Sp(b)}, v{Sc(b) + 2}, v{Sc(b) + 3}")
        a(f"v_add_f32 v{R[b]}, v{R[b]}, v{Sp(b)}")
    xreduce(a, "v_add_f32", R)
    a(f"v_rcp_f32 v{R[2]}, v{R[0]}")
    a(f"v_rcp_f32 v{R[0]}, v{R[0]}")
    xbroadcast(a, R)
    a("s_waitcnt lgkmcnt(0)")
    O = lambda b, d: accV(b, d)
    sw = lambda b: [f"v_swap_b32 v{QF + 4 * b + j}, v{QF + 4 * b + 2 + j}" for j in (0, 1)]

    def finish(b):
        for d in D:
            a.extend(cvt2(QF + 4 * b + 2 * d, O(b, d)))
        if not CFG["noswap"]:
            a(f"s_cbranch_scc1 L_at_noswap{b}")
            a.extend(sw(b))
            a.label(f"L_at_noswap{b}")
        a(f"s_mov_b32 s{G_T}, {32768 * b}")
        a(f"buffer_store_dwordx4 {vr(QF + 4 * b, 4)}, v{OA}, s[{G_SRDO}:{G_SRDO + 3}], s{G_T} offen sc1")
    if not CFG["noswap"]:
        a(f"s_cmp_eq_u32 s{G_HALF}, 0")
    for b in range(4):
        for i in range(4):
            a(f"v_mul_f32 v{Sc(b) + i}, v{Sc(b) + i}, v{R[b]}")
        a.extend(cvt2(Sp(b) + 2, Sc(b)))
        for j in (0, 1):
            a(f"v_and_b32 v{Sp(b) + j}, v{BC + j}, v{Sp(b) + 2 + j}")
        for j in (0, 1):
            a(f"v_xor_b32 v{Sp(b) + 2 + j}, v{Sp(b) + j}, v{Sp(b) + 2 + j}")
        if b:
            finish(b - 1)
        if b == CFG["hold"]:
            lds_add(a, GV_FL, 2, F_AT)
        a(f"s_setprio {CFG['prio_at']}")
        for d in D:
            a(mfma(O(b, d), vf(d, b - 1), Sp(b), "0"))
        a(f"s_setprio {CFG['prio_av']}")
    finish(3)


G_SRDWO, G_SRDOUT = 44, 48
G_SIG, G_WAIT, G_GC, G_CB, G_WOM, G_ROT, G_WOS = 56, 57, 58, 59, 60, 61, 62
G2_ACC, G2_WF, G2_AD, G2_OR = 4, 36, 84, 96
G2_SETS = (0, 2 * STAGE, 3 * STAGE)
G2_AD2, G2_OA = 232, 244
G2_PK, G2_PA = 172, 230


def g2_cb(a, s_cb, t):
    a(f"s_bfe_u32 s{s_cb}, s2, 0x10002")
    a(f"s_lshr_b32 s{t}, s2, 5")
    a(f"s_lshl3_add_u32 s{s_cb}, s{s_cb}, s{t}")


def wo_voffset(a, vd, s_cb, st, vt):
    a(f"v_lshrrev_b32 v{vt}, 4, v0")
    a(f"v_lshlrev_b32 v{vt}, 1, v{vt}")
    a(f"v_xor_b32 v{vt}, v0, v{vt}")
    a(f"v_and_b32 v{vt}, 7, v{vt}")
    a(f"s_lshl_b32 s{st}, s{s_cb}, 7")
    a(f"v_lshl_add_u32 v{vt}, v{vt}, 4, s{st}")
    a(f"v_lshrrev_b32 v{vd}, 3, v0")
    a(f"v_lshl_add_u32 v{vd}, v{vd}, 11, v{vt}")


def wo_dma(vo, srd_, s_m, s_so, pieces):
    L = []
    for lo, kr in pieces:
        L += [f"s_add_u32 m0, s{s_m}, {lo}",
              f"s_add_u32 s{s_so + 1}, s{s_so}, {kr * 2048}",
              f"s_and_b32 s{s_so + 1}, s{s_so + 1}, 0x1fffff",
              f"buffer_load_dwordx4 v{vo}, s[{srd_}:{srd_ + 3}], s{s_so + 1} offen lds"]
    return L


GV_WO2 = 223


def wo_dma_g(pieces):
    L = []
    for k, (c, g) in enumerate(pieces):
        if g == 0 or k == 0:
            L += [f"s_add_u32 m0, s{G_WOM}, {wo_base(c)}", f"s_xor_b32 s{G_WOS + 1}, s{G_WOS}, {c * 131072}"]
        L.append(f"buffer_load_dwordx4 v{GV_WO2 if g else GV_WO}, s[{G_SRDWO}:{G_SRDWO + 3}], s{G_WOS + 1} offen offset:{1024 * g} lds")
    return L


def g2_setup(a):
    T = G_T
    a(f"s_and_b32 s{G_GC}, s2, 3")
    a(f"s_bfe_u32 s{T}, s2, 0x20003")
    a(f"s_lshl2_add_u32 s{G_GC}, s{G_GC}, s{T}")
    g2_cb(a, G_CB, T)
    srd(a, G_SRDWO, P_WO, 2 << 20)
    srd(a, G_SRDOUT, P_OUT, 8 << 20)
    a(f"s_lshl3_add_u32 s{G_SIG}, s{S_PAR}, s{S_RB}")
    a(f"s_lshl4_add_u32 s{G_SIG}, s{G_SIG}, {CNT_O}")
    a(f"s_lshl_b32 s{G_SIG}, s{G_SIG}, 8")
    a(f"s_lshl4_add_u32 s{G_WAIT}, s{G_GC}, {CNT_O}")
    a(f"s_add_u32 s{G_WAIT}, s{G_WAIT}, s{G_CB}")
    a(f"s_lshl_b32 s{G_WAIT}, s{G_WAIT}, 8")
    a(f"s_lshl2_add_u32 s{T}, s{G_GC}, s{S_WAVE}")
    a(f"s_lshl_b32 s{T + 1}, s{T}, 16")
    a(f"v_lshl_add_u32 v{GV_O}, v0, 4, s{T + 1}")
    a(f"v_add_u32 v{GV_O + 1}, 0x8000, v{GV_O}")
    a(f"s_and_b32 s{T}, s{T}, 31")
    a(f"s_lshl_b32 s{T}, s{T}, 6")
    a(f"s_lshr_b32 s{T + 1}, s{G_GC}, 3")
    a(f"s_add_u32 s{T}, s{T}, s{T + 1}")
    a(f"s_lshl_b32 s{T}, s{T}, 5")
    a(f"s_add_u32 s{T}, s{T}, s{G_CB}")
    a(f"s_add_u32 s{T}, s{T}, 16")
    a(f"s_lshl_b32 s{T}, s{T}, 7")
    if CFG["oblds"]:
        a("v_lshrrev_b32 v1, 3, v0")
        a(f"v_lshl_add_u32 v1, v1, 13, s{T}")
        a("v_and_b32 v2, 7, v0")
        a(f"v_lshl_add_u32 v{GV_OUT}, v2, 4, v1")
    else:
        a("v_and_b32 v1, 15, v0")
        a(f"v_lshl_add_u32 v1, v1, 13, s{T}")
        a("v_bfe_u32 v2, v0, 4, 1")
        a("v_lshl_add_u32 v1, v2, 5, v1")
        a("v_lshrrev_b32 v2, 5, v0")
        a(f"v_lshl_add_u32 v{GV_OUT}, v2, 4, v1")
    wo_voffset(a, GV_WO, G_CB, T, 1)
    a(f"v_add_u32 v{GV_WO2}, {8 * 2048 - 1024}, v{GV_WO}")
    assert CFG["rot2"] in (0, 4)
    a(f"s_lshl_b32 s{G_WOM}, s{S_WAVE}, 11")
    a(f"s_mul_i32 s{G_ROT}, s{G_CB}, {CFG['rot2']}")
    a(f"s_and_b32 s{G_ROT}, s{G_ROT}, 7")
    a(f"s_lshl3_add_u32 s{G_WOS}, s{G_ROT}, s{S_WAVE}")
    a(f"s_lshl_b32 s{G_WOS}, s{G_WOS}, 15")
    a("v_lshrrev_b32 v1, 2, v0")
    a("v_lshlrev_b32 v1, 7, v1")
    a("v_bfe_u32 v2, v0, 3, 2")
    a("v_lshl_add_u32 v1, v2, 5, v1")
    a("v_and_b32 v2, 3, v0")
    a(f"v_lshl_add_u32 v{GV_RD}, v2, 3, v1")


def g2_pre(a):
    if CFG["noswap"]:
        a(f"s_lshl_b32 s{G_T}, s{G_HH}, 11")
        a(f"v_add_u32 v{GV_RD}, s{G_T}, v{GV_RD}")
    for j in range(1 + CFG["noswap"]):
        A = G2_AD2 if j else G2_AD
        for s_, base in enumerate(G2_SETS):
            for cb in range(4):
                if base:
                    a(f"v_add_u32 v{A + 4 * s_ + cb}, {base}, v{A + cb}")
                else:
                    a(f"v_xor_b32 v{A + cb}, {32 * cb + 2048 * j}, v{GV_RD}")
    if CFG["g2tail"]:
        a.extend(ob_addr())
    if CFG["park"]:
        a(f"v_lshl_add_u32 v{G2_PA + 1}, v0, 4, s{G_WOM}")
        a(f"v_add_u32 v{G2_PA}, {H_REG}, v{G2_PA + 1}")
    for i in range(8):
        a(f"s_add_u32 s{64 + i}, s{G_ROT}, {i}")
        a(f"s_and_b32 s{64 + i}, s{64 + i}, 7")
        a(f"s_lshl_b32 s{64 + i}, s{64 + i}, 12")


def g2_main(a, st):
    vm, lg = Q("vmcnt", 63), Q("lgkmcnt", 15)
    WP = CFG["wper"]
    PD, D = CFG["pd"], CFG["depth"]
    NF = PD + CFG["nfx"]
    assert G2_WF + 4 * NF <= G2_AD
    NR = max(D + 1, CFG['d0'])
    assert G2_OR + 8 * NR <= (G2_PK if CFG['park'] and not CFG['parkpre'] else GV_WO2)
    oreg = lambda h, i: G2_OR + 8 * (h % NR) + 4 * i

    def oload(h, i):
        vm.issue(("o", h))
        return f"buffer_load_dwordx4 {vr(oreg(h, i), 4)}, v{GV_O + i}, s[{G_SRDO}:{G_SRDO + 3}], s{64 + (h >> 2)} offen offset:{1024 * (h & 3)} sc1"

    def wread(f, j):
        h, cb = f >> 2, f & 3
        s_ = max(i for i, b in enumerate(G2_SETS) if b <= wo_base(h >> 1))
        off = wo_base(h >> 1) + 4096 * (h & 1) + 2048 * j - G2_SETS[s_]
        assert 0 <= off and off + 4096 <= 65536
        lg.issue(("w", f))
        if CFG["noswap"] and j:
            return f"ds_read_b64_tr_b16 {vr(G2_WF + 4 * (f % NF) + 2, 2)}, v{G2_AD2 + 4 * s_ + cb} offset:{off - 2048}"
        return f"ds_read_b64_tr_b16 {vr(G2_WF + 4 * (f % NF) + 2 * j, 2)}, v{G2_AD + 4 * s_ + cb} offset:{off}"

    nxt = [0]

    def more(limit):
        if nxt[0] < min(64, limit):
            a(oload(nxt[0] >> 1, nxt[0] & 1))
            nxt[0] += 1
    for f in range(max(PD, CFG["d0"])):
        more(2 * CFG["d0"])
        more(2 * CFG["d0"])
        if f < PD:
            if f == 7:
                lg.wait(a, ("w", 0))
            a(wread(f, 0))
            a(wread(f, 1))
    for k in range(CFG["park0"]):
        if k == 0:
            spin_lds(a, GV_FL, F_CD, 4, 1, G_T)
            lg.drained()
            a(f"s_waitcnt vmcnt({nxt[0]})")
        c = 10 + k // 2
        a(f"ds_write_b128 v{G2_PA + (c >= 14)}, {vr(G2_PK + 4 * k, 4)} offset:{wo_base(c) - (H_REG if c < 14 else 0) + 1024 * (k & 1)}")
        lg.issue("pk")
        if k == 11:
            lds_add(a, GV_FL, 2, F_WO2)
            lg.issue("pk")
    tailfill = ob_addr() if CFG["oblds"] else []
    st.stamp(a, "g2iss")
    for f in range(120 if CFG['g2tail'] else 128):
        h, cb = f >> 2, f & 3
        if CFG["wo1a"] < 10:
            if f == 1:
                lds_add(a, GV_FL, 2, F_WO1)
                lg.issue("add")
            if f + PD == 8 * CFG["wo1a"] - 4:
                a(f"ds_read_b32 v1, v{GV_FL} offset:{F_WO1}")
                lg.issue("flag")
            if f + PD == 8 * CFG["wo1a"]:
                lg.wait(a, "flag")
                spin_lds(a, GV_FL, F_WO1, 4, 1, G_T, first=False)
        if CFG["zhold"] is not None and f == 4 * CFG["zhold"] + 1:
            lds_add(a, GV_FL, 2, F_GZ)
            lg.issue("gz")
        if CFG["park"] and not CFG["parkpre"]:
            p0, pst = CFG["parkat"]
            if f == p0 - 4 and not CFG["park0"]:
                a(f"ds_read_b32 v1, v{GV_FL} offset:{F_CD}")
                lg.issue("flag")
            if f == p0 and not CFG["park0"]:
                lg.wait(a, "flag")
                spin_lds(a, GV_FL, F_CD, 4, 1, G_T, first=False)
            k = (f - p0) // pst + CFG['park0']
            if f >= p0 and (f - p0) % pst == 0 and k < 12:
                c = 10 + k // 2
                a(f"ds_write_b128 v{G2_PA + (c >= 14)}, {vr(G2_PK + 4 * k, 4)} offset:{wo_base(c) - (H_REG if c < 14 else 0) + 1024 * (k & 1)}")
                lg.issue("pk")
                if k == 11:
                    assert f + PD < 80 - 4
                    lds_add(a, GV_FL, 2, F_WO2)
                    lg.issue("pk")
        if f + PD == 80 - 4 and not CFG['parkpre']:
            a(f"ds_read_b32 v1, v{GV_FL} offset:{F_WO2}")
            lg.issue("flag")
        if f + PD == 80:
            if not CFG["parkpre"]:
                lg.wait(a, "flag")
                spin_lds(a, GV_FL, F_WO2, 4, 1, G_T, first=False)
            st.stamp(a, "wo2")
        w = []
        n = vm.need(("o", h)) if cb == 0 else None
        if n is not None:
            w.append(f"vmcnt({n})")
        n = lg.need(("w", min(127, f + WP - 1))) if f % WP == 0 else None
        if n is not None:
            w.append(f"lgkmcnt({n})")
        if w:
            a("s_waitcnt " + " ".join(w))
        if cb == 0 and h in (4, 8, 12, 24, 28):
            st.stamp(a, f"h{h}")
        for i in (0, 1):
            ii = i ^ (cb & 1) if CFG["g2serp"] else i
            a(mfma(G2_ACC + 16 * ii + 4 * cb, G2_WF + 4 * (f % NF), oreg(h, ii), "0" if h == 0 else None))
            if f + PD < 128:
                a(wread(f + PD, i))
            else:
                for _ in range(2):
                    if tailfill:
                        a(tailfill.pop(0))
        more(2 * (h + D) + (cb + 1) // 2)
    if CFG["g2tail"]:
        P, A = G2_PK, G2_OA
        mm = lambda i, f: mfma(G2_ACC + 16 * i + 4 * (f & 3), G2_WF + 4 * (f % NF), oreg(f >> 2, i))
        fin = lambda i, cb: cvt2(P + 8 * i + 2 * cb, G2_ACC + 16 * i + 4 * cb) + [f"ds_write_b64 v{A + cb}, {vr(P + 8 * i + 2 * cb, 2)}"]
        rd = lambda i: [f"ds_read_b128 {vr(P + 16 + 8 * i + 4 * k, 4)}, v{A + 4} offset:{1024 * k}" for k in (0, 1)]
        sto = lambda n, c: (f"s_mov_b32 s{G_T}, {8 * 8192 * n}\ns_waitcnt lgkmcnt({c})\n"
                            f"buffer_store_dwordx4 {vr(P + 16 + 4 * n, 4)}, v{GV_OUT}, s[{G_SRDOUT}:{G_SRDOUT + 3}], s{G_T} offen{CFG['ost']}")
        a(f"s_waitcnt vmcnt({vm.need(('o', 30))}) lgkmcnt({lg.need(('w', 123))})")
        a.extend([mm(0, f) for f in range(120, 124)])
        a("s_waitcnt vmcnt(0) lgkmcnt(0)")
        M = [(mm(0, 124 + cb) + ("\ns_nop 0\ns_nop 0" if cb < 3 and CFG.get("tnop") else ""), fin(0, cb) + (rd(0) if cb == 3 else [])) for cb in range(4)]
        for cb in range(4):
            M += [(mm(1, 120 + cb), []), (mm(1, 124 + cb), fin(1, cb) + (rd(1) if cb == 3 else []))]
        lag_weave(a, M, lag=6 if CFG.get("tnop") else 8, per=CFG["g2tail"])
        st.stamp(a, "g2end")
        k = [i for i, x in enumerate(a.ins) if x.op == "ds_write_b64"][-2]
        a.ins[k:k] = [Ins(x) for n, c in ((0, 3), (1, 2)) for x in sto(n, c).split("\n")]
        a(sto(2, 1))
        a(sto(3, 0))
        return
    assert not tailfill
    st.stamp(a, "g2end")
    P = G2_WF
    if CFG["oblds"]:
        for i in (0, 1):
            for cb in range(4):
                a.extend(cvt2(P + 8 * i + 2 * cb, G2_ACC + 16 * i + 4 * cb))
                a(f"ds_write_b64 v{G2_AD + cb}, {vr(P + 8 * i + 2 * cb, 2)}")
            for k in (0, 1):
                a(f"ds_read_b128 {vr(P + 16 + 8 * i + 4 * k, 4)}, v{G2_AD + 4} offset:{1024 * k}")
        for n in range(4):
            a(f"s_mov_b32 s{G_T}, {8 * 8192 * n}")
            a(f"s_waitcnt lgkmcnt({(7, 6, 1, 0)[n]})")
            a(f"buffer_store_dwordx4 {vr(P + 16 + 4 * n, 4)}, v{GV_OUT}, s[{G_SRDOUT}:{G_SRDOUT + 3}], s{G_T} offen{CFG['ost']}")
        return
    a(f"s_mov_b32 s{G_T}, {16 * 8192}")
    for p in (0, 1):
        for i in (0, 1):
            for cb in (2 * p, 2 * p + 1):
                a.extend(cvt2(P + 8 * i + 2 * cb, G2_ACC + 16 * i + 4 * cb))
        for i in (0, 1):
            for j in (0, 1):
                a(f"v_permlane16_swap_b32 v{P + 8 * i + 4 * p + j}, v{P + 8 * i + 4 * p + 2 + j}")
        for i in (0, 1):
            a(f"buffer_store_dwordx4 {vr(P + 8 * i + 4 * p, 4)}, v{GV_OUT}, s[{G_SRDOUT}:{G_SRDOUT + 3}], {f's{G_T}' if i else 0} offen offset:{64 * p}{CFG['ost']}")


def ob_addr():
    A, T = G2_OA if CFG["g2tail"] else G2_AD, G_T
    return [f"s_mul_i32 s{T}, s{G_HH}, {EX[1] - EX[0]}",
            f"s_lshl_b32 s{T + 1}, s{G_HALF}, 11",
            f"s_add_u32 s{T}, s{T}, s{T + 1}",
            f"s_add_u32 s{T}, s{T}, {EX[0]}",
            f"v_lshrrev_b32 v1, 5, v0",
            f"v_xor_b32 v1, v1, v0",
            f"v_and_b32 v1, 7, v1",
            f"v_lshl_add_u32 v1, v1, 4, s{T}",
            f"v_bfe_u32 v2, v0, 4, 1",
            f"v_lshl_add_u32 v1, v2, 3, v1",
            f"v_and_b32 v2, 15, v0",
            f"v_lshl_add_u32 v{A}, v2, 7, v1",
            ] + [f"v_xor_b32 v{A + cb}, {32 * cb}, v{A}" for cb in (1, 2, 3)] + [
            f"v_lshrrev_b32 v1, 3, v0",
            f"v_xor_b32 v1, v1, v0",
            f"v_and_b32 v1, 7, v1",
            f"v_and_b32 v2, 56, v0",
            f"v_add_u32 v1, v1, v2",
            f"v_lshl_add_u32 v{A + 4}, v1, 4, s{T}"]


def g_entry(a, vm, st):
    if CFG["codepf"]:
        a("s_bfe_u32 s34, s2, 0x20003")
        a(f"s_lshl2_add_u32 s34, s34, s{S_WAVE}")
        a("s_lshl_b32 s34, s34, 7")
        a("v_lshl_add_u32 v1, v0, 11, s34")
        a("v_min_u32 v1, L_end-L_entry-8, v1")
        a("s_mov_b64 exec, 0xffff")
        a(f"global_load_dword v{TV - 2}, v1, s[32:33]")
        a("s_mov_b64 exec, -1")
    gpre_addr(a)
    st.stamp(a, "addr")
    a("s_waitcnt lgkmcnt(0)")
    gpre_loads(a, vm)
    st.stamp(a, "kvis")
    if CFG["tb1"]:
        touch_setup(a)
        srd(a, 64, P_X, 4 << 20)
        srd(a, 68, P_W, 6 << 20)
        touch_batch(a, vm, *CFG["tb1"], 64, 68)
    if CFG["bpre"]:
        a("s_barrier")
    a("s_branch L_grole")


def g_role(a, st, vm):
    a(f"s_setprio {CFG['prio_g1']}")
    srd(a, S_CNT, P_WS, NCNT * 256, WS_CNT)
    if not CFG["latesetup"]:
        compute_setup(a)
        attn_setup(a)
        g2_setup(a)
    st.stamp(a, "setup")
    gpre_compute(a, vm, st)
    if CFG["latesetup"]:
        compute_setup(a)
        attn_setup(a)
        g2_setup(a)
    a(f"s_and_b32 s{G_T}, s2, 7")
    a(f"s_xor_b32 s{G_T}, s{G_T}, {CFG['cgx']}")
    a(f"s_lshl_b32 s{G_T}, s{G_T}, 5")
    a(f"s_lshr_b32 s{G_T + 1}, s2, 3")
    a(f"s_add_u32 s{G_T}, s{G_T}, s{G_T + 1}")
    a(f"s_add_u32 s{G_T}, s{G_T}, {CNT_Z}")
    a(f"s_lshl_b32 s{G_T}, s{G_T}, 8")
    a(f"s_cmp_eq_u32 s{G_HALF}, 0")
    a(f"s_cselect_b32 s{G_T}, s{G_T}, s{G_WAIT}")
    a(f"s_cmp_eq_u32 s{G_HH}, 0")
    a("s_cbranch_scc0 L_noclear")
    a("s_mov_b64 exec, 1")
    a(f"buffer_store_dword v{ACC}, off, s[{S_CNT}:{S_CNT + 3}], s{G_T} sc1")
    a("s_mov_b64 exec, -1")
    a.label("L_noclear")
    st.stamp(a, "pre")
    compute_loop(a)
    a(f"s_setprio {CFG['prio_at']}")
    pieces = [(c, g) for c in range(10) for g in (0, 1)]
    if CFG.get("x_nowo1"):
        pieces = []
    pieces = pieces[CFG["cwo1"]:]
    if CFG["rev"]:
        pieces = pieces[:10]
    b = Asm()
    attention(b, st)
    nw, (w0, wstep) = CFG["woat"], CFG["woatp"]
    fill = wo_dma_g(pieces[:nw])
    pieces = pieces[nw:]
    k0 = max(i for i, x in enumerate(b.ins) if x.kind == "label" and x.label.startswith("L_sl_done")) + w0
    k1 = max(i for i, x in enumerate(b.ins) if x.op == "s_cmp_eq_u32")
    if CFG["noswap"]:
        k1 = [i for i, x in enumerate(b.ins) if x.op == "buffer_store_dwordx4"][CFG["wend"]]
    for i, x in enumerate(b.ins):
        if i == k1:
            a.extend(fill)
            fill = []
        a.ins.append(x)
        if i > k0 and (i - k0) % wstep == 0 and fill:
            a(fill.pop(0))
    st.stamp(a, "attn")
    n0 = min(CFG["wo0"], len(pieces))
    a(f"s_setprio {CFG['prio_wo']}")
    a.extend(wo_dma_g(pieces[:n0]))
    g2_pre(a)
    a(f"s_waitcnt vmcnt({n0})")
    a(f"s_setprio {CFG['prio_j']}")
    st.stamp(a, "ostd")

    def between(x):
        if CFG["sigfirst"]:
            spin_lds(x, GV_FL, F_GJOIN, 4, 1, G_T)
        x(f"s_setprio {CFG['prio_wo']}")
        x.extend(wo_dma_g(pieces[n0:]))
        for k in range(12 * CFG["park"]):
            if k == CFG["presample"] and not CFG["parkpre"]:
                skip = uid("ps")
                x(f"s_cmp_eq_u32 s{G_T + 2}, 3")
                x(f"s_cbranch_scc0 {skip}")
                x(f"s_load_dword s{G_T}, s[{S_CNT}:{S_CNT + 1}], s{G_WAIT} glc")
                x.label(skip)
            if k % 2 == 0:
                x(f"s_xor_b32 s{G_WOS + 1}, s{G_WOS}, {(10 + k // 2) * 131072}")
            x(f"buffer_load_dwordx4 {vr(G2_PK + 4 * k, 4)}, v{GV_WO2 if k & 1 else GV_WO}, s[{G_SRDWO}:{G_SRDWO + 3}], s{G_WOS + 1} offen offset:{1024 * (k & 1)}")
        x(f"s_setprio {CFG['prio_g2']}")
        if CFG["parkpre"]:
            spin_lds(x, GV_FL, F_CD, 4, 1, G_T)
            skip = uid("ps")
            x(f"s_cmp_eq_u32 s{G_T + 2}, 3")
            x(f"s_cbranch_scc0 {skip}")
            x(f"s_load_dword s{G_T}, s[{S_CNT}:{S_CNT + 1}], s{G_WAIT} glc")
            x.label(skip)
            for k in range(12):
                c = 10 + k // 2
                x(f"s_waitcnt vmcnt({11 - k})")
                x(f"ds_write_b128 v{G2_PA + (c >= 14)}, {vr(G2_PK + 4 * k, 4)} offset:{wo_base(c) - (H_REG if c < 14 else 0) + 1024 * (k & 1)}")
        if not CFG["pollfirst"]:
            after(x)

    def after(x):
        x(f"s_waitcnt vmcnt({20 - 2 * CFG['wo1a'] + 12 * CFG['park']})")
        lds_add(x, GV_FL, 2, F_GGO)
        st.stamp(x, "wo1")
    join_signal_wait(a, GV_FL, F_GJOIN, F_GGO, G_SIG, G_WAIT, 1, G_T, between, want=24 if CFG['cwo1'] or CFG['rev'] else 20, after=after if CFG["pollfirst"] else None,
                     sampled=CFG["presample"] is not None)
    st.stamp(a, "oflag")
    g2_main(a, st)
    st.stamp(a, "st")
    if st.on:
        a("s_waitcnt vmcnt(0)")
    st.flush(a, S_WG, S_WAVE)
    a("s_endpgm")
    if not CFG["near"]:
        compute_rare(a)


L_SRDX, L_SRDW = 32, 36
L_SOX, L_SOW = 40, 41
L_BX, L_BW = 43, 44
L_EX = 46
L_T = 48
LV_X, LV_H, LV_W = 2, 6, 7
C_W = 70


def loader_setup(a):
    T = L_T
    a(f"s_sub_u32 s{C_W}, s{S_WAVE}, 4")
    a(f"s_lshl_b32 s{L_BX}, s{C_W}, 12")
    a(f"s_lshl_b32 s{L_BW}, s{C_W}, 11")
    a(f"s_add_u32 s{L_BW}, s{L_BW}, {W_OFF}")
    a(f"s_lshl_b32 s{T + 1}, s{C_W}, 4")
    a(f"s_lshl_b64 s[{L_EX}:{L_EX + 1}], 0xffff, s{T + 1}")
    a("v_lshrrev_b32 v13, 3, v0")
    a("v_and_b32 v14, 7, v0")
    a("v_lshrrev_b32 v15, 4, v0")
    a(f"s_lshl2_add_u32 s{T + 2}, s{S_RB}, s{C_W}")
    a(f"s_lshl_b32 s{T + 2}, s{T + 2}, 6")
    a(f"s_add_u32 s{T + 2}, s{T + 2}, s{S_PAR}")
    a(f"s_lshl_b32 s{T + 2}, s{T + 2}, 11")
    a(f"v_lshl_add_u32 v16, v13, 12, s{T + 2}")
    a("v_xor_b32 v17, v14, v15")
    a(f"v_lshl_add_u32 v{LV_X}, v17, 4, v16")
    a(f"v_xor_b32 v{LV_X + 1}, 64, v{LV_X}")
    a(f"v_add_u32 v{LV_X + 1}, {8 * 4096 - 1024}, v{LV_X + 1}")
    a(f"v_add_u32 v{LV_X + 2}, {16 * 4096 - 2048}, v{LV_X}")
    a(f"v_add_u32 v{LV_X + 3}, {16 * 4096 - 2048}, v{LV_X + 1}")
    a(f"s_lshl_b32 s{T + 1}, s{S_RB}, 7")
    a(f"s_sub_u32 s{T + 1}, s{T + 1}, 8")
    a(f"s_max_i32 s{T + 1}, s{T + 1}, 0")
    a(f"s_lshl1_add_u32 s{T + 1}, s{T + 1}, s{S_PAR}")
    a(f"s_lshl_b32 s{T + 1}, s{T + 1}, 11")
    a(f"v_lshl_add_u32 v16, v13, 12, s{T + 1}")
    a("v_lshlrev_b32 v17, 1, v15")
    a(f"v_xor_b32 v18, v14, {'v13' if CFG['smf'] else 'v17'}")
    a(f"v_lshl_add_u32 v{LV_H}, v18, 4, v16")
    a(f"s_mul_i32 s{T + 1}, s{C_W}, {16 * 48}")
    a(f"s_add_u32 s{T + 1}, s{T + 1}, s{S_HP}")
    a(f"s_lshl_b32 s{T + 1}, s{T + 1}, 7")
    a(f"v_mul_u32_u24 v16, 6144, v13")
    a("v_and_b32 v17, 2, v17")
    a("v_xor_b32 v17, v14, v17")
    a("v_lshlrev_b32 v17, 4, v17")
    a(f"v_add3_u32 v{LV_W}, v17, v16, s{T + 1}")
    a(f"v_xor_b32 v{LV_W + 1}, 64, v{LV_W}")
    a(f"v_add_u32 v{LV_W + 1}, {8 * 6144 - 1024}, v{LV_W + 1}")
    for part in (1, 2):
        for kgi in (0, 1):
            a(f"v_add_u32 v{LV_W + 2 * part + kgi}, {2048 * part}, v{LV_W + kgi}")
    if CFG["kx"]:
        a(f"s_add_u32 s{L_XC}, s{S_RB}, s{S_HP}")
        a(f"s_and_b32 s{L_XC}, s{L_XC}, {CFG['kx'][1]}")
        a(f"s_lshl_b32 s{L_XC}, s{L_XC}, 7")
    a.extend(korder(0))
    if CFG["sub"]:
        a(f"s_movk_i32 s{L_BH}, {X_HALO}")
        a(f"s_mov_b32 s{L_XC}, {STAGE}")


L_XC = 42


def korder(t):
    if CFG["kx"] and t >= CFG["kx"][0]:
        return [f"s_xor_b32 s{L_SOX}, s{L_XC}, {128 * t}", f"s_mul_i32 s{L_SOW}, s{L_SOX}, 3072"]
    return [f"s_movk_i32 s{L_SOX}, {128 * t}", f"s_mov_b32 s{L_SOW}, {64 * 6144 * t}"]


def loader_groups(t):
    buf = STAGE * ((-t if CFG['rev'] else t) % 3)
    W = [([] if kgi else [f"s_add_u32 m0, s{L_BW}, {buf + 8192 * part}"],
          [f"buffer_load_dwordx4 v{LV_W + 2 * part + kgi}, s[{L_SRDW}:{L_SRDW + 3}], s{L_SOW} offen offset:{1024 * kgi}{CFG['dmod']} lds"])
         for part in range(3) for kgi in (0, 1)]
    X = [([f"s_add_u32 m0, s{L_BX}, {buf}"] if CFG["ilv"] or not i else [],
          [f"buffer_load_dwordx4 v{LV_X + i}, s[{L_SRDX}:{L_SRDX + 3}], s{L_SOX} offen offset:{1024 * i}{CFG['dmod']} lds"]) for i in range(4)]
    G = [X[0]] + W[:2] + [X[1]] + W[2:4] + [X[2]] + W[4:] + [X[3]] if CFG["ilv"] else W[:2] + X + W[2:]
    G.append(([f"s_mov_b32 m0, {buf + X_HALO}"],
              [f"s_mov_b64 exec, s[{L_EX}:{L_EX + 1}]",
               f"buffer_load_dwordx4 v{LV_H}, s[{L_SRDX}:{L_SRDX + 3}], s{L_SOX} offen lds",
               "s_mov_b64 exec, -1",
               ] + korder(t + 1)))
    return G


L_BH, L_RET = 49, 50


def loader_sub(a):
    a.label("L_stage")
    lx = lambda i: f"buffer_load_dwordx4 v{LV_X + i}, s[{L_SRDX}:{L_SRDX + 3}], s{L_SOX} offen offset:{1024 * i} lds"
    lw = lambda i: f"buffer_load_dwordx4 v{LV_W + i}, s[{L_SRDW}:{L_SRDW + 3}], s{L_SOW} offen offset:{1024 * (i & 1)} lds"
    for part in range(3):
        a(f"s_mov_b32 m0, s{L_BX}")
        if part == 0:
            a(f"s_cmp_ge_u32 s{L_BH}, {2 * STAGE}")
            a(f"s_cselect_b32 s{L_T}, {-2 * STAGE}, s{L_XC}")
        a(lx(part))
        a(f"s_add_u32 m0, s{L_BW}, {8192 * part}")
        a(lw(2 * part))
        a(lw(2 * part + 1))
    a(f"s_mov_b32 m0, s{L_BX}")
    a(f"s_add_u32 s{L_BX}, s{L_BX}, s{L_T}")
    a(lx(3))
    a(f"s_mov_b32 m0, s{L_BH}")
    a(f"s_mov_b64 exec, s[{L_EX}:{L_EX + 1}]")
    a(f"buffer_load_dwordx4 v{LV_H}, s[{L_SRDX}:{L_SRDX + 3}], s{L_SOX} offen lds")
    a("s_mov_b64 exec, -1")
    a(f"s_add_u32 s{L_BW}, s{L_BW}, s{L_T}")
    a(f"s_add_u32 s{L_BH}, s{L_BH}, s{L_T}")
    a(f"s_addk_i32 s{L_SOX}, 128")
    a(f"s_add_u32 s{L_SOW}, s{L_SOW}, {64 * 6144}")
    a(f"s_setpc_b64 s[{L_RET}:{L_RET + 1}]")


C_A, C_B, C_WS = 56, 60, 64
C_CG, C_M, C_CH = 68, 69, 71
C_D, C_SIG, C_T = 72, 73, 74
C_HB, C_UB, C_WOS = 80, 81, 82
C_HO, C_UO, C_CB, C_STG, C_KW = 84, 85, 86, 87, 45
HR = 180
CACC, CA, CBF, QR = 16, 48, 112, 208
CV = 224
AA, AB = CV + 8, CV + 9
DF = CV + 16
ONE = CV + 20


def c_setup(a):
    T = C_T
    a(f"s_and_b32 s{C_SIG}, s2, 7")
    a(f"s_xor_b32 s{C_SIG}, s{C_SIG}, {CFG['cgx']}")
    a(f"s_lshr_b32 s{T}, s2, 7")
    a(f"s_lshl1_add_u32 s{C_CG}, s{C_SIG}, s{T}")
    a(f"s_bfe_u32 s{C_M}, s2, 0x40003")
    a(f"s_lshl4_add_u32 s{C_CH}, s{C_CG}, s{C_M}")
    a(f"s_lshl2_add_u32 s{C_CH}, s{C_CH}, s{C_W}")
    a(f"s_mul_i32 s{C_HB}, s{C_W}, {H_PITCH}")
    a(f"s_add_u32 s{C_HB}, s{C_HB}, {H_REG}")
    a(f"s_mul_i32 s{C_UB}, s{C_W}, {U_PITCH}")
    a(f"s_add_u32 s{C_UB}, s{C_UB}, {U_REG}")
    srd(a, S_CNT, P_WS, NCNT * 256, WS_CNT)
    srd(a, C_WS, P_WS, 1024 * ZP, WS_KV if CFG["zb"] == 2 else WS_Z)
    a(f"s_lshl_b32 s{C_HO}, s{C_CH}, 12")
    a(f"s_mul_i32 s{C_UO}, s{C_CH}, {KVP}")
    a(f"s_add_u32 s{C_UO}, s{C_UO}, {WS_KV}")
    a(f"s_lshr_b32 s{C_D}, s{C_CH}, 1")
    a(f"s_lshl_b32 s{C_D}, s{C_D}, 2")
    a(f"s_load_dword s{C_D}, s[{P_D}:{P_D + 1}], s{C_D}")
    a(f"v_lshlrev_b32 v{CV}, 4, v0")
    for e in range(4):
        a(f"v_mov_b32 v{CV + 4 + e}, 0")
    a(f"v_mov_b32 v{CV + 3}, {FLAGS}")
    a(f"v_mov_b32 v{ONE}, 1")
    a(f"s_bfe_u32 s{C_STG}, s2, {CFG['stagpos'] | (CFG['stagbits'] << 16):#x}")
    a("s_mov_b64 exec, 1")
    a(f"ds_write_b128 v{CV + 3}, {vr(CV + 4, 4)}")
    a(f"ds_write_b128 v{CV + 3}, {vr(CV + 4, 4)} offset:16")
    a(f"ds_write_b128 v{CV + 3}, {vr(CV + 4, 4)} offset:32")
    if CFG["ring"]:
        a(f"ds_write_b128 v{CV + 3}, {vr(CV + 4, 4)} offset:{H_PITCH}")
        a(f"v_mov_b32 v22, {FREEW}")
        a(f"ds_write_b128 v22, {vr(CV + 4, 4)}")
        a(f"ds_write_b128 v22, {vr(CV + 4, 4)} offset:{STAGE}")
        a(f"v_mov_b32 v23, {FREEW + 2 * STAGE}")
        a(f"ds_write_b128 v23, {vr(CV + 4, 4)}")
        a("s_mov_b64 exec, -1")
        a(f"v_mov_b32 v22, {FREEW}")
        a("v_mov_b32 v23, 0")
        a(f"s_andn2_b32 s{L_EX}, s{L_EX}, 1")
        a(f"s_lshl2_add_u32 s{L_XC}, s{C_W}, {FULLW}")
    a("s_mov_b64 exec, -1")


def chan_srd(a, d, ptr, s_off):
    a(f"s_add_u32 s{d}, s{ptr}, s{s_off}")
    a(f"s_addc_u32 s{d + 1}, s{ptr + 1}, 0")
    a(f"s_movk_i32 s{d + 2}, 4096")
    a(f"s_mov_b32 s{d + 3}, 0x20000")


def h_loads(a, vm):
    nt = CFG["hmod"]
    chan_srd(a, C_A, P_H, C_HO)
    a(f"s_add_u32 m0, s{C_HB}, 64")
    for e in range(4):
        a(f"v_mov_b32 v{HR + e}, 0")
    for i in range(4):
        a(f"buffer_load_dwordx4 v{CV}, s[{C_A}:{C_A + 3}], 0 offen offset:{1024 * i}{nt} lds")
    a(f"s_add_u32 m0, s{C_HB}, {H_COPY + 80}")
    a("s_mov_b64 exec, 0x100")
    a(f"buffer_load_dwordx4 {vr(HR, 4)}, off, s[{C_A}:{C_A + 3}], 0{nt}")
    a("s_mov_b64 exec, -1")
    for i in range(4):
        a(f"buffer_load_dwordx4 v{CV}, s[{C_A}:{C_A + 3}], 14 offen offset:{1024 * i}{nt} lds")
    vm.issue("h", 9)


def h_piece(i):
    def f(a, vm):
        nt = CFG["hmod"]
        chan_srd(a, C_A, P_H, C_HO)
        a(f"s_add_u32 m0, s{C_HB}, 64")
        if i == 0:
            for e in range(4):
                a(f"v_mov_b32 v{HR + e}, 0")
        a(f"buffer_load_dwordx4 v{CV}, s[{C_A}:{C_A + 3}], 0 offen offset:{1024 * i}{nt} lds")
        a(f"s_add_u32 m0, s{C_HB}, {H_COPY + 80}")
        if i == 0:
            a("s_mov_b64 exec, 0x100")
            a(f"buffer_load_dwordx4 {vr(HR, 4)}, off, s[{C_A}:{C_A + 3}], 0{nt}")
            a("s_mov_b64 exec, -1")
        a(f"buffer_load_dwordx4 v{CV}, s[{C_A}:{C_A + 3}], 14 offen offset:{1024 * i}{nt} lds")
        vm.issue("h", 2 + (i == 0))
    return f


def h_copy(c):
    def f(a, vm):
        nt = CFG["hmod"] if c == 0 else CFG.get("hmod2", CFG["hmod"])
        chan_srd(a, C_A, P_H, C_HO)
        a(f"s_add_u32 m0, s{C_HB}, {H_COPY + 80 if c else 64}")
        if c:
            for e in range(4):
                a(f"v_mov_b32 v{HR + e}, 0")
            a("s_mov_b64 exec, 0x100")
            a(f"buffer_load_dwordx4 {vr(HR, 4)}, off, s[{C_A}:{C_A + 3}], 0{nt}")
            a("s_mov_b64 exec, -1")
        for i in range(4):
            a(f"buffer_load_dwordx4 v{CV}, s[{C_A}:{C_A + 3}], {14 * c} offen offset:{1024 * i}{nt} lds")
        vm.issue("h", 4 + c)
    return f


def h_fill(a):
    a(f"v_cmp_lt_u32 vcc, 3, v0")
    a(f"v_mov_b32 v{HR + 8}, {H_COPY - 64}")
    a(f"v_lshlrev_b32 v{HR + 4}, 16, v{HR}")
    a(f"v_cndmask_b32 v{HR + 8}, 0, v{HR + 8}, vcc")
    for e in range(1, 4):
        a(f"v_alignbit_b32 v{HR + 4 + e}, v{HR + e}, v{HR + e - 1}, 16")
    a(f"v_add3_u32 v{HR + 8}, v{HR + 8}, v{CV}, s{C_HB}")
    a("s_mov_b64 exec, 0x1ff")
    a(f"ds_write_b128 v{HR + 8}, {vr(HR + 4, 4)}")
    a("s_mov_b64 exec, -1")


def u_loads(a, vm):
    chan_srd(a, C_A, P_WS, C_UO)
    for c in (0, 1):
        a(f"s_add_u32 m0, s{C_UB}, {(U_COPY - 4 * CFG['ushift']) * c}")
        for i in range(4):
            a(f"buffer_load_dwordx4 v{CV}, s[{C_A}:{C_A + 3}], {4 * c * (1 - CFG['ushift'])} offen offset:{1024 * i}{CFG['uld']} lds")
    vm.issue("u", 8)


def u_fill(a):
    t = CV + 10
    a(f"v_lshrrev_b32 v{t}, 5, v0")
    a(f"v_mul_u32_u24 v{t}, {U_COPY - 512}, v{t}")
    a(f"v_add3_u32 v{t}, v{t}, v{CV}, s{C_UB}")
    a("s_mov_b32 exec_lo, 0xfffffff")
    a("s_mov_b32 exec_hi, 0xfffffff")
    a(f"ds_write_b128 v{t}, {vr(CV + 4, 4)} offset:4096")
    if CFG["ushift"]:
        a("s_mov_b64 exec, 1")
        a(f"ds_write_b32 v{t}, v{CV + 4} offset:{U_COPY + 4092}")
    a("s_mov_b64 exec, -1")


def q_addr(a):
    T, vd, vt = C_T, CV + 1, CV + 10
    a(f"s_lshr_b32 s{T}, s{C_M}, 2")
    a(f"s_and_b32 s{T + 1}, s{C_M}, 3")
    a(f"s_lshl3_add_u32 s{T}, s{T}, s{C_W if CFG['zb'] else T + 1}")
    a(f"s_lshl3_add_u32 s{T}, s{T}, s{T + 1 if CFG['zb'] else C_W}")
    a(f"s_lshl_b32 s{T}, s{T}, 3")
    a(f"v_bfe_u32 v{vt}, v0, 3, 1")
    a(f"v_lshl_add_u32 v{vd}, v{vt}, 8, s{T}")
    a(f"v_bfe_u32 v{vt}, v0, 4, 1")
    a(f"v_lshl_add_u32 v{vd}, v{vt}, 1, v{vd}")
    a(f"v_lshrrev_b32 v{vt}, 5, v0")
    a(f"v_lshl_add_u32 v{vd}, v{vt}, 5, v{vd}")
    a(f"s_lshl_b32 s{T}, s{C_CG}, 7")
    a(f"v_and_b32 v{vt}, 7, v0")
    a(f"v_lshl_add_u32 v{vt}, v{vt}, 4, s{T}")
    a(f"v_lshl_add_u32 v{vd + 1}, v{vd}, 12, v{vt}")
    a(f"v_lshl_add_u32 v{vd}, v{vd}, 11, v{vt}")


def q_loads(a, vm):
    T = C_T + 1
    srd(a, C_B, P_Q, 4 << 20)
    a(f"s_movk_i32 s{T}, 8192")
    for i, (so, off) in enumerate((("0", 0), ("0", 2048), (f"s{T}", 0), (f"s{T}", 2048))):
        a(f"buffer_load_dwordx4 {vr(QR + 4 * i, 4)}, v{CV + 1}, s[{C_B}:{C_B + 3}], {so} offen offset:{off}{CFG.get('qmod', CFG['nt'])}")
    vm.issue("q", 4)


def q_touch(a, vm):
    T, t = C_T, CV + 10
    srd(a, C_B, P_Q, 4 << 20)
    a(f"s_lshr_b32 s{T}, s2, 3")
    a(f"s_lshl2_add_u32 s{T}, s{T}, s{C_W}")
    a(f"s_lshl_b32 s{T}, s{T}, 7")
    a(f"s_lshr_b32 s{T + 1}, s{C_CG}, 1")
    a(f"s_add_u32 s{T}, s{T}, s{T + 1}")
    a(f"s_lshl_b32 s{T}, s{T}, 8")
    a(f"v_lshrrev_b32 v{t}, 1, v0")
    a(f"v_and_b32 v{t + 1}, 1, v0")
    a(f"v_lshlrev_b32 v{t + 1}, 7, v{t + 1}")
    a(f"v_lshl_add_u32 v{t}, v{t}, 11, v{t + 1}")
    a("s_mov_b32 exec_hi, 0")
    a(f"buffer_load_dword v{TV - 1}, v{t}, s[{C_B}:{C_B + 3}], s{T} offen")
    a("s_mov_b64 exec, -1")
    vm.issue("qt")


def wo_chip_touch(a, vm):
    T, t = C_T, CV + 10
    srd(a, C_B, P_WO, 2 << 20)
    a(f"s_lshl2_add_u32 s{T}, s2, s{C_W}")
    a(f"s_lshl_b32 s{T}, s{T}, 11")
    a(f"v_lshlrev_b32 v{t}, 7, v0")
    a("s_mov_b64 exec, 0xffff")
    a(f"buffer_load_dword v{TV - 1}, v{t}, s[{C_B}:{C_B + 3}], s{T} offen")
    a("s_mov_b64 exec, -1")
    vm.issue("wc")


def wo_touch(a, vm, k=0, n=1, mask=None):
    T, t = C_T, CV + 10
    srd(a, C_B, P_WO, 2 << 20)
    a(f"s_lshr_b32 s{T}, s2, 3")
    a(f"s_lshl2_add_u32 s{T}, s{T}, s{C_W}")
    a(f"s_bfe_u32 s{T + 1}, s2, 0x10002")
    a(f"s_lshl4_add_u32 s{T}, s{T}, s{T + 1}")
    a(f"s_lshl_b32 s{T}, s{T}, 10")
    a(f"v_lshrrev_b32 v{t}, 3, v0")
    a(f"v_and_b32 v{t + 1}, 7, v0")
    a(f"v_lshlrev_b32 v{t + 1}, 7, v{t + 1}")
    a(f"v_lshl_add_u32 v{t}, v{t}, 11, v{t + 1}")
    m = ((1 << (64 // n)) - 1) << (64 // n * k)
    if mask:
        m, n = mask, 2
    if n > 1:
        a(f"s_mov_b32 exec_lo, {m & 0xffffffff:#x}")
        a(f"s_mov_b32 exec_hi, {m >> 32:#x}")
    a(f"buffer_load_dword v{TV - 1}, v{t}, s[{C_B}:{C_B + 3}], s{T} offen{CFG['wtmod']}")
    if n > 1:
        a("s_mov_b64 exec, -1")
    vm.issue("wt")


def conv_reads(s, step):
    L = []
    for j in range(8):
        L.append(f"ds_read_b128 {vr(CBF + 32 * s + 4 * j, 4)}, v{AB} offset:{512 * (7 - j) + 64 * step}")
        for e in (0, 1):
            L.append(f"ds_read_b64 {vr(CA + 32 * s + 4 * j + 2 * e, 2)}, v{AA} offset:{512 * j + 64 * step + 8 * e}")
    return L


def conv_mfmas(s, order=None):
    order = CFG["cord"] if order is None else order
    if order == 0:
        P = [(j, cb - j) for cb in range(8) for j in range(cb + 1)]
    elif order == 1:
        P = [(j, i) for j in range(8) for i in (range(7 - j, -1, -1) if j % 2 == 0 else range(8 - j))]
    else:
        P = [(j, i) for i in range(8) for j in (range(7 - i, -1, -1) if i % 2 == 0 else range(8 - i))]
    return [mfma(CACC + 4 * (i + j), CA + 32 * s + 4 * j, CBF + 32 * s + 4 * i) for j, i in P]


def conv_init(a):
    T, t = C_T, CV + 10
    a(f"v_and_b32 v{t}, 1, v0")
    a(f"v_xor_b32 v{t}, 1, v{t}")
    a(f"v_mul_u32_u24 v{AA}, {H_COPY}, v{t}")
    a(f"v_mul_u32_u24 v{AB}, {U_COPY}, v{t}")
    a(f"v_bfe_u32 v{t}, v0, 1, 3")
    a(f"v_lshl_add_u32 v{AA}, v{t}, 3, v{AA}")
    a(f"v_xor_b32 v{t}, 7, v{t}")
    a(f"v_lshl_add_u32 v{AB}, v{t}, 6, v{AB}")
    a(f"v_lshrrev_b32 v{t}, 4, v0")
    a(f"v_lshl_add_u32 v{AA}, v{t}, 4, v{AA}")
    a(f"v_lshl_add_u32 v{AB}, v{t}, 4, v{AB}")
    a(f"v_add3_u32 v{AA}, v{AA}, s{C_HB}, 8")
    a(f"v_add_u32 v{AB}, s{C_UB}, v{AB}")
    a("s_waitcnt lgkmcnt(0)")
    a(f"s_bitcmp1_b32 s{C_CH}, 0")
    a(f"s_cselect_b32 s{T}, 0, 16")
    a(f"s_lshl_b32 s{C_D}, s{C_D}, s{T}")
    a(f"s_and_b32 s{C_D}, s{C_D}, 0xffff0000")
    a(f"v_and_b32 v{t + 1}, 1, v0")
    a(f"v_lshlrev_b32 v{t + 1}, 4, v{t + 1}")
    a(f"v_lshrrev_b32 v{t + 1}, v{t + 1}, s{C_D}")
    a(f"v_bfe_u32 v{t + 2}, v0, 1, 3")
    a(f"v_lshl_add_u32 v{t + 2}, v{t}, 1, v{t + 2}")
    a(f"v_cmp_eq_u32 vcc, 7, v{t + 2}")
    a(f"v_mov_b32 v{DF + 1}, 0")
    a(f"v_mov_b32 v{DF + 3}, 0")
    a(f"v_cndmask_b32 v{DF}, 0, v{t + 1}, vcc")
    a(f"v_cmp_eq_u32 vcc, 6, v{t + 2}")
    a(f"v_cndmask_b32 v{DF + 2}, 0, v{t + 1}, vcc")


def wo1_by_c(a, vm):
    T, t = C_T, CV + 10
    g2_cb(a, C_CB, T)
    wo_voffset(a, t + 1, C_CB, T, t + 2)
    srd(a, L_SRDX, P_WO, 2 << 20)
    a(f"s_mul_i32 s{T}, s{C_CB}, {CFG['rot2']}")
    a(f"s_and_b32 s{T}, s{T}, 7")
    a(f"s_lshl3_add_u32 s{L_SOX}, s{T}, s{C_W}")
    a(f"s_lshl_b32 s{L_SOX}, s{L_SOX}, 15")
    a(f"s_lshl_b32 s{L_BX}, s{C_W}, 11")
    if CFG["rev"]:
        a.extend(wo_dma(t + 1, L_SRDX, L_BX, L_SOX, [(wo_base(c) + 1024 * g, 64 * c + 8 * g) for c in range(5, 10) for g in (0, 1)]))
        vm.issue("wo1", 10)
        return
    spin_lds(a, CV + 3, F_EX, 4, t, T)
    n = CFG["cwo1"]
    a.extend(wo_dma(t + 1, L_SRDX, L_BX, L_SOX, [(wo_base(c) + 1024 * g, 64 * c + 8 * g) for c in range(10) for g in (0, 1)][:n]))
    vm.issue("wo1", n)


def conv_loop(a, st):
    T = C_T
    if CFG["holdex"]:
        spin_lds(a, CV + 3, F_EX, CFG["holdex"], CV + 10, T)
        a(f"s_setprio {CFG['prio_conv']}")
    R0 = conv_reads(0, 0)
    if CFG["dfirst"]:
        R0 = [x for x in R0 if "b128" in x] * (CFG["dfirst"] == 1) + [x for x in R0 if "b128" not in x]
    a.extend(R0)
    a(f"s_setprio {CFG['prio_conv']}")
    if CFG["hold"] is not None:
        spin_lds(a, CV + 3, F_AT, 4, CV + 10, T)
    a(f"s_mov_b32 s{T}, 3")
    a(f"s_waitcnt lgkmcnt({15 if CFG['dfirst'] else 0})")
    st.stamp(a, "conv")
    for cb in range(8):
        a(mfma(CACC + 4 * cb, DF, CBF + 4 * cb, "0"))
    if CFG["dfirst"]:
        a("s_waitcnt lgkmcnt(0)")
    if CFG["alc"] is not None:
        a.ins[-8:-8] = [Ins(".p2align 6")] + [Ins("s_nop 0")] * CFG["alc"]
    a.label("L_conv")
    a.extend(weave(conv_mfmas(0), conv_reads(1, 1) + ([f"s_cmp_lg_u32 s{T}, {CFG['qat']}"] if CFG["qat"] else [])))
    if CFG["qat"]:
        a("s_cbranch_scc1 L_conv_noq")
        q_loads(a, Q("vmcnt", 63))
        a.label("L_conv_noq")
    if CFG["cwo1"]:
        a(f"s_cmp_lg_u32 s{T}, 3")
        a("s_cbranch_scc1 L_conv_nowo")
        a(f"s_waitcnt vmcnt({4 if CFG['qat'] == 3 else 0})")
        lds_add(a, CV + 3, ONE, F_GGO)
        a.label("L_conv_nowo")
    a("s_waitcnt lgkmcnt(0)")
    a.extend(weave(conv_mfmas(1), conv_reads(0, 2) + [f"v_add_u32 v{AA}, 128, v{AA}", f"v_add_u32 v{AB}, 128, v{AB}",
                                                      f"s_sub_u32 s{T}, s{T}, 1", f"s_cmp_lg_u32 s{T}, 0"]))
    a("s_waitcnt lgkmcnt(0)")
    a("s_cbranch_scc1 L_conv")
    st.stamp(a, "cv6")
    b = Rec()
    t = CV + 10
    b(f"s_mul_i32 s{T}, s{C_CG}, {ZP}")
    b(f"s_and_b32 s{T + 1}, s{C_CH}, 63")
    if CFG["zb"] >= 2:
        b(f"s_mul_i32 s{T}, s{C_CH}, {KVP}")
        b(f"v_mov_b32 v{t}, s{T}")
        b(f"v_mov_b32 v{t + 1}, v{CV}")
    elif CFG["zb"]:
        b(f"s_lshl2_add_u32 s{T}, s{T + 1}, s{T}")
        b(f"s_lshl_b32 s{T}, s{T}, 6")
        b(f"v_and_b32 v{t}, 15, v0")
        b(f"v_lshl_add_u32 v{t}, v{t}, 4, s{T}")
        b(f"v_lshrrev_b32 v{t + 1}, 4, v0")
        b(f"v_mul_u32_u24 v{t + 1}, {4 * ZP}, v{t + 1}")
    else:
        b(f"s_add_u32 s{T}, s{T}, s{T + 1}")
        b(f"s_lshl_b32 s{T}, s{T}, 6")
        b(f"v_and_b32 v{t}, 3, v0")
        b(f"v_lshl_add_u32 v{t}, v{t}, 4, s{T}")
        b(f"v_and_b32 v{t + 1}, 12, v0")
        b(f"v_lshrrev_b32 v{t + 2}, 4, v0")
        b(f"v_add_u32 v{t + 1}, v{t + 1}, v{t + 2}")
        b(f"v_mul_u32_u24 v{t + 1}, {ZP}, v{t + 1}")
    b(f"v_add_u32 v{t}, v{t}, v{t + 1}")
    m6 = conv_mfmas(0, 0)
    k = CFG["zearly"]
    a.extend(weave(m6[:36 - k], conv_reads(1, 1) + b.items, per=2 if k else 1))
    a("s_waitcnt lgkmcnt(0)")
    if CFG["park"]:
        lds_add(a, CV + 3, ONE, F_CD)
    st.stamp(a, "cv7")


def conv_tail(a, st):
    T, t = C_T, CV + 10
    b = Rec()
    if not CFG["park"]:
        g2_cb(b, C_CB, T)
        wo_voffset(b, t + 1, C_CB, T, t + 2)
        srd(b, C_A, P_WO, 2 << 20)
        b(f"s_mul_i32 s{T}, s{C_CB}, {CFG['rot2']}")
        b(f"s_and_b32 s{T}, s{T}, 7")
        b(f"s_lshl1_add_u32 s{C_WOS}, s{T}, s{C_W}")
        b(f"s_lshl_b32 s{C_WOS}, s{C_WOS}, 17")
    b(f"s_lshl4_add_u32 s{C_SIG}, s{C_CG}, {CNT_Z}")
    b(f"s_add_u32 s{C_KW}, s{C_SIG}, s{C_M}")
    b(f"s_lshl_b32 s{C_SIG}, s{C_SIG}, 8")
    b(f"s_lshl_b32 s{C_KW}, s{C_KW}, 8")
    P = CA
    M = [[m, []] for m in conv_mfmas(1, 0)]
    k6 = CFG["zearly"]
    if k6:
        P = 176
        M[36 - k6:36 - k6] = [[m, []] for m in conv_mfmas(0, 0)[36 - k6:]]
    for k, x in enumerate(b.items):
        M[k // 2][0] += "\n" + x
    for cb in range(8):
        last = (cb + 1) * (cb + 2) // 2 - 1
        if last >= 36 - k6:
            last += k6
        M[last][1] += cvt2(P + 2 * cb, CACC + 4 * cb)
        if cb & 1 and not CFG.get("x_nozst"):
            p = cb >> 1
            M[last][1] += [f"s_mov_b32 s{T + 2}, {1024 * p if CFG['zb'] >= 2 else 16 * ZP * p}",
                           f"buffer_store_dwordx4 {vr(P + 4 * p, 4)}, v{t}, s[{C_WS}:{C_WS + 3}], s{T + 2} offen{CFG['zst']}"]
    lag_weave(a, M, lag=8, per=2)
    a(f"s_setprio {CFG['prio_ct']}")
    st.stamp(a, "zst")
    w2 = [(1024 * g, 640 + 8 * g) for g in range(8)]
    if CFG.get("x_nowo2") or CFG["park"]:
        w2 = []
    n2 = CFG["wo2"]
    a.extend(wo_dma(t + 1, C_A, C_HB, C_WOS, w2[:n2]))
    a(f"s_waitcnt vmcnt({n2})")
    st.stamp(a, "zstd")
    QU = CBF

    def between(a):
        if CFG["qtail"] == 1:
            q_loads(a, Q("vmcnt", 63))
            a("s_waitcnt vmcnt(0)")
        for r in range(4 if CFG["qtail"] < 2 else 0):
            for d in range(4):
                unpack(a, QU + 8 * r + 2 * d, QU + 8 * r + 2 * d + 1, QR + 4 * r + d)
        if CFG["wo2nap"]:
            a(f"s_sleep {CFG['wo2nap']}")
        a(f"s_setprio {CFG['prio_w2']}")
        a.extend(wo_dma(t + 1, C_A, C_HB, C_WOS, w2[n2:]))
        if w2:
            a(f"s_cmp_ge_u32 s{C_W}, 2")
            a("s_cbranch_scc1 L_nowo3")
            a.extend(wo_dma(t + 1, C_A, C_UB, C_WOS, [(1024 * g, 896 + 8 * g) for g in range(8)]))
            a.label("L_nowo3")
        a(f"s_setprio {CFG['prio_ct']}")
        a(f"s_mul_i32 s{T + 3}, s{C_W}, {POST_PITCH}")
        a(f"s_add_u32 s{T + 3}, s{T + 3}, {POST_ST}")
        a(f"v_lshrrev_b32 v{t}, 5, v0")
        a(f"v_lshl_add_u32 v{t}, v{t}, 1, v0")
        a(f"v_lshl_add_u32 v{t}, v{t}, 4, s{T + 3}")
        a(f"v_and_b32 v{t + 1}, 7, v0")
        a(f"v_mul_u32_u24 v{t + 1}, 544, v{t + 1}")
        a(f"v_lshrrev_b32 v{t + 2}, 3, v0")
        a(f"v_lshl_add_u32 v{t + 1}, v{t + 2}, 3, v{t + 1}")
        a(f"v_add_u32 v{t + 1}, s{T + 3}, v{t + 1}")
        if CFG["zb"] >= 2:
            a(f"s_mul_i32 s{T + 3}, s{C_CG}, {KVP}")
            a(f"s_and_b32 s{T + 4}, s{C_CH}, 63")
            a(f"s_add_u32 s{T + 3}, s{T + 3}, s{T + 4}")
            a(f"s_lshl_b32 s{T + 3}, s{T + 3}, 6")
            a(f"v_lshrrev_b32 v{t + 2}, 2, v0")
            a(f"v_mul_u32_u24 v{t + 2}, {KVP - 64}, v{t + 2}")
            a(f"v_add_u32 v{CV}, v{CV}, v{t + 2}")
        elif CFG["zb"]:
            a(f"s_lshr_b32 s{T + 3}, s{C_CH}, 2")
            a(f"s_mul_i32 s{T + 3}, s{T + 3}, {4 * ZP // 64}")
            a(f"s_add_u32 s{T + 3}, s{T + 3}, s{C_W}")
            a(f"s_lshl_b32 s{T + 3}, s{T + 3}, 6")
            a(f"v_lshrrev_b32 v{t + 2}, 2, v0")
            a(f"v_mul_u32_u24 v{t + 2}, 192, v{t + 2}")
            a(f"v_add_u32 v{CV}, v{CV}, v{t + 2}")
        else:
            a(f"s_mul_i32 s{T + 3}, s{C_CH}, {ZP}")
        srd(a, C_B, P_OUT, 8 << 20)
        if not CFG["cpollfirst"]:
            after(a)

    def after(a):
        if CFG["park"]:
            return
        a("s_waitcnt vmcnt(0)")
        lds_add(a, CV + 3, ONE, F_WO2)

    join_signal_wait(a, CV + 3, F_CJOIN, F_CGO, C_SIG, C_KW, t + 3, T, between, after=after if CFG["cpollfirst"] else None)
    st.stamp(a, "zflag")
    if CFG.get("x_nopost"):
        return
    if CFG["zhold"] is not None and not CFG["shold"]:
        spin_lds(a, CV + 3, F_GZ, 1, t + 3, T)
    Z = CA
    for i in range(4):
        a(f"buffer_load_dwordx4 {vr(Z + 4 * i, 4)}, v{CV}, s[{C_WS}:{C_WS + 3}], s{T + 3} offen offset:{0 if CFG['zb'] else 1024 * i}{CFG['zld']}")
        if CFG["zb"]:
            a(f"s_add_u32 s{T + 3}, s{T + 3}, {16 * KVP if CFG['zb'] >= 2 else 4096}")
    nq = 4 if CFG["qtail"] == 2 else 0
    if nq:
        q_loads(a, Q("vmcnt", 63))
        srd(a, C_B, P_OUT, 8 << 20)
    for i in range(4):
        a(f"s_waitcnt vmcnt({3 - i + nq})")
        a(f"ds_write_b128 v{t}, {vr(Z + 4 * i, 4)} offset:{1088 * i}")
    st.stamp(a, "zld")
    for j in range(8):
        a(f"ds_read_b64 {vr(Z + 16 + 2 * j, 2)}, v{t + 1} offset:{64 * j}")
    ZU = CACC
    for j in range(8):
        a(f"s_waitcnt lgkmcnt({7 - j})")
        for e in (0, 1):
            unpack(a, ZU + 8 * (2 * e) + j, ZU + 8 * (2 * e + 1) + j, Z + 16 + 2 * j + e)
    for r in range(nq):
        a(f"s_waitcnt vmcnt({3 - r})")
        for d in range(4):
            unpack(a, QU + 8 * r + 2 * d, QU + 8 * r + 2 * d + 1, QR + 4 * r + d)
    for r, ro in enumerate((0, 1, 4, 5)):
        for j in range(8):
            a(f"v_mul_f32 v{ZU + 8 * r + j}, v{ZU + 8 * r + j}, v{QU + 8 * r + j}")
        for d in range(4):
            a(f"v_cvt_pk_bf16_f32 v{Z + 4 * r + d}, v{ZU + 8 * r + 2 * d}, v{ZU + 8 * r + 2 * d + 1}")
        if not CFG["shold"]:
            a(f"s_mov_b32 s{T}, {4096 * ro}")
            a(f"buffer_store_dwordx4 {vr(Z + 4 * r, 4)}, v{CV + 2}, s[{C_B}:{C_B + 3}], s{T} offen{CFG.get('osta', CFG['ost'])}")
    if CFG["shold"]:
        spin_lds(a, CV + 3, F_GZ, CFG["shold"], t + 3, T)
        for r, ro in enumerate((0, 1, 4, 5)):
            a(f"s_mov_b32 s{T}, {4096 * ro}")
            a(f"buffer_store_dwordx4 {vr(Z + 4 * r, 4)}, v{CV + 2}, s[{C_B}:{C_B + 3}], s{T} offen{CFG.get('osta', CFG['ost'])}")


def c_role(a, st):
    K = 1 << CFG["stagbits"]
    vm = MQ(K, C_STG)
    T = C_T
    if CFG["ring"]:
        a("s_add_u32 s94, s32, L_tab-L_entry-4")
        a("s_addc_u32 s95, s33, 0")
    loader_setup(a)
    touch_setup(a)
    a("s_waitcnt lgkmcnt(0)")
    for k in range(CFG["ptouch"]):
        a(f"s_load_dword s90, s[32:33], {min(4096 * (k + 1), 0x5800)}")
    srd(a, L_SRDX, P_X, 4 << 20)
    srd(a, L_SRDW, P_W, 6 << 20)
    a(f"s_setprio {CFG['prio_c1']}")
    st.stamp(a, "karg")
    c_setup(a)
    if CFG["cearly"]:
        q_addr(a)
        conv_init(a)
    if CFG["bpre"]:
        a("s_barrier")
    st.stamp(a, "cgo")

    def sig_kv(k):
        def f(a, vm):
            skip = uid("sig")
            a(f"s_bfe_u32 s{T}, s2, 0x20003")
            a(f"s_lshl2_add_u32 s{T}, s{T}, s{C_W}")
            a(f"s_cmp_lg_u32 s{T}, {4 * k}")
            a(f"s_cbranch_scc1 {skip}")
            srd(a, C_B, P_DBG, 256)
            a(f"s_and_b32 s{T}, s2, 3")
            a(f"s_lshl_b32 s{T}, s{T}, 6")
            a("s_mov_b64 exec, 1")
            a(f"buffer_atomic_add v{ONE}, off, s[{C_B}:{C_B + 3}], s{T} sc1")
            a("s_mov_b64 exec, -1")
            a.label(skip)
        return f

    def pld(a, vm):
        for j in range(4):
            a(f"s_load_dword s{4 + j}, s[{P_DBG}:{P_DBG + 1}], {64 * j}")

    def pchk(a, vm):
        done, loop = uid("pc_done"), uid("pc_loop")
        if not CFG["ring"]:
            a(f"s_cmp_lg_u32 s{C_W}, 0")
            a(f"s_cbranch_scc1 {done}")
        a("s_waitcnt lgkmcnt(0)")
        a("s_min_u32 s4, s4, s5")
        a("s_min_u32 s6, s6, s7")
        a("s_min_u32 s4, s4, s6")
        a("s_cmp_ge_u32 s4, 64")
        a(f"s_cbranch_scc1 {done}")
        srd(a, C_B, P_DBG, 256)
        a(f"v_lshlrev_b32 v20, 6, v0")
        a(f"s_mov_b32 s{T}, {SPIN_MAX}")
        a("s_mov_b64 exec, 0xf")
        a.label(loop)
        a(f"buffer_load_dword v21, v20, s[{C_B}:{C_B + 3}], 0 offen sc1")
        a("s_waitcnt vmcnt(0)")
        a("v_cmp_gt_u32 vcc, 64, v21")
        a(f"s_cbranch_vccz {done}")
        a("s_sleep 4")
        a(f"s_sub_u32 s{T}, s{T}, 1")
        a(f"s_cbranch_scc0 {loop}")
        a.label(done)
        a("s_mov_b64 exec, -1")

    def s15(a, vm):
        vm.wait(a, ("S", 15))
        lds_add(a, CV + 3, ONE, F_S15)

    def only(k, fs):
        def f(a, vm):
            skip = uid("stg")
            a(f"s_cmp_lg_u32 s{C_STG}, {k}")
            a(f"s_cbranch_scc1 {skip}")
            vm.only = k
            for g in fs:
                g(a, vm)
            vm.only = None
            a.label(skip)
        return f

    def krd(a, vm):
        pre_tile(a, T, T + 1, C_W, T + 2)
        kvt_addr(a, 20, C_HB, T, T + 1, T + 2, C_A)
        kvt_read(a, 20, 24)

    def kst(a, vm):
        a("s_waitcnt lgkmcnt(0)")
        kvt_store(a, 20, 24, T, C_A)
        vm.issue("kst", 4)

    W = lambda *tags: (lambda a, vm: vm.wait(a, *tags))
    A = lambda f, *x: (lambda a, vm: f(a, *x))
    items = dict(s15=s15, pld=pld, pchk=pchk, sig0=sig_kv(0), sig1=sig_kv(1), sig2=sig_kv(2), sig3=sig_kv(3),
                 u=u_loads, h=h_loads, hA=h_copy(0), hB=h_copy(1), h0=h_piece(0), h1=h_piece(1), h2=h_piece(2), h3=h_piece(3), q=q_loads, wt=wo_touch, wo1=wo1_by_c, wc=wo_chip_touch, w3=lambda a, vm: wo_touch(a, vm, mask=0x0808080808080808),
                 wook=lambda a, vm: (vm.wait(a, "wo1"), lds_add(a, CV + 3, ONE, F_GGO)), qt=q_touch, hfill=A(h_fill), ufill=A(u_fill), cinit=A(conv_init), brd=lambda a, vm: a.extend([x for x in conv_reads(0, 0) if 'b128' in x]), cts=A(ctouch_setup), qa=A(q_addr),
                 wh=W("h"), wu=W("u"), wwt=W("wt"), wq=W("q"), stm=lambda a, vm: st.stamp(a, "x"),
                 w4=lambda a, vm: a("s_waitcnt vmcnt(4)"), w2=lambda a, vm: a("s_waitcnt vmcnt(2)"), krd=krd, kst=kst, wst=W("kst"))

    def get(name):
        if "@" in name:
            n, k = name.split("@")
            return only(int(k), [get(x) for x in n.split("+")])
        if name[:2] == "wt" and "/" in name:
            return lambda a, vm: wo_touch(a, vm, *map(int, name[2:].split("/")))
        if name[:2] == "s3":
            s0 = int(name[3:])

            def f3(a, vm):
                skip = uid("s3")
                a("s_cmp_ge_u32 s49, 2")
                a(f"s_cbranch_scc1 {skip}")
                a(f"s_add_u32 s{T}, s49, {s0}")
                a(f"s_mul_i32 s{T}, s{T}, {64 * 6144}")
                a(f"s_add_u32 s{T}, s{T}, s48")
                for part in range(3):
                    a(f"s_load_dwordx2 s[90:91], s[{P_W}:{P_W + 1}], s{T} offset:{2048 * part + 60}")
                a.label(skip)
            return f3
        if name[:2] == "sq":
            k0, k1 = map(int, name[2:].split("-"))

            def fq(a, vm):
                a(f"v_readfirstlane_b32 s{T}, v{CV + 1}")
                for k in range(k0, k1):
                    a(f"s_load_dwordx2 s[90:91], s[{P_Q}:{P_Q + 1}], s{T} offset:{2048 * (256 * (k >> 4) + 32 * ((k >> 3) & 1) + (k & 7)) + 60}")
            return fq
        if name[:2] == "sw":
            k0, k1 = map(int, name[2:].split("-"))

            def f(a, vm):
                a(f"s_lshl2_add_u32 s{T}, s2, s{C_W}")
                a(f"s_lshl_b32 s{T}, s{T}, 11")
                for k in range(k0, k1):
                    a(f"s_load_dwordx2 s[90:91], s[{P_WO}:{P_WO + 1}], s{T} offset:{128 * k + 60}")
            return f
        if name[:2] in ("sh", "su"):
            k0, k1 = map(int, name[2:].split("-"))
            ptr, so = (P_H, C_HO) if name[1] == "h" else (P_WS, C_UO)
            return lambda a, vm: [a(f"s_load_dwordx2 s[90:91], s[{ptr}:{ptr + 1}], s{so} offset:{128 * k + 60}") for k in range(k0, k1)]
        if name.startswith("ct") and "-" in name:
            s0, s1 = map(int, name[2:].split("-"))
            return lambda a, vm: ctouch(a, vm, s0, s1 - s0, L_SRDX, L_SRDW)
        if name.startswith("tb"):
            return lambda a, vm: touch_batch(a, vm, *map(int, name[2:].split("-")), L_SRDX, L_SRDW)
        return items[name]

    todo = [(("S", t), g) for t in range(NSTAGE) for g in loader_groups(t)]
    pos = [0]

    def issue_to(n):
        while CFG["sub"] and pos[0] < min(n, len(todo)):
            a(f"s_call_b64 s[{L_RET}:{L_RET + 1}], L_stage")
            vm.issue(todo[pos[0]][0], 11)
            pos[0] += 11
        while pos[0] < min(n, len(todo)):
            tag, (p1, p2) = todo[pos[0]]
            a.extend(p1)
            a.extend(p2)
            vm.issue(tag)
            pos[0] += 1
            if CFG["ring"] and pos[0] % 11 in CFG["rsamp"] and tag[1] > 1:
                a("ds_read_b32 v23, v22")
            if CFG["ring"] and pos[0] % 11 == 0 and tag[1] > 0:
                a(f"s_sub_u32 m0, s{L_XC}, {4 * tag[1]}")
                a("s_mov_b64 exec, 1")
                a(f"global_load_lds_dword v{CV + 4}, s[94:95] offset:{4 * tag[1]}")
                a("s_mov_b64 exec, -1")
                vm.issue("full")

    if CFG.get("x_noconv"):
        global conv_mfmas
        conv_mfmas = lambda s_: ["s_nop 0"] * 36
    for t in range(-1, 15 + CFG['rev']):
        if t > 0 and CFG["ring"]:
            done, loop = uid("fr_done"), uid("fr_loop")
            a(f"s_mov_b32 s{T}, {SPIN_MAX * 8}")
            if CFG["rsamp"]:
                a(f"s_branch {loop}c")
            a.label(loop)
            a("ds_read_b32 v23, v22")
            a("s_waitcnt lgkmcnt(0)" if CFG["ring"] == 1 else CFG.get("rnap", "s_sleep 1"))
            a.label(loop + "c")
            a(f"v_readfirstlane_b32 s{T + 1}, v23")
            a(f"s_sub_u32 s{T + 1}, s{T + 1}, {85 * (t - 1)}")
            a(f"s_lshr_b32 s{T + 2}, s{T + 1}, 1")
            a(f"s_or_b32 s{T + 1}, s{T + 1}, s{T + 2}")
            a(f"s_andn2_b32 s{T + 1}, 0x55, s{T + 1}")
            a(f"s_cbranch_scc0 {done}")
            a(f"s_sub_u32 s{T}, s{T}, 1")
            a(f"s_cbranch_scc0 {loop}")
            a.label(done)
            st.stamp(a, f"B{t}")
        elif t >= 0:
            vm.wait(a, ("S", t))
            a("s_barrier")
            st.stamp(a, f"B{t}")
        pre, _, post = CFG["sched"].get(t, "").partition("|")
        for x in pre.split():
            get(x)(a, vm)
        issue_to(11 * (t + 3) - CFG["debt"].get(t, 0))
        for x in post.split():
            get(x)(a, vm)
    st.stamp(a, "uh")
    a(f"s_setprio {CFG['prio_cs']}")
    for x in CFG["late"].split():
        get(x)(a, vm)
    conv_loop(a, st)
    conv_tail(a, st)
    st.stamp(a, "st")
    if st.on:
        a("s_waitcnt vmcnt(0)")
    st.flush(a, S_WG, S_WAVE)
    a("s_endpgm")


def build(stamps=False, verbose=False, probe=None, **cfg):
    CFG.clear()
    CFG.update(BASE)
    CFG.update(cfg)
    reset_uid()
    NAP[0] = CFG['nap']
    a = Asm()
    st = SkewProbe(*probe) if probe else (LightStamps(CFG.get('clk', 's_memrealtime')) if stamps else Stamps(False))
    if CFG.get("jit"):
        st = Jitter(*CFG["jit"])
    a("L_entry:")
    a("s_getpc_b64 s[32:33]")
    a("s_cmp_ge_u32 s2, 256")
    a("s_cbranch_scc1 L_end")
    st.start(a)
    load_ptrs(a)
    decode_ids(a)
    a(f"s_cmp_ge_u32 s{S_WAVE}, 4")
    a("s_cbranch_scc1 L_crole")
    gvm = Q("vmcnt", 63)
    st.role(0)
    g_entry(a, gvm, st)
    if CFG["ring"]:
        a.label("L_tab")
        a(".long " + ", ".join(str(i) for i in range(16)))
    if CFG["sub"]:
        loader_sub(a)
    a.label("L_crole")
    st.role(4)
    c_role(a, st)
    a.label("L_grole")
    st.role(0)
    g_role(a, st, gvm)
    a.label("L_end")
    a("s_endpgm")
    body = a.finish(verbose)
    txt = build_file([(NAME + "_kernel", body, 256, 512, LDS_BYTES, 256)])
    if stamps and not probe:
        txt += "".join(f"; stamps{w}: " + " ".join(n) + "\n" for w, n in st.names.items())
    return txt, a.padded


def variants(d, stamps=True):
    for n, cfg in d.items():
        cfg = dict(cfg)
        if "sched" in cfg and not cfg.pop("full", 0):
            cfg["sched"] = {**BASE["sched"], **cfg["sched"]}
        open(f"{DEV}/v_{n}.s", "w").write(build(stamps=stamps, **cfg)[0])
    print(" ".join(f"v_{n}.s" for n in d))


if __name__ == "__main__":
    open(DEV + "/k_st.s", "w").write(build(stamps=True, verbose="-v" in sys.argv)[0])
    s, p = build()
    open(DEV + "/k.s", "w").write(s)
    print("padded", p)
    if "install" in sys.argv:
        open(DEV + f"/../{NAME}.s", "w").write(s)
```

```python
def T(first, ev):
    d = {-1: f"tb0-{first}|qa cinit"}
    base = {4: "sig0 sh0-4", 5: "sig1 sh4-8", 6: "sig2 sh8-12", 7: "sig3 sh12-16", 8: "sh16-20", 9: "sh20-24", 10: "sh24-28", 11: "sh28-32"}
    last_tb = max([t for t, x in ev.items() if x.startswith("tb")], default=-1)
    for t in range(0, 12):
        d[t] = "|" + ev.get(t, "") + (" cts " if t == last_tb else " ") + base.get(t, "")
    if last_tb < 0:
        d[-1] += " cts"
    return dict(sched=d)


def SH(plan, extra={}):
    ev = {0: "ct4-6@0", 1: "ct6-8@1", 3: "ct8-10@2", 4: "sig0", 5: "ct10-12@3 sig1", 6: "sig2", 7: "ct12-14@0 sig3", 9: "ct14-16@1"}
    d, k = {}, 0
    for t in range(0, 13):
        n = min(plan.get(t, 0), 32 - k)
        d[t] = "|" + ev.get(t, "") + " " + extra.get(t, "") + (f" sh{k}-{k + n}" if n else "")
        k += n
    return dict(sched=d)


def EV(ev, sig=(4, 5, 6, 7), first=4):
    d, k = {-1: f"tb0-{first}|qa cinit cts"}, 0
    for t in range(0, 13):
        n = min(3 if t >= 1 else 0, 32 - k)
        d[t] = "|" + ev.get(t, "") + "".join(f" sig{i}" for i in range(4) if sig[i] == t) + (f" sh{k}-{k + n}" if n else "")
        k += n
    return dict(sched=d)


def E3(ev, s3, sh):
    d, k = {-1: "tb0-4|qa cinit cts" + (f" s3:{s3[-1]}" if -1 in s3 else "")}, 0
    for t in range(0, 13):
        n = min(sh.get(t, 0), 32 - k)
        d[t] = "|" + ev.get(t, "") + (f" sig{t - 4}" if 4 <= t < 8 else "") + (f" s3:{s3[t]}" if t in s3 else "") + (f" sh{k}-{k + n}" if n else "")
        k += n
    return dict(sched=d, sc3=1, **({} if k == 32 else dict(hmod=" nt")))
```
